```python
import torch

def _softmax(x, axis=-1):
    return torch.softmax(x, dim=axis)
def _gelu(x):
    return torch.nn.functional.gelu(x, approximate="tanh")
def _silu(x):
    return torch.nn.functional.silu(x)
def _sigmoid(x):
    return torch.sigmoid(x)
def _layernorm(x, axis=-1, eps=1e-5):
    m = x.mean(dim=axis, keepdim=True)
    v = x.var(dim=axis, keepdim=True, unbiased=False)
    return (x - m) / torch.sqrt(v + eps)
def _scatter_add(tgt, idx, src, axis=0):
    return tgt.clone().index_add_(axis, idx, src)
def _segment_sum(src, seg, n):
    out = torch.zeros((n,) + src.shape[1:], dtype=src.dtype)
    return out.index_add_(0, seg, src)
def _pad(x, pw):
    flat = tuple(v for pair in reversed(pw) for v in pair)
    return torch.nn.functional.pad(x, flat)

kernel_name = 'gated_mix__spectral_gfnet__glu_gated_geglu__prompt'

def setup_inputs():

    _w = (lambda a: (lambda t: t.to(torch.bfloat16) if t.is_floating_point() else t)(torch.as_tensor(a)))
    def _A_setup():
        B, S, D = 1, 2048, 576
        Df = D // 2 + 1
        return {
            "x": _w((lambda *s: torch.randn(*s, dtype=torch.bfloat16) * 0.05)(B, S, D)),
            "w_r": _w((lambda *s: torch.randn(*s, dtype=torch.bfloat16) * 0.05)(S, Df) * 0.02),
            "w_i": _w((lambda *s: torch.randn(*s, dtype=torch.bfloat16) * 0.05)(S, Df) * 0.02),
        }
    _A_in = _A_setup()

    def _B_setup():
        B, S, Dm, Df = 1, 2048, 576, 4608
        return {
            "x": _w((lambda *s: torch.randn(*s, dtype=torch.bfloat16) * 0.05)(B, S, Dm)),
            "w_gate": _w((lambda *s: torch.randn(*s, dtype=torch.bfloat16) * 0.2)(Dm, Df) * (Dm ** -0.5)),
            "w_up": _w((lambda *s: torch.randn(*s, dtype=torch.bfloat16) * 0.2)(Dm, Df) * (Dm ** -0.5)),
            "w_down": _w((lambda *s: torch.randn(*s, dtype=torch.bfloat16) * 0.2)(Df, Dm) * (Df ** -0.5)),
        }
    _B_in = _B_setup()

    return {
        "A_x": _A_in["x"],
        "A_w_r": _A_in["w_r"],
        "A_w_i": _A_in["w_i"],
        "B_x": _B_in["x"],
        "B_w_gate": _B_in["w_gate"],
        "B_w_up": _B_in["w_up"],
        "B_w_down": _B_in["w_down"],
        "gate_w": _w((lambda *s: torch.randn(*s, dtype=torch.bfloat16) * 0.05)(576) * 16.0),
    }

def reference(A_x, A_w_r, A_w_i, B_x, B_w_gate, B_w_up, B_w_down, gate_w):
    def _A_ref(x, w_r, w_i):
        B, S, D = x.shape
        X = (lambda x, axes=(-2,-1): torch.fft.rfft2(x.float(), dim=axes))(x, axes=(-2, -1))
        W = w_r + 1j * w_i
        X = X * W
        y = (lambda x, s, axes=(-2,-1): torch.fft.irfft2(x, s=s, dim=axes).to(torch.bfloat16))(X, (S, D), axes=(-2, -1))
        return y

    def _B_ref(x, w_gate, w_up, w_down):
        g = torch.einsum("bsd,df->bsf", x, w_gate)
        u = torch.einsum("bsd,df->bsf", x, w_up)
        h = _gelu(g) * u
        return torch.einsum("bsf,fd->bsd", h, w_down)

    x = A_x
    g = _sigmoid((x * gate_w).sum(-1, keepdims=True))
    a = _A_ref(x, A_w_r, A_w_i)
    b = _B_ref(x, B_w_gate, B_w_up, B_w_down)
    return g * a + (1 - g) * b
```

```python
from asmlib import *
from common import *
import math

S_WV = 20
S_WS = 12
MF = 'v_mfma_f32_16x16x32_bf16'

def lit(x): return '0x%08x' % f32bits(x)

class Regs:
    def __init__(self, base): self.n = base
    def get(self, k=1, align=1):
        self.n = (self.n + align - 1) // align * align
        r = self.n; self.n += k
        return r

def lane_floats(a, vn, vq, fn, fq):
    a('v_and_b32 v%d, 15, v0\nv_lshrrev_b32 v%d, 4, v0\nv_cvt_f32_u32 v%d, v%d\nv_cvt_f32_u32 v%d, v%d' % (vn, vq, fn, vn, fq, vq))

def cos_pairs(a, dst, revs):
    for r in revs: a('v_cos_f32 v%d, v%d' % (r, r))
    for k in range(len(revs) // 2): a('v_cvt_pk_bf16_f32 v%d, v%d, v%d' % (dst + k, revs[2 * k], revs[2 * k + 1]))

class A1:
    S_AX = 64
    S_GW = 68
    def __init__(self, base, base2, lds, sw, gl_lds):
        R = Regs(base)
        self.lds, self.sw, self.gl = lds, sw, gl_lds
        self.XR, self.XL = lds, lds + 16384
        self.b1c, self.b1s = R.get(4, 4), R.get(4, 4)
        self.twc, self.tws = R.get(8), R.get(8)
        self.a2r, self.a2i = R.get(12, 4), R.get(12, 4)
        self.r8 = R.get(4, 4)
        self.xa, self.xlw, self.msk, self.xlr, self.uo = R.get(), R.get(6), R.get(2), R.get(), R.get()
        self.end1 = R.n
        R = Regs(base2)
        self.dv, self.gx, self.gw = R.get(2), R.get(), R.get(5)
        self.af = R.get(16, 4)
        self.d2 = R.get(24, 4)
        self.d1 = R.get(32, 4)
        self.b2 = R.get(16, 4)
        self.t = R.get(12, 4)
        self.end = R.n
    def loads(self, a):
        t = self.t
        a('''v_lshlrev_b32 v%d, 4, v0
v_add_u32 v%d, 1024, v%d
v_mov_b32 v%d, 0x7ffffff0
v_cmp_gt_u32 vcc, 8, v0
v_cndmask_b32 v%d, v%d, v%d, vcc
s_lshl_b32 s46, s%d, 9
s_add_u32 s46, s46, s%d
s_mul_i32 s46, s46, 1152
s_lshl_b32 s47, s%d, 12
s_add_u32 s47, s47, %d''' % (self.dv, self.dv + 1, self.dv, t, self.dv + 1, t, self.dv + 1, S_WV, self.sw, S_WV, self.XR))
        for e in range(2):
            for h in range(2):
                a('s_add_u32 s45, s46, %d\ns_add_u32 m0, s47, %d' % (e * 256 * 1152, e * 2048 + h * 1024))
                a('buffer_load_dwordx4 v%d, s[%d:%d], s45 offen lds' % (self.dv + h, self.S_AX, self.S_AX + 3), tag='a1x')
        a('v_lshlrev_b32 v%d, 2, v0' % t)
        for i in range(5):
            a('buffer_load_dword v%d, v%d, s[%d:%d], 0 offen offset:%d' % (self.gw + i, t, self.S_GW, self.S_GW + 3, 256 * i), tag='a1g')
    def consts(self, a):
        t = self.t
        vn, vq, fn, fq = t, t + 1, t + 2, t + 3
        x = self.d1
        lane_floats(a, vn, vq, fn, fq)
        a('v_mul_f32 v%d, %s, v%d' % (x + 16, lit(-1 / 24.), fn))
        a('v_mul_f32 v%d, %s, v%d' % (x + 17, lit(8.0), fq))
        a('v_mul_f32 v%d, v%d, v%d' % (x, x + 16, x + 17))
        for i in range(1, 8): a('v_add_f32 v%d, v%d, v%d' % (x + i, x + i - 1, x + 16))
        for i in range(8): a('v_sin_f32 v%d, v%d' % (x + 8 + i, x + i))
        for i in range(8): a('v_cos_f32 v%d, v%d' % (x + i, x + i))
        a('v_cmp_eq_u32 vcc, 3, v%d' % vq)
        for k in range(4):
            a('v_cvt_pk_bf16_f32 v%d, v%d, v%d' % (self.b1c + k, x + 2 * k, x + 2 * k + 1))
            a('v_cvt_pk_bf16_f32 v%d, v%d, v%d' % (self.b1s + k, x + 8 + 2 * k, x + 9 + 2 * k))
        for k in range(4):
            a('v_cndmask_b32_e64 v%d, v%d, 0, vcc' % (self.b1c + k, self.b1c + k))
            a('v_cndmask_b32_e64 v%d, v%d, 0, vcc' % (self.b1s + k, self.b1s + k))
        a('v_mul_f32 v%d, %s, v%d' % (x + 16, lit(-1 / 576.), fn))
        a('v_mul_f32 v%d, 4.0, v%d' % (x + 17, fq))
        a('v_mul_f32 v%d, v%d, v%d' % (x, x + 16, x + 17))
        for r in range(1, 4): a('v_add_f32 v%d, v%d, v%d' % (x + r, x + r - 1, x + 16))
        a('v_mul_f32 v%d, %s, v%d' % (x + 17, lit(16.0), x + 16))
        for r in range(4): a('v_add_f32 v%d, v%d, v%d' % (x + 4 + r, x + r, x + 17))
        for i in range(8): a('v_sin_f32 v%d, v%d' % (self.tws + i, x + i))
        for i in range(8): a('v_cos_f32 v%d, v%d' % (self.twc + i, x + i))
        a('''v_lshrrev_b32 v%d, 1, v%d
v_cvt_f32_u32 v%d, v%d
v_and_b32 v%d, 1, v%d
v_cvt_f32_u32 v%d, v%d''' % (x + 16, vn, x + 16, x + 16, x + 17, vn, x + 17, x + 17))
        a('v_mul_f32 v%d, %s, v%d' % (x + 17, lit(0.25), x + 17))
        a('v_mul_f32 v%d, 4.0, v%d' % (x + 18, fq))
        a('v_cmp_lt_u32 vcc, 1, v%d' % vq)
        for blk in range(3):
            a('v_add_f32 v%d, %s, v%d' % (x + 19, lit(8.0 * blk), x + 16))
            a('v_mul_f32 v%d, %s, v%d' % (x + 19, lit(1 / 24.), x + 19))
            a('v_fma_f32 v%d, v%d, v%d, v%d' % (x, x + 19, x + 18, x + 17))
            for i in range(1, 4): a('v_add_f32 v%d, v%d, v%d' % (x + i, x + i - 1, x + 19))
            a('v_mul_f32 v%d, %s, v%d' % (x + 20, lit(16.0), x + 19))
            for i in range(4): a('v_add_f32 v%d, v%d, v%d' % (x + 4 + i, x + i, x + 20))
            for i in range(8): a('v_add_f32 v%d, %s, v%d' % (x + 8 + i, lit(-0.25), x + i))
            cos_pairs(a, self.a2r + 4 * blk, [x + i for i in range(8)])
            cos_pairs(a, self.a2i + 4 * blk, [x + 8 + i for i in range(8)])
            for k in (2, 3):
                a('v_cndmask_b32_e64 v%d, v%d, 0, vcc' % (self.a2r + 4 * blk + k, self.a2r + 4 * blk + k))
                a('v_cndmask_b32_e64 v%d, v%d, 0, vcc' % (self.a2i + 4 * blk + k, self.a2i + 4 * blk + k))
        self.r8_consts(a, self.r8, +1, x, vn, vq, fq)
        self.addresses(a, vn, vq)
    def r8_consts(self, a, dst, sgn, x, vn, vq, fq):
        a('''v_lshrrev_b32 v%d, 1, v%d
v_cvt_f32_u32 v%d, v%d
v_and_b32 v%d, 1, v%d
v_cvt_f32_u32 v%d, v%d
v_cvt_f32_u32 v%d, s%d''' % (x + 16, vn, x + 16, x + 16, x + 17, vn, x + 17, x + 17, x + 18, self.sw))
        a('v_mul_f32 v%d, %s, v%d' % (x + 17, lit(0.25 * sgn), x + 17))
        if sgn > 0:
            a('v_mul_f32 v%d, %s, v%d' % (x + 18, lit(1 / 256.), x + 18))
            a('v_fma_f32 v%d, %s, v%d, v%d' % (x + 18, '4.0', fq, x + 18))
            a('v_mul_f32 v%d, %s, v%d' % (x + 19, lit(0.125), x + 16))
            a('v_fma_f32 v%d, v%d, v%d, v%d' % (x, x + 18, x + 19, x + 17))
            for jj in range(1, 4): a('v_add_f32 v%d, v%d, v%d' % (x + 2 * jj, x + 2 * jj - 2, x + 19))
        else:
            a('v_mul_f32 v%d, %s, v%d' % (x + 18, lit(1 / 256.), x + 18))
            a('v_add_f32 v%d, v%d, v%d' % (x + 18, x + 18, x + 16))
            a('v_mul_f32 v%d, %s, v%d' % (x + 19, lit(0.125), x + 18))
            a('v_mul_f32 v%d, 4.0, v%d' % (x + 18, fq))
            a('v_fma_f32 v%d, v%d, v%d, v%d' % (x, x + 18, x + 19, x + 17))
            for jj in range(1, 4): a('v_add_f32 v%d, v%d, v%d' % (x + 2 * jj, x + 2 * jj - 2, x + 19))
        for jj in range(4): a('v_add_f32 v%d, %s, v%d' % (x + 2 * jj + 1, lit(-0.25 * sgn), x + 2 * jj))
        cos_pairs(a, dst, [x + i for i in range(8)])
        a('v_cmp_lt_u32 vcc, 1, v%d' % vq)
        for k in range(4): a('v_cndmask_b32_e64 v%d, v%d, 0, vcc' % (dst + k, dst + k))
    def addresses(self, a, vn, vq):
        x = self.d1
        a('''v_lshrrev_b32 v%d, 2, v%d
v_lshl_add_u32 v%d, v%d, 3, v%d
v_mul_u32_u24 v%d, 48, v%d
v_and_b32 v%d, 3, v0
v_lshl_add_u32 v%d, v%d, 3, v%d
s_lshl_b32 s46, s%d, 12
s_add_u32 s46, s46, %d
v_add_u32 v%d, s46, v%d''' % (x, vn, x, vq, x, x, x, x + 1, x, x + 1, x, S_WV, self.XR, self.xa, x))
        a('s_lshl_b32 s46, s%d, 3\ns_add_u32 s46, s46, %d' % (S_WV, self.XL))
        for blk in range(3):
            for rr in range(2):
                d = self.xlw + 2 * blk + rr
                a('''v_lshl_add_u32 v%d, v%d, 1, %d
v_mul_u32_u24 v%d, 24, v%d
v_add_u32 v%d, v%d, v%d
v_sub_u32 v%d, 576, v%d
v_cmp_lt_u32 vcc, 288, v%d
v_cndmask_b32 v%d, v%d, v%d, vcc''' % (x, vq, 8 * blk + rr, x, x, x, x, vn, x + 1, x, x, x + 2, x, x + 1))
                if blk == 1:
                    a('v_mov_b32 v%d, 0x80000000\nv_cndmask_b32_e64 v%d, 0, v%d, vcc' % (x + 3, self.msk + rr, x + 3))
                a('''v_cmp_lt_u32 s[46:47], 12, v%d
v_add_u32 v%d, -1, v%d
v_cmp_lt_u32 s[48:49], 10, v%d
s_and_b64 s[48:49], s[48:49], vcc
s_or_b64 s[48:49], s[48:49], s[46:47]
v_mov_b32 v%d, 300
v_cndmask_b32_e64 v%d, v%d, v%d, s[48:49]
s_lshl_b32 s46, s%d, 3
s_add_u32 s46, s46, %d
v_lshlrev_b32 v%d, 5, v%d
v_add_u32 v%d, s46, v%d''' % (vn, x + 3, vn, x + 3, x + 3, x + 2, x + 2, x + 3, S_WV, self.XL, x + 2, x + 2, d, x + 2))
        a('''s_lshl_b32 s46, s%d, 9
s_add_u32 s46, s46, %d
v_and_b32 v%d, 1, v%d
v_lshlrev_b32 v%d, 4, v%d
v_lshl_add_u32 v%d, v%d, 5, v%d
v_add_u32 v%d, s46, v%d
v_mul_u32_u24 v%d, %d, v%d
v_lshl_add_u32 v%d, v%d, 2, v%d
v_lshlrev_b32 v%d, 2, v0
s_lshl_b32 s46, s%d, 12
s_add_u32 s46, s46, %d
v_add_u32 v%d, s46, v%d''' % (S_WV, self.XL, x, vq, x, x, x, vn, x, self.xlr, x, x, 2 * U_R, vq, self.uo, vn, x,
                              x, S_WV, self.XR, self.gx, x))
    def compute(self, a, stflags='sc1', gate_to=None):
        t = self.t
        a.wait_vm('a1x')
        for e in range(2):
            for i in range(5): a('ds_read_b32 v%d, v%d offset:%d' % (self.d2 + 5 * e + i, self.gx, e * 2048 + 256 * i))
        for e in range(2):
            for mb in range(2):
                r = self.af + 8 * e + 4 * mb
                a('ds_read_b64_tr_b16 v[%d:%d], v%d offset:%d' % (r, r + 1, self.xa, e * 2048 + 32 * mb))
                a('ds_read_b64_tr_b16 v[%d:%d], v%d offset:%d' % (r + 2, r + 3, self.xa, e * 2048 + 32 * mb + 192))
        for e in range(2):
            for mb in range(2):
                r = self.af + 8 * e + 4 * mb
                for c, B in enumerate((self.b1c, self.b1s)):
                    d = self.d1 + 16 * e + 8 * c + 4 * mb
                    a('%s v[%d:%d], v[%d:%d], v[%d:%d], 0' % (MF, d, d + 3, r, r + 3, B, B + 3))
        for e in range(2):
            a('v_mov_b32 v%d, 0' % (t + e))
            for i in range(5): a('v_dot2_f32_bf16 v%d, v%d, v%d, v%d' % (t + e, self.d2 + 5 * e + i, self.gw + i, t + e))
        for e in range(2):
            for mb in range(2):
                for r in range(4):
                    re = self.d1 + 16 * e + 4 * mb + r; im = re + 8
                    c, s = self.twc + 4 * mb + r, self.tws + 4 * mb + r
                    a('v_mul_f32 v%d, v%d, v%d' % (t + 2, im, s))
                    a('v_mul_f32 v%d, v%d, v%d' % (im, im, c))
                    a('v_fma_f32 v%d, v%d, v%d, v%d' % (im, re, s, im))
                    a('v_fma_f32 v%d, v%d, v%d, -v%d' % (re, re, c, t + 2))
            for c in range(2):
                for k in range(4):
                    src = self.d1 + 16 * e + 8 * c + 2 * k
                    a('v_cvt_pk_bf16_f32 v%d, v%d, v%d' % (self.b2 + 8 * e + 4 * c + k, src, src + 1))
        for e in range(2):
            for blk in range(3):
                d = self.d1 + 16 * e + 4 * blk
                br, bi = self.b2 + 8 * e, self.b2 + 8 * e + 4
                a('%s v[%d:%d], v[%d:%d], v[%d:%d], 0' % (MF, d, d + 3, self.a2r + 4 * blk, self.a2r + 4 * blk + 3, br, br + 3))
                a('%s v[%d:%d], v[%d:%d], v[%d:%d], v[%d:%d]' % (MF, d, d + 3, self.a2i + 4 * blk, self.a2i + 4 * blk + 3, bi, bi + 3, d, d + 3))
        for sh in (8, 4, 2, 1):
            for e in range(2): a('v_add_f32_dpp v%d, v%d, v%d row_ror:%d row_mask:0xf bank_mask:0xf' % (t + e, t + e, t + e, sh))
        for e in range(2):
            for k in range(4): a('v_readlane_b32 s%d, v%d, %d' % (72 + 4 * e + k, t + e, 16 * k))
        for e in range(2):
            a('v_mov_b32 v%d, s%d' % (t + e, 72 + 4 * e))
            for k in range(1, 4): a('v_add_f32 v%d, s%d, v%d' % (t + e, 72 + 4 * e + k, t + e))
            a('v_cvt_pk_bf16_f32 v%d, v%d, v%d' % (t + e, t + e, t + e))
            a('v_lshlrev_b32 v%d, 16, v%d' % (t + e, t + e))
            a('v_mul_f32 v%d, %s, v%d' % (t + e, lit(-math.log2(math.e)), t + e))
            a('v_exp_f32 v%d, v%d' % (t + e, t + e))
            a('v_add_f32 v%d, 1.0, v%d' % (t + e, t + e))
            a('v_rcp_f32 v%d, v%d' % (t + e, t + e))
            a('v_cvt_pk_bf16_f32 v%d, v%d, v%d' % (t + e, t + e, t + e))
            a('v_lshlrev_b32 v%d, 16, v%d' % (t + e, t + e))
        gate_to(a, t)
        for e in range(2):
            for blk in range(3):
                for rr in range(2):
                    src = self.d1 + 16 * e + 4 * blk + 2 * rr
                    p = self.b2 + (blk * 2 + rr)
                    a('v_cvt_pk_bf16_f32 v%d, v%d, v%d' % (p, src, src + 1))
                    if blk == 1: a('v_xor_b32 v%d, v%d, v%d' % (p, self.msk + rr, p))
                    if blk == 2: a('v_xor_b32 v%d, 0x80000000, v%d' % (p, p))
                    a('ds_write_b32 v%d, v%d offset:%d' % (self.xlw + 2 * blk + rr, p, 4 * e), tag='xl')
        a.wait_lgkm('xl')
        a('s_barrier')
        a('s_mul_i32 s46, s%d, %d\ns_lshl_b32 s47, s%d, 6\ns_add_u32 s46, s46, s47\ns_add_u32 s46, s46, %d' % (self.sw, U_W, S_WV, U_BASE))
        for i in range(5):
            r = self.af + 4 * (i % 4)
            a('ds_read_b128 v[%d:%d], v%d offset:%d' % (self.d2 + 4 * i, self.d2 + 4 * i + 3, self.xlr, i * 4 * 512))
        for i in range(5):
            d = self.d1 + 4 * i
            a('%s v[%d:%d], v[%d:%d], v[%d:%d], 0' % (MF, d, d + 3, self.r8, self.r8 + 3, self.d2 + 4 * i, self.d2 + 4 * i + 3))
        for i in range(5):
            d = self.d1 + 4 * i; p = self.b2 + 2 * i
            a('v_cvt_pk_bf16_f32 v%d, v%d, v%d\nv_cvt_pk_bf16_f32 v%d, v%d, v%d' % (p, d, d + 1, p + 1, d + 2, d + 3))
            a('s_add_u32 s47, s46, %d' % (i * 256))
            a('buffer_store_dword v%d, v%d, s[%d:%d], s47 offen %s' % (p, self.uo, S_WS, S_WS + 3, stflags), tag='ust')
            a('buffer_store_dword v%d, v%d, s[%d:%d], s47 offen offset:%d %s' % (p + 1, self.uo, S_WS, S_WS + 3, U_R, stflags), tag='ust')

class A2:
    S_WR = 64
    S_WI = 68
    def __init__(self, ubase, base, lds, sb):
        self.lds, self.sb = lds, sb
        self.LU, self.LW, self.LT = lds, lds + 12288, lds + 24576
        R = Regs(ubase)
        self.u = R.get(12, 4)
        self.wraw = R.get(16, 4)
        self.uend = R.n
        R = Regs(base)
        self.fre, self.fim = R.get(4, 4), R.get(4, 4)
        self.tc, self.ts, self.tc2, self.ts2 = R.get(4), R.get(4), R.get(4), R.get(4)
        self.rd, self.tw, self.ow, self.wt, self.sh = R.get(), R.get(), R.get(), R.get(), R.get()
        self.ord = R.get(3)
        self.af = R.get(12, 4)
        self.wf = R.get(12, 4)
        self.dr = R.get(12, 4); self.di = R.get(12, 4)
        self.bf = R.get(12, 4)
        self.t = R.get(24, 4)
        self.end = R.n
    def gather_addr(self, a, t):
        a('''s_lshl_b32 s46, s%d, 2
v_lshrrev_b32 v%d, 4, v0
v_add_u32 v%d, s46, v%d
v_and_b32 v%d, 15, v0
v_lshl_add_u32 v%d, v%d, 4, v%d
s_and_b32 s46, s%d, 7
s_lshr_b32 s47, s%d, 3
v_mul_u32_u24 v%d, %d, v%d
s_mul_i32 s48, s46, %d
s_mul_i32 s49, s47, 48
s_add_u32 s48, s48, s49
s_add_u32 s48, s48, %d
v_lshl_add_u32 v%d, v%d, 3, s46
v_mul_u32_u24 v%d, 289, v%d
s_mul_i32 s49, s47, 12
v_add_u32 v%d, s49, v%d
v_lshlrev_b32 v%d, 1, v%d''' % (S_WV, t + 2, t + 2, t + 2, t + 3, t + 2, t + 3, t + 2,
                                self.sb, self.sb, t, U_W, t + 2, U_R, U_BASE,
                                t + 1, t + 2, t + 1, t + 1, t + 1, t + 1, t + 1, t + 1))
    def loads_w(self, a, t):
        a('v_and_b32 v%d, -4, v%d' % (t + 2, t + 1))
        for k, srd in enumerate((self.S_WR, self.S_WI)):
            r = self.wraw + 8 * k
            a('buffer_load_dwordx4 v[%d:%d], v%d, s[%d:%d], 0 offen' % (r, r + 3, t + 2, srd, srd + 3), tag='a2w')
            a('buffer_load_dwordx3 v[%d:%d], v%d, s[%d:%d], 0 offen offset:16' % (r + 4, r + 6, t + 2, srd, srd + 3), tag='a2w')
        a('v_and_b32 v%d, 2, v%d\nv_lshlrev_b32 v%d, 3, v%d' % (self.wraw + 7, t + 1, self.wraw + 7, self.wraw + 7))
    def loads_u(self, a, t, ldflags='sc1'):
        for k in range(3):
            a('buffer_load_dwordx4 v[%d:%d], v%d, s[%d:%d], s48 offen offset:%d %s' % (self.u + 4 * k, self.u + 4 * k + 3, t, S_WS, S_WS + 3, 16 * k, ldflags), tag='a2u')
    def consts(self, a):
        t = self.t
        vn, vq, fn, fq = t, t + 1, t + 2, t + 3
        x = t + 4
        lane_floats(a, vn, vq, fn, fq)
        a('v_mul_f32 v%d, %s, v%d' % (x + 16, lit(1 / 16.), fn))
        a('v_mul_f32 v%d, 4.0, v%d' % (x + 17, fq))
        a('v_mul_f32 v%d, v%d, v%d' % (x, x + 16, x + 17))
        for j in range(1, 4): a('v_add_f32 v%d, v%d, v%d' % (x + j, x + j - 1, x + 16))
        for j in range(4): a('v_sin_f32 v%d, v%d' % (x + 4 + j, x + j))
        for j in range(4): a('v_cos_f32 v%d, v%d' % (x + j, x + j))
        for j in range(4):
            a('v_cvt_pk_bf16_f32 v%d, v%d, v%d' % (self.fre + j, x + j, x + 4 + j))
            a('v_cvt_pk_bf16_f32 v%d, -v%d, v%d' % (self.fim + j, x + 4 + j, x + j))
        a('v_mul_f32 v%d, %s, v%d' % (x + 16, lit(-1 / 256.), fn))
        a('v_mul_f32 v%d, v%d, v%d' % (x, x + 16, x + 17))
        for j in range(1, 4): a('v_add_f32 v%d, v%d, v%d' % (x + j, x + j - 1, x + 16))
        for j in range(4): a('v_sin_f32 v%d, v%d' % (self.ts + j, x + j))
        for j in range(4): a('v_cos_f32 v%d, v%d' % (self.tc + j, x + j))
        sc = 1.0 / (2048.0 * 576.0)
        for j in range(4):
            a('v_mul_f32 v%d, %s, v%d' % (self.ts2 + j, lit(sc), self.ts + j))
            a('v_mul_f32 v%d, %s, v%d' % (self.tc2 + j, lit(sc), self.tc + j))
        a('''v_lshlrev_b32 v%d, 6, v%d
v_lshl_add_u32 v%d, v%d, 4, v%d
s_lshl_b32 s46, s%d, 10
s_add_u32 s47, s46, %d
v_add_u32 v%d, s47, v%d
s_add_u32 s47, s46, %d
v_lshlrev_b32 v%d, 8, v%d
v_lshl_add_u32 v%d, v%d, 2, v%d
v_add_u32 v%d, s47, v%d
s_add_u32 s47, s46, %d
v_add_u32 v%d, s47, v%d''' % (x, vn, x, vq, x, S_WV, self.lds, self.rd, x, self.LT, x + 1, vq, x + 1, vn, x + 1,
                              self.tw, x + 1, self.LU, self.ow, x + 1))
        a('s_lshl_b32 s46, s%d, 8\ns_add_u32 s46, s46, %d\nv_lshlrev_b32 v%d, 2, v0\nv_add_u32 v%d, s46, v%d' % (S_WV, self.lds, self.wt, self.wt, self.wt))
        for i in range(3):
            a('''s_mul_i32 s46, s%d, 192
s_add_u32 s46, s46, %d
v_add_u32 v%d, s46, v0
v_mul_u32_u24 v%d, 21846, v%d
v_lshrrev_b32 v%d, 16, v%d
v_mul_u32_u24 v%d, 3, v%d
v_sub_u32 v%d, v%d, v%d
v_lshlrev_b32 v%d, 12, v%d
v_lshl_add_u32 v%d, v%d, 2, v%d
v_add_u32 v%d, %d, v%d''' % (S_WV, 64 * i, x, x + 1, x, x + 1, x + 1, x + 2, x + 1, x + 2, x, x + 2, x + 2, x + 2,
                             x + 2, x + 1, x + 2, self.ord + i, self.LU, x + 2))
    def stage_in(self, a):
        t = self.t
        for u in range(12): a('ds_write_b32 v%d, v%d offset:%d' % (self.wt, self.u + u, u * 1024), tag='a2s')
        sh = self.wraw + 7
        for k in range(2):
            r = self.wraw + 8 * k
            for x in range(6): a('v_alignbit_b32 v%d, v%d, v%d, v%d' % (t + 6 * k + x, r + x + 1, r + x, sh))
        a('s_mov_b32 s46, 0x05040100\ns_mov_b32 s47, 0x07060302')
        for x in range(6):
            for h in range(2):
                p = t + 12 + ((2 * x + h) % 8)
                a('v_perm_b32 v%d, v%d, v%d, s%d' % (p, t + 6 + x, t + x, 46 + h))
                a('ds_write_b32 v%d, v%d offset:%d' % (self.wt, p, 12288 + (2 * x + h) * 1024), tag='a2s')
        a.wait_lgkm('a2s')
        a('s_barrier')
    def cmul(self, a, re, im, c, s, tmp):
        a('v_mul_f32 v%d, v%d, v%d' % (tmp, im, s))
        a('v_mul_f32 v%d, v%d, v%d' % (im, im, c))
        a('v_fma_f32 v%d, v%d, v%d, v%d' % (im, re, s, im))
        a('v_fma_f32 v%d, v%d, v%d, -v%d' % (re, re, c, tmp))
    def compute(self, a):
        t = self.t
        U3 = range(3)
        off = lambda i: i * 4096
        for i in U3:
            a('ds_read_b128 v[%d:%d], v%d offset:%d' % (self.af + 4 * i, self.af + 4 * i + 3, self.rd, off(i)))
        for i in U3:
            a('ds_read_b128 v[%d:%d], v%d offset:%d' % (self.wf + 4 * i, self.wf + 4 * i + 3, self.rd, 12288 + off(i)))
        def mm(dst, A, B): a('%s v[%d:%d], v[%d:%d], v[%d:%d], 0' % (MF, dst, dst + 3, A, A + 3, B, B + 3))
        for i in U3:
            mm(self.dr + 4 * i, self.af + 4 * i, self.fre); mm(self.di + 4 * i, self.af + 4 * i, self.fim)
        for i in U3:
            for r in range(4):
                self.cmul(a, self.dr + 4 * i + r, self.di + 4 * i + r, self.tc + r, self.ts + r, t + r)
            for r in range(4): a('v_cvt_pk_bf16_f32 v%d, v%d, v%d' % (self.bf + 4 * i + r, self.dr + 4 * i + r, self.di + 4 * i + r))
        for i in U3:
            mm(self.dr + 4 * i, self.fre, self.bf + 4 * i); mm(self.di + 4 * i, self.fim, self.bf + 4 * i)
        for i in U3:
            for r in range(4):
                w = self.wf + 4 * i + r; xr, xi = self.dr + 4 * i + r, self.di + 4 * i + r
                wr, wi = t + 2 * r, t + 2 * r + 1
                a('v_lshlrev_b32 v%d, 16, v%d\nv_and_b32 v%d, 0xffff0000, v%d' % (wr, w, wi, w))
                self.cmul(a, xr, xi, wr, wi, t + 8 + r)
            for r in range(4): a('v_cvt_pk_bf16_f32 v%d, v%d, -v%d' % (self.bf + 4 * i + r, self.dr + 4 * i + r, self.di + 4 * i + r))
        for i in U3:
            mm(self.dr + 4 * i, self.fre, self.bf + 4 * i); mm(self.di + 4 * i, self.fim, self.bf + 4 * i)
        for i in U3:
            for r in range(4):
                self.cmul(a, self.dr + 4 * i + r, self.di + 4 * i + r, self.tc2 + r, self.ts2 + r, t + r)
            for r in range(4):
                a('v_cvt_pk_bf16_f32 v%d, v%d, v%d' % (self.bf + 4 * i + r, self.dr + 4 * i + r, self.di + 4 * i + r))
                a('ds_write_b32 v%d, v%d offset:%d' % (self.tw, self.bf + 4 * i + r, r * 64), tag=('a2t', i))
            a.wait_lgkm(('a2t', i))
            a('ds_read_b128 v[%d:%d], v%d offset:%d' % (self.af + 4 * i, self.af + 4 * i + 3, self.rdT(a), 0), tag=('a2r', i))
            a.wait_lgkm(('a2r', i))
        for i in U3:
            mm(self.dr + 4 * i, self.af + 4 * i, self.fre); mm(self.di + 4 * i, self.af + 4 * i, self.fim)
        for i in U3:
            for r in range(4):
                a('v_cvt_pk_bf16_f32 v%d, v%d, -v%d' % (self.bf + 4 * i + r, self.dr + 4 * i + r, self.di + 4 * i + r))
                a('ds_write_b32 v%d, v%d offset:%d' % (self.ow, self.bf + 4 * i + r, off(i) + r * 64), tag='a2o')
        a.wait_lgkm('a2o')
        a('s_barrier')
    def rdT(self, a):
        return self.sh
    def addr_T(self, a):
        a('v_add_u32 v%d, %d, v%d' % (self.sh, self.LT - self.lds, self.rd))
    def stage_out(self, a, stflags='sc1'):
        t = self.t
        a('''s_and_b32 s46, s%d, 7
s_mul_i32 s46, s46, 25
s_lshr_b32 s47, s%d, 3
s_add_u32 s46, s46, s47
s_mul_i32 s46, s46, %d
s_mul_i32 s47, s%d, 3072
s_add_u32 s46, s46, s47
s_add_u32 s46, s46, %d
v_lshlrev_b32 v%d, 4, v0''' % (self.sb, self.sb, V_BLK, S_WV, V_BASE, t + 12))
        for i in range(3):
            for e in range(4): a('ds_read_b32 v%d, v%d offset:%d' % (t + 4 * i + e, self.ord + i, e * 1024))
        for i in range(3):
            a('buffer_store_dwordx4 v[%d:%d], v%d, s[%d:%d], s46 offen offset:%d %s' % (t + 4 * i, t + 4 * i + 3, t + 12, S_WS, S_WS + 3, i * 1024, stflags), tag='vst')

class A3:
    S_OUT = 64
    PITCH = 1536
    def __init__(self, base, lds, sw, gate_lds):
        self.lds, self.sw, self.gl = lds, sw, gate_lds
        self.VL = lds
        self.YR = lds + 10240
        self.YI = self.YR + 8 * self.PITCH
        self.AO = self.YI + 8 * self.PITCH
        R = Regs(base)
        self.v = R.get(12, 4)
        self.p = R.get(48, 4)
        self.r8 = R.get(4, 4)
        self.cs, self.sn, self.ns = R.get(8, 4), R.get(8, 4), R.get(8, 4)
        self.twc, self.tws = R.get(8), R.get(8)
        self.ab = R.get(8, 4)
        self.vw, self.vr, self.yd, self.ym, self.imk, self.ya = R.get(), R.get(), R.get(5), R.get(5), R.get(5), R.get()
        self.aow = R.get(4)
        self.item = R.get(3); self.oaddr = R.get(3); self.aor = R.get(3); self.gad = R.get(3)
        self.d = R.get(32, 4)
        self.f = R.get(16, 4)
        self.t = R.get(24, 4)
        self.end = R.n
    def v_loads(self, a, ldflags='sc1'):
        t = self.t
        a('''s_lshl_b32 s46, s%d, 6
v_add_u32 v%d, s46, v0
v_and_b32 v%d, 7, v%d
v_lshrrev_b32 v%d, 3, v%d
v_mul_u32_u24 v%d, 25, v%d
v_add_u32 v%d, v%d, v%d
v_mul_u32_u24 v%d, %d, v%d
s_and_b32 s46, s%d, 15
s_lshl_b32 s46, s46, 4
s_lshr_b32 s47, s%d, 4
s_add_u32 s46, s46, s47
s_mul_i32 s46, s46, 48
s_add_u32 s46, s46, %d
v_cmp_gt_u32 vcc, 200, v%d
v_mov_b32 v%d, 0x7ffffff0
v_cndmask_b32 v%d, v%d, v%d, vcc''' % (S_WV, t, t + 1, t, t + 2, t, t + 3, t + 1, t + 3, t + 3, t + 2, t + 3, V_BLK, t + 3,
                                      self.sw, self.sw, V_BASE, t, t + 4, t + 3, t + 4, t + 3))
        for k in range(3):
            a('buffer_load_dwordx4 v[%d:%d], v%d, s[%d:%d], s46 offen offset:%d %s' % (self.v + 4 * k, self.v + 4 * k + 3, t + 3, S_WS, S_WS + 3, 16 * k, ldflags), tag='a3v')
        a('''v_mul_u32_u24 v%d, 384, v%d
v_lshl_add_u32 v%d, v%d, 2, v%d
v_add_u32 v%d, %d, v%d
v_mov_b32 v%d, %d
v_cmp_gt_u32 vcc, 200, v%d
v_cndmask_b32 v%d, v%d, v%d, vcc''' % (t + 4, t + 2, t + 4, t + 1, t + 4, t + 4, self.VL, t + 4, t + 5, self.VL + 304 * 32, t, self.vw, t + 5, t + 4))
    def item_addr(self, a):
        t = self.t
        for i in range(3):
            a('''s_lshl_b32 s46, s%d, 6
s_add_u32 s46, s46, %d
v_add_u32 v%d, s46, v0''' % (S_WV, 256 * i, t))
            a('v_mul_u32_u24 v%d, 911, v%d\nv_lshrrev_b32 v%d, 16, v%d' % (t + 1, t, t + 1, t + 1))
            a('v_mul_u32_u24 v%d, 72, v%d\nv_sub_u32 v%d, v%d, v%d' % (t + 2, t + 1, t + 2, t, t + 2))
            a('v_mul_u32_u24 v%d, 3641, v%d\nv_lshrrev_b32 v%d, 16, v%d' % (t + 3, t + 2, t + 3, t + 3))
            a('v_mul_u32_u24 v%d, 18, v%d\nv_sub_u32 v%d, v%d, v%d' % (t + 4, t + 3, t + 4, t + 2, t + 4))
            a('v_lshlrev_b32 v%d, 8, v%d\nv_add_u32 v%d, s%d, v%d' % (t + 5, t + 1, t + 5, self.sw, t + 5))
            a('v_mul_u32_u24 v%d, 288, v%d\nv_lshl_add_u32 v%d, v%d, 4, v%d' % (t + 6, t + 5, t + 6, t + 4, t + 6))
            a('s_mov_b32 s47, %d\nv_mul_lo_u32 v%d, s47, v%d\nv_add_u32 v%d, v%d, v%d' % (P_TILE, t + 7, t + 3, t + 6, t + 6, t + 7))
            a('v_mul_u32_u24 v%d, 1152, v%d\nv_lshl_add_u32 v%d, v%d, 4, v%d' % (t + 7, t + 5, t + 7, t + 2, t + 7))
            a('v_mul_u32_u24 v%d, 2304, v%d\nv_lshl_add_u32 v%d, v%d, 5, v%d\nv_add_u32 v%d, %d, v%d' % (t + 8, t + 1, t + 8, t + 2, t + 8, self.aor + i, self.AO, t + 8))
            a('v_lshlrev_b32 v%d, 2, v%d\nv_add_u32 v%d, %d, v%d' % (t + 8, t + 1, self.gad + i, self.gl, t + 8))
            if i == 2:
                a('''v_cmp_gt_u32 vcc, 576, v%d
v_mov_b32 v%d, 0x7ffffff0
v_cndmask_b32 v%d, v%d, v%d, vcc
v_cndmask_b32 v%d, v%d, v%d, vcc
v_mov_b32 v%d, %d
v_cndmask_b32 v%d, v%d, v%d, vcc
v_mov_b32 v%d, %d
v_cndmask_b32 v%d, v%d, v%d, vcc''' % (t, t + 8, t + 6, t + 8, t + 6, t + 7, t + 8, t + 7,
                                       t + 8, self.AO, self.aor + i, t + 8, self.aor + i, t + 8, self.gl, self.gad + i, t + 8, self.gad + i))
            a('v_mov_b32 v%d, v%d\nv_mov_b32 v%d, v%d' % (self.item + i, t + 6, self.oaddr + i, t + 7))
    def p_loads(self, a, ldflags='sc1'):
        for i in range(3):
            for ks in range(4):
                r = self.p + 16 * i + 4 * ks
                a('s_mov_b32 s46, %d' % (P_BASE + ks * 4 * P_TILE))
                a('buffer_load_dwordx4 v[%d:%d], v%d, s[%d:%d], s46 offen %s' % (r, r + 3, self.item + i, S_WS, S_WS + 3, ldflags), tag='a3p')
    def consts(self, a):
        t = self.t
        vn, vq, fn, fq = t, t + 1, t + 2, t + 3
        x = self.d
        lane_floats(a, vn, vq, fn, fq)
        helper = A1.__new__(A1); helper.sw = self.sw
        helper.r8_consts(a, self.r8, -1, x, vn, vq, fq)
        a('v_mul_f32 v%d, %s, v%d' % (x + 17, lit(8.0), fq))
        for nb in range(2):
            a('v_add_f32 v%d, %s, v%d' % (x + 16, lit(16.0 * nb), fn))
            a('v_mul_f32 v%d, %s, v%d' % (x + 16, lit(1 / 24.), x + 16))
            a('v_mul_f32 v%d, v%d, v%d' % (x, x + 16, x + 17))
            for i in range(1, 8): a('v_add_f32 v%d, v%d, v%d' % (x + i, x + i - 1, x + 16))
            for i in range(8): a('v_sin_f32 v%d, v%d' % (x + 8 + i, x + i))
            for i in range(8): a('v_cos_f32 v%d, v%d' % (x + i, x + i))
            a('v_cmp_eq_u32 vcc, 3, v%d' % vq)
            for k in range(4):
                a('v_cvt_pk_bf16_f32 v%d, v%d, v%d' % (self.cs + 4 * nb + k, x + 2 * k, x + 2 * k + 1))
                a('v_cvt_pk_bf16_f32 v%d, v%d, v%d' % (self.sn + 4 * nb + k, x + 8 + 2 * k, x + 9 + 2 * k))
            for k in range(4):
                a('v_cndmask_b32_e64 v%d, v%d, 0, vcc' % (self.cs + 4 * nb + k, self.cs + 4 * nb + k))
                a('v_cndmask_b32_e64 v%d, v%d, 0, vcc' % (self.sn + 4 * nb + k, self.sn + 4 * nb + k))
                a('v_xor_b32 v%d, 0x80008000, v%d' % (self.ns + 4 * nb + k, self.sn + 4 * nb + k))
        a('v_mul_f32 v%d, 4.0, v%d' % (x + 17, fq))
        for r in range(4):
            a('''v_lshl_add_u32 v%d, v%d, 2, %d
v_mov_b32 v%d, 2.0
v_cmp_eq_u32 vcc, 0, v%d
v_cndmask_b32_e64 v%d, v%d, 1.0, vcc
v_cmp_eq_u32 vcc, 12, v%d
v_cndmask_b32_e64 v%d, v%d, 1.0, vcc
v_cmp_lt_u32 vcc, 12, v%d
v_cndmask_b32_e64 v%d, v%d, 0, vcc''' % (x + 18, vq, r, x + 20 + r, x + 18, x + 20 + r, x + 20 + r, x + 18, x + 20 + r, x + 20 + r, x + 18, x + 20 + r, x + 20 + r))
        for nb in range(2):
            a('v_add_f32 v%d, %s, v%d' % (x + 16, lit(16.0 * nb), fn))
            a('v_mul_f32 v%d, %s, v%d' % (x + 16, lit(1 / 576.), x + 16))
            a('v_mul_f32 v%d, v%d, v%d' % (x, x + 16, x + 17))
            for r in range(1, 4): a('v_add_f32 v%d, v%d, v%d' % (x + r, x + r - 1, x + 16))
            for r in range(4): a('v_sin_f32 v%d, v%d' % (x + 4 + r, x + r))
            for r in range(4): a('v_cos_f32 v%d, v%d' % (x + r, x + r))
            for r in range(4):
                a('v_mul_f32 v%d, v%d, v%d' % (self.twc + 4 * nb + r, x + r, x + 20 + r))
                a('v_mul_f32 v%d, v%d, v%d' % (self.tws + 4 * nb + r, x + 4 + r, x + 20 + r))
        for mb in range(2):
            a('v_add_f32 v%d, %s, v%d' % (x + 16, lit(16.0 * mb), fn))
            a('v_mul_f32 v%d, %s, v%d' % (x + 16, lit(1 / 24.), x + 16))
            a('v_mul_f32 v%d, v%d, v%d' % (x, x + 16, x + 17))
            for i in range(1, 4): a('v_add_f32 v%d, v%d, v%d' % (x + i, x + i - 1, x + 16))
            for i in range(4): a('v_add_f32 v%d, %s, v%d' % (x + 4 + i, lit(0.25), x + i))
            cos_pairs(a, self.ab + 4 * mb, [x + i for i in range(8)])
        a('''s_lshl_b32 s46, s%d, 9
s_add_u32 s46, s46, %d
v_and_b32 v%d, 1, v%d
v_lshlrev_b32 v%d, 4, v%d
v_lshl_add_u32 v%d, v%d, 5, v%d
v_add_u32 v%d, s46, v%d''' % (S_WV, self.VL, x, vq, x, x, x, vn, x, self.vr, x))
        a('s_mov_b32 s50, 0xffff')
        for i in range(5):
            k, dm, di, mi, tmp, row = x, x + 1, x + 2, x + 3, x + 4, x + 5
            a('s_lshl_b32 s46, s%d, 4\ns_add_u32 s46, s46, %d\nv_add_u32 v%d, s46, v%d' % (S_WV, 64 * i, k, vn))
            a('v_mov_b32 v%d, 700' % dm)
            a('v_cmp_ge_u32 vcc, 288, v%d\nv_cndmask_b32 v%d, v%d, v%d, vcc' % (k, di, dm, k))
            a('v_sub_u32 v%d, 576, v%d\nv_add_u32 v%d, -1, v%d' % (mi, k, tmp, k))
            a('v_cmp_gt_u32 vcc, 287, v%d\nv_cndmask_b32 v%d, v%d, v%d, vcc' % (tmp, mi, dm, mi))
            a('v_mul_u32_u24 v%d, %d, v%d' % (row, 2 * self.PITCH, vq))
            a('v_lshl_add_u32 v%d, v%d, 1, v%d\nv_add_u32 v%d, %d, v%d' % (di, di, row, self.yd + i, self.YR, di))
            a('v_lshl_add_u32 v%d, v%d, 1, v%d\nv_add_u32 v%d, %d, v%d' % (mi, mi, row, self.ym + i, self.YR, mi))
            a('v_mov_b32 v%d, -1' % (self.imk + i))
            a('v_mov_b32 v%d, s50' % tmp)
            a('v_cmp_eq_u32 vcc, 0, v%d\nv_cndmask_b32 v%d, v%d, v%d, vcc' % (k, self.imk + i, self.imk + i, tmp))
            a('v_cmp_eq_u32 vcc, 288, v%d\nv_cndmask_b32 v%d, v%d, v%d, vcc' % (k, self.imk + i, self.imk + i, tmp))
        a('''v_min_u32 v%d, 2, v%d
v_lshrrev_b32 v%d, 2, v%d
v_lshl_add_u32 v%d, v%d, 3, v%d
v_mul_u32_u24 v%d, 48, v%d
v_and_b32 v%d, 3, v0
v_lshl_add_u32 v%d, v%d, 3, v%d
s_mul_i32 s46, s%d, %d
s_add_u32 s46, s46, %d
v_add_u32 v%d, s46, v%d''' % (x, vq, x + 1, vn, x, x, x + 1, x, x, x + 1, x, x + 1, x, S_WV, 2 * self.PITCH, self.YR, self.ya, x))
        for mb in range(2):
            for nb in range(2):
                d = self.aow + 2 * mb + nb
                a('''v_lshl_add_u32 v%d, v%d, 2, %d
v_mul_u32_u24 v%d, 24, v%d
v_add_u32 v%d, %d, v%d
v_add_u32 v%d, v%d, v%d
v_lshlrev_b32 v%d, 2, v%d
s_mul_i32 s46, s%d, 4608
s_add_u32 s46, s46, %d
v_add_u32 v%d, s46, v%d''' % (x, vq, 16 * mb, x + 1, x, x + 1, 16 * nb, x + 1, x + 1, x + 1, vn, x + 1, x + 1, S_WV, self.AO, d, x + 1))
                if mb or nb:
                    a('v_mov_b32 v%d, %d' % (x + 2, self.AO + 8 * 2304))
                    if mb: a('v_cmp_lt_u32 vcc, 1, v%d\nv_cndmask_b32 v%d, v%d, v%d, vcc' % (vq, d, d, x + 2))
                    if nb: a('v_cmp_lt_u32 vcc, 7, v%d\nv_cndmask_b32 v%d, v%d, v%d, vcc' % (vn, d, d, x + 2))
    def spectral(self, a):
        t = self.t
        for u in range(12): a('ds_write_b32 v%d, v%d offset:%d' % (self.vw, self.v + u, u * 32), tag='vl')
        a.wait_lgkm('vl')
        a('s_barrier')
        for i in range(5):
            a('ds_read_b128 v[%d:%d], v%d offset:%d' % (self.f + 4 * (i % 4), self.f + 4 * (i % 4) + 3, self.vr, i * 2048))
            d = self.d + 4 * i
            a('%s v[%d:%d], v[%d:%d], v[%d:%d], 0' % (MF, d, d + 3, self.r8, self.r8 + 3, self.f + 4 * (i % 4), self.f + 4 * (i % 4) + 3))
        yi = self.YI - self.YR
        for i in range(5):
            d = self.d + 4 * i
            for e in range(2):
                p = t + 2 * e
                a('v_cvt_pk_bf16_f32 v%d, v%d, v%d' % (p, d + 2 * e, d + 2 * e + 1))
                a('v_and_b32 v%d, v%d, v%d' % (p, self.imk + i, p))
                a('v_xor_b32 v%d, 0x80000000, v%d' % (p + 1, p))
                o = e * self.PITCH
                a('ds_write_b16 v%d, v%d offset:%d' % (self.yd + i, p, o), tag='yl')
                a('ds_write_b16_d16_hi v%d, v%d offset:%d' % (self.yd + i, p, o + yi), tag='yl')
                a('ds_write_b16 v%d, v%d offset:%d' % (self.ym + i, p, o), tag='yl')
                a('ds_write_b16_d16_hi v%d, v%d offset:%d' % (self.ym + i, p + 1, o + yi), tag='yl')
        a.wait_lgkm('yl')
        a('s_barrier')
        for e in range(2):
            o = e * self.PITCH
            fr, fi = self.f + 8 * e, self.f + 8 * e + 4
            a('ds_read_b64_tr_b16 v[%d:%d], v%d offset:%d' % (fr, fr + 1, self.ya, o))
            a('ds_read_b64_tr_b16 v[%d:%d], v%d offset:%d' % (fr + 2, fr + 3, self.ya, o + 192))
            a('ds_read_b64_tr_b16 v[%d:%d], v%d offset:%d' % (fi, fi + 1, self.ya, o + yi))
            a('ds_read_b64_tr_b16 v[%d:%d], v%d offset:%d' % (fi + 2, fi + 3, self.ya, o + yi + 192))
        def mm(dst, A, B, C=None):
            a('%s v[%d:%d], v[%d:%d], v[%d:%d], %s' % (MF, dst, dst + 3, A, A + 3, B, B + 3, '0' if C is None else 'v[%d:%d]' % (C, C + 3)))
        for e in range(2):
            fr, fi = self.f + 8 * e, self.f + 8 * e + 4
            for nb in range(2):
                sr, si = self.d + 16 * e + 8 * nb, self.d + 16 * e + 8 * nb + 4
                mm(sr, fr, self.cs + 4 * nb); mm(si, fr, self.sn + 4 * nb)
                mm(sr, fi, self.ns + 4 * nb, sr); mm(si, fi, self.cs + 4 * nb, si)
        for e in range(2):
            for nb in range(2):
                sr, si = self.d + 16 * e + 8 * nb, self.d + 16 * e + 8 * nb + 4
                for r in range(4):
                    c, s = self.twc + 4 * nb + r, self.tws + 4 * nb + r
                    a('v_mul_f32 v%d, v%d, v%d' % (t + r, si + r, s))
                    a('v_mul_f32 v%d, v%d, v%d' % (si + r, si + r, c))
                    a('v_fma_f32 v%d, v%d, v%d, v%d' % (si + r, sr + r, s, si + r))
                    a('v_fma_f32 v%d, v%d, v%d, -v%d' % (sr + r, sr + r, c, t + r))
                b = self.f + 8 * e + 4 * nb
                a('v_cvt_pk_bf16_f32 v%d, v%d, v%d\nv_cvt_pk_bf16_f32 v%d, v%d, v%d' % (b, sr, sr + 1, b + 1, sr + 2, sr + 3))
                a('v_cvt_pk_bf16_f32 v%d, v%d, v%d\nv_cvt_pk_bf16_f32 v%d, v%d, v%d' % (b + 2, si, si + 1, b + 3, si + 2, si + 3))
        for e in range(2):
            for nb in range(2):
                for mb in range(2):
                    mm(self.d + 16 * e + 8 * nb + 4 * mb, self.ab + 4 * mb, self.f + 8 * e + 4 * nb)
        for e in range(2):
            for nb in range(2):
                for mb in range(2):
                    d = self.d + 16 * e + 8 * nb + 4 * mb
                    for r in range(4):
                        a('ds_write_b32 v%d, v%d offset:%d' % (self.aow + 2 * mb + nb, d + r, e * 2304 + 96 * r), tag='ao')
        a.wait_lgkm('ao')
        a('s_barrier')
    def mix(self, a, stflags=''):
        t = self.t
        for i in range(3):
            a('ds_read_b128 v[%d:%d], v%d' % (self.d + 8 * i, self.d + 8 * i + 3, self.aor + i))
            a('ds_read_b128 v[%d:%d], v%d offset:16' % (self.d + 8 * i + 4, self.d + 8 * i + 7, self.aor + i))
            a('ds_read_b32 v%d, v%d' % (self.f + i, self.gad + i))
        for i in range(3):
            p = self.p + 16 * i
            g, og = self.f + i, self.f + 4 + i
            a('v_sub_f32 v%d, 1.0, v%d' % (og, g))
            a('v_cvt_pk_bf16_f32 v%d, v%d, v%d\nv_lshlrev_b32 v%d, 16, v%d' % (og, og, og, og, og))
            for dw in range(4):
                lo, hi = t + 2 * dw, t + 2 * dw + 1
                a('v_lshlrev_b32 v%d, 16, v%d\nv_and_b32 v%d, 0xffff0000, v%d' % (lo, p + dw, hi, p + dw))
                for ks in range(1, 4):
                    a('v_lshlrev_b32 v%d, 16, v%d\nv_and_b32 v%d, 0xffff0000, v%d' % (t + 8, p + 4 * ks + dw, t + 9, p + 4 * ks + dw))
                    a('v_add_f32 v%d, v%d, v%d\nv_add_f32 v%d, v%d, v%d' % (lo, lo, t + 8, hi, hi, t + 9))
            for x in range(8):
                a('v_mul_f32 v%d, v%d, v%d' % (t + x, t + x, og))
                a('v_fma_f32 v%d, v%d, v%d, v%d' % (t + x, self.d + 8 * i + x, g, t + x))
            for dw in range(4): a('v_cvt_pk_bf16_f32 v%d, v%d, v%d' % (t + 12 + dw, t + 2 * dw, t + 2 * dw + 1))
            a('buffer_store_dwordx4 v[%d:%d], v%d, s[%d:%d], 0 offen %s' % (t + 12, t + 15, self.oaddr + i, self.S_OUT, self.S_OUT + 3, stflags))
```

```python
import re

TRANS = ('v_exp_f32', 'v_log_f32', 'v_rcp_f32', 'v_rsq_f32', 'v_sqrt_f32', 'v_sin_f32', 'v_cos_f32')
RMW = ('v_pk_fmac_f32', 'v_fmac_f32', 'v_dot2c_f32_bf16', 'v_pk_fmac_f16', 'v_writelane_b32')

def expand(tok):
    tok = tok.strip()
    m = re.fullmatch(r'-?\|?([vas])(\d+)\|?', tok)
    if m: return [(m.group(1), int(m.group(2)))]
    m = re.fullmatch(r'-?([vas])\[(\d+):(\d+)\]', tok)
    if m: return [(m.group(1), i) for i in range(int(m.group(2)), int(m.group(3)) + 1)]
    if tok in ('vcc', 'vcc_lo', 'vcc_hi'): return [('x', 'vcc')]
    if tok in ('exec', 'exec_lo', 'exec_hi'): return [('x', 'exec')]
    if tok == 'm0': return [('x', 'm0')]
    return []

def split_ops(s):
    out, depth, cur = [], 0, ''
    for ch in s:
        if ch == '[': depth += 1
        if ch == ']': depth -= 1
        if ch == ',' and depth == 0:
            out.append(cur.strip()); cur = ''
        else: cur += ch
    if cur.strip(): out.append(cur.strip())
    return out

class Op:
    __slots__ = ('text', 'mn', 'kind', 'reads', 'writes', 'tag', 'need', 'srcC', 'srcAB', 'isdma', 'note', 'wide_store', 'dpp')
    def __init__(self, text, tag=None, need=None):
        self.text = text.strip()
        self.tag = tag
        self.need = need
        self.reads, self.writes = set(), set()
        self.srcC = set(); self.srcAB = set(); self.isdma = False; self.wide_store = False; self.dpp = False
        t = self.text
        if t.endswith(':') or t.startswith('.') or t.startswith(';') or t == '':
            self.mn, self.kind = t, 'label' if t.endswith(':') else 'dir'
            return
        parts = t.split(None, 1)
        mn = parts[0]; rest = parts[1] if len(parts) > 1 else ''
        rest = rest.split(';')[0]
        self.mn = mn
        ops = split_ops(rest)
        mods = ''
        if ops:
            lastp = ops[-1].split()
            if len(lastp) > 1 and not ops[-1].startswith('neg') :
                ops[-1] = lastp[0]; mods = ' '.join(lastp[1:])
        R = lambda i: expand(ops[i]) if i < len(ops) else []
        allr = lambda lo: [r for o in ops[lo:] for r in expand(o)]
        if mn.startswith('v_mfma'):
            self.kind = 'mfma'
            self.writes.update(R(0)); self.reads.update(R(1) + R(2) + R(3)); self.srcC.update(R(3)); self.srcAB.update(R(1) + R(2))
        elif mn.startswith('ds_read'):
            self.kind = 'ds'; self.writes.update(R(0)); self.reads.update(allr(1))
        elif mn.startswith('ds_write'):
            self.kind = 'ds'; self.reads.update(allr(0))
        elif mn.startswith('ds_bpermute') or mn.startswith('ds_swizzle') or mn.startswith('ds_permute'):
            self.kind = 'ds'; self.writes.update(R(0)); self.reads.update(allr(1))
        elif mn.startswith('buffer_load') or mn.startswith('global_load'):
            self.kind = 'vmem'
            if ' lds' in (' ' + mods) or mn.startswith('global_load_lds'):
                self.isdma = True; self.reads.update(allr(0)); self.reads.add(('x', 'm0'))
            else:
                self.writes.update(R(0)); self.reads.update(allr(1))
        elif mn.startswith('buffer_store') or mn.startswith('global_store'):
            self.kind = 'vmem'; self.reads.update(allr(0))
            self.wide_store = mn.endswith('x4') or mn.endswith('x3')
            if self.wide_store:
                self.srcC = set(R(0) if mn.startswith('buffer') else R(1))
        elif mn.startswith('buffer_atomic') or mn.startswith('global_atomic'):
            self.kind = 'vmem'; self.reads.update(allr(0))
            if 'sc0' in mods: self.writes.update(R(0))
        elif mn in ('buffer_wbl2', 'buffer_inv'):
            self.kind = 'vmem'
        elif mn == 's_getpc_b64':
            self.kind = 'salu'; self.writes.update(R(0))
        elif mn.startswith('s_load') or mn.startswith('s_memtime') or mn.startswith('s_memrealtime'):
            self.kind = 'smem'; self.writes.update(R(0)); self.reads.update(allr(1))
        elif mn == 's_waitcnt' or mn == 's_nop' or mn == 's_barrier' or mn == 's_endpgm' or mn == 's_sleep' or mn == 's_setprio':
            self.kind = 'ctl'
        elif mn.startswith('s_cbranch') or mn == 's_branch':
            self.kind = 'branch'
            if 'vcc' in mn: self.reads.add(('x', 'vcc'))
            if 'exec' in mn: self.reads.add(('x', 'exec'))
            if 'scc' in mn: self.reads.add(('x', 'scc'))
        elif mn.startswith('s_cmp'):
            self.kind = 'salu'; self.reads.update(allr(0)); self.writes.add(('x', 'scc'))
        elif mn.startswith('s_'):
            self.kind = 'salu'; self.writes.update(R(0)); self.reads.update(allr(1))
            if 'saveexec' in mn: self.reads.add(('x', 'exec')); self.writes.add(('x', 'exec'))
            if mn.startswith(('s_cselect', 's_addc', 's_subb')): self.reads.add(('x', 'scc'))
            if mn.startswith(('s_addk', 's_mulk')): self.reads.update(R(0))
            self.writes.add(('x', 'scc'))
        elif mn.startswith('v_'):
            self.kind = 'trans' if mn.replace('_e32', '').replace('_e64', '') in TRANS else 'valu'
            base = mn.replace('_e32', '').replace('_e64', '').replace('_dpp', '')
            self.dpp = 'dpp' in mn or 'row_' in mods or 'quad_perm' in mods
            if base.startswith('v_cmp'):
                self.writes.update(R(0)); self.reads.update(allr(1))
            elif base in ('v_add_co_u32', 'v_sub_co_u32'):
                self.writes.update(R(0) + R(1)); self.reads.update(allr(2))
            elif base in ('v_addc_co_u32', 'v_subb_co_u32'):
                self.writes.update(R(0) + R(1)); self.reads.update(allr(2))
            elif base.startswith('v_permlane') and 'swap' in base:
                self.writes.update(R(0) + R(1)); self.reads.update(R(0) + R(1))
            else:
                self.writes.update(R(0)); self.reads.update(allr(1))
                if base in RMW or (self.dpp and 'bound_ctrl' not in mods): self.reads.update(R(0))
                if base == 'v_cndmask_b32' and len(ops) == 3: self.reads.add(('x', 'vcc'))
        else:
            raise ValueError('unknown instruction: ' + t)

class Asm:
    def __init__(self):
        self.ops = []
    def __call__(self, text, tag=None):
        for line in text.split('\n'):
            line = line.strip()
            if not line: continue
            o = Op(line, tag=tag)
            if tag == 'pf': o.writes = set()
            self.ops.append(o)
    def add(self, op): self.ops.append(op)
    def wait_vm(self, tag):
        o = Op('; wait_vm ' + str(tag)); o.kind = 'pseudo'; o.need = ('vm', tag); self.ops.append(o)
    def wait_lgkm(self, tag):
        o = Op('; wait_lgkm ' + str(tag)); o.kind = 'pseudo'; o.need = ('lgkm', tag); self.ops.append(o)
    def sync_point(self):
        o = Op('; sync'); o.kind = 'pseudo'; o.need = ('reset',); self.ops.append(o)

    def finalize(self, check_vm_limit=True):
        out = []
        vm_seq = 0; lg_seq = 0
        vm_done = 0; lg_done = 0
        pend_v = {}; pend_l = {}
        tag_v = {}; tag_l = {}
        smem_pend = set()
        hist = []
        stats = {'nops': 0, 'waits': 0}
        def emit_real(op):
            out.append(op); hist.append(op)
        def do_wait(vm=None, lg=None):
            nonlocal vm_done, lg_done
            parts = []
            if vm is not None:
                n = vm_seq - vm - 1
                assert n >= 0
                if vm >= vm_done:
                    assert n <= 63, 'vmcnt wait out of range: %d' % n
                    parts.append('vmcnt(%d)' % n); vm_done = vm + 1
            if lg is not None:
                n = lg_seq - lg - 1
                if lg >= lg_done:
                    n = min(n, 15)
                    parts.append('lgkmcnt(%d)' % n); lg_done = max(lg_done, lg_seq - n)
            if parts:
                emit_real(Op('s_waitcnt ' + ' '.join(parts))); stats['waits'] += 1
        def states_since(pred, limit):
            d = 0
            for o in reversed(hist):
                if pred(o): return d
                if o.kind in ('label', 'dir', 'pseudo'): continue
                if o.mn == 's_nop': d += int(o.text.split()[1]) + 1
                else: d += 1
                if d >= limit: return None
            return None
        for op in self.ops:
            if op.kind in ('label', 'dir'):
                out.append(op); continue
            if op.kind == 'pseudo':
                k = op.need[0]
                if k == 'vm':
                    if op.need[1] in tag_v: do_wait(vm=tag_v[op.need[1]])
                elif k == 'lgkm':
                    if op.need[1] in tag_l: do_wait(lg=tag_l[op.need[1]])
                elif k == 'reset':
                    vm_done = vm_seq; lg_done = lg_seq; pend_v.clear(); pend_l.clear(); smem_pend.clear()
                continue
            if op.mn == 's_waitcnt':
                m = re.search(r'vmcnt\((\d+)\)', op.text)
                if m: vm_done = max(vm_done, vm_seq - int(m.group(1)))
                m = re.search(r'lgkmcnt\((\d+)\)', op.text)
                if m:
                    lg_done = max(lg_done, lg_seq - int(m.group(1)))
                    if int(m.group(1)) == 0: smem_pend.clear()
                emit_real(op); continue
            touched = op.reads | op.writes
            if smem_pend & touched and op.kind != 'smem':
                emit_real(Op('s_waitcnt lgkmcnt(0)')); smem_pend.clear(); lg_done = lg_seq; stats['waits'] += 1
            needv = [pend_v[r] for r in touched if r in pend_v and pend_v[r] >= vm_done]
            needl = [pend_l[r] for r in touched if r in pend_l and pend_l[r] >= lg_done]
            if smem_pend and needl:
                emit_real(Op('s_waitcnt lgkmcnt(0)')); smem_pend.clear(); lg_done = lg_seq; needl = []
            do_wait(max(needv) if needv else None, max(needl) if needl else None)
            need = 0
            def req(pred, n):
                nonlocal need
                d = states_since(pred, n)
                if d is not None and d < n: need = max(need, n - d)
            isv = lambda o: o.kind in ('valu', 'trans')
            vreads = {r for r in op.reads if r[0] in 'va'}
            vwrites = {r for r in op.writes if r[0] in 'va'}
            sreads = {r for r in op.reads if r[0] == 's' or r == ('x', 'vcc')}
            if op.kind == 'mfma':
                req(lambda o: isv(o) and o.writes & vreads, 2)
                req(lambda o: o.kind == 'mfma' and '16x16' in o.mn and o.writes & op.srcAB, 8)
                req(lambda o: o.kind == 'mfma' and '32x32' in o.mn and o.writes & op.srcAB, 12)
                req(lambda o: o.kind == 'mfma' and (o.writes & op.srcC) and o.writes != op.srcC, 10)
                req(lambda o: o.kind == 'mfma' and (o.writes & op.writes) and not (o.writes == op.srcC and op.srcC == op.writes), 10)
            else:
                if op.kind in ('valu', 'trans', 'vmem', 'ds'):
                    req(lambda o: o.kind == 'mfma' and '16x16' in o.mn and o.writes & (vreads | vwrites), 8)
                    req(lambda o: o.kind == 'mfma' and '32x32' in o.mn and o.writes & (vreads | vwrites), 12)
                if isv(op):
                    req(lambda o: o.kind == 'mfma' and o.srcC & vwrites, 7)
                    req(lambda o: o.kind == 'trans' and o.writes & vreads, 1)
                    req(lambda o: isv(o) and (o.writes & sreads), 2)
                    req(lambda o: o.wide_store and o.srcC & vwrites, 2)
                    if op.dpp or op.mn.startswith('v_permlane'):
                        req(lambda o: isv(o) and o.writes & vreads, 2)
                    if op.mn.startswith(('v_readfirstlane', 'v_readlane')):
                        req(lambda o: isv(o) and o.writes & vreads, 1)
                    if op.mn.startswith(('v_readlane', 'v_writelane')):
                        req(lambda o: isv(o) and o.writes & sreads, 4)
                if op.kind in ('vmem', 'ds') and vwrites:
                    req(lambda o: o.wide_store and o.srcC & vwrites, 1)
                if op.kind == 'vmem':
                    req(lambda o: isv(o) and o.writes & {r for r in op.reads if r[0] == 's'}, 5)
                    if op.isdma: req(lambda o: o.kind == 'salu' and ('x', 'm0') in o.writes, 1)
                if op.kind in ('salu', 'branch'):
                    req(lambda o: isv(o) and (o.writes & sreads), 1)
            while need > 0:
                n = min(need, 16)
                emit_real(Op('s_nop %d' % (n - 1))); need -= n; stats['nops'] += 1
            emit_real(op)
            if op.kind == 'vmem':
                for r in op.writes: pend_v[r] = vm_seq
                if op.tag is not None: tag_v[op.tag] = vm_seq
                vm_seq += 1
                if check_vm_limit: assert vm_seq - vm_done <= 63, 'more than 63 VMEM ops outstanding at: ' + op.text
            elif op.kind == 'ds':
                for r in op.writes: pend_l[r] = lg_seq
                if op.tag is not None: tag_l[op.tag] = lg_seq
                lg_seq += 1
            elif op.kind == 'smem':
                smem_pend |= op.writes
            else:
                for r in op.writes:
                    pend_v.pop(r, None); pend_l.pop(r, None)
        self.stats = stats
        return '\n'.join((o.text if o.kind in ('label', 'dir') else ' ' + o.text) for o in out)

def kernel_desc(name, vgpr=512, accum=256, sgpr=102):
    return '''.p2align 6
.amdhsa_kernel %s
  .amdhsa_next_free_vgpr %d
  .amdhsa_next_free_sgpr %d
  .amdhsa_accum_offset %d
  .amdhsa_group_segment_fixed_size 0
  .amdhsa_kernarg_size 88
  .amdhsa_user_sgpr_count 2
  .amdhsa_user_sgpr_kernarg_segment_ptr 1
  .amdhsa_system_sgpr_workgroup_id_x 1
  .amdhsa_float_denorm_mode_32 3
.end_amdhsa_kernel''' % (name, vgpr, sgpr, accum)
```

```python
S, D, F = 2048, 576, 4608
KN = 'gated_mix__spectral_gfnet__glu_gated_geglu__prompt'
KA_AX, KA_WR, KA_WI, KA_BX, KA_WG, KA_WU, KA_WD, KA_GW, KA_OUT, KA_DBG, KA_WS = [8 * i for i in range(11)]
NB_X = S * D * 2
NB_W = D * F * 2
NB_WRI = S * 289 * 2
WS_BYTES = 268435456
HF_BASE = 0
HS_BASE = 128 * 144 * 1024
P_BASE = HS_BASE + 128 * 16 * 1024
P_TILE = 2048 * 288
P_KS = (1 << 20) + 9 * 128
P_PART = 4 * P_KS + 19 * 128
U_BASE = P_BASE + 3 * P_PART
U_BLK = 256 * 128
V_BASE = U_BASE + 200 * U_BLK
V_BLK = 256 * 48
G_BASE = V_BASE + 200 * V_BLK
FLAG_BASE = G_BASE + 256 * 32
STAMP_BASE = 128 << 20
SLOT = 36864
import math
KAPPA = math.sqrt(2.0 / math.pi)
GC2 = -2.0 * KAPPA * math.log2(math.e)
GC1 = GC2 * 0.044715
import struct
def f32bits(x): return struct.unpack('<I', struct.pack('<f', x))[0]

RING = [[0, 1, 2, 3]]
def slot_of(i): return RING[0][i % 4]
```

```python
from asmlib import *
from common import *
from sched import Node, Packer

V_LANE16 = 1
V_LANE8 = 2
V_XOFF = 3
V_DP = 4
V_DS = 5
V_RA0 = 6
V_RA1 = 7
V_RS = 8
V_C2 = 9
V_T = 10
V_XD = 80
V_XR0 = 81
V_XR1 = 82
NSL = 16
AF0 = 16
GT0 = 80
HP0 = 88
ACC0 = 96
XV0 = 224

S_W = 4
S_X = 8
S_WS = 12
S_WV, S_T, S_FJ = 20, 21, 22
S_DOFFP, S_DOFFS = 23, 24
S_M0B = 25
S_HP, S_HSG = 26, 27
S_TMP, S_TMP2 = 28, 29
S_C1 = 30
S_RB = 32
S_ST = 36
S_XB = 38
S_XM = 39

def xfrag(rb, ks):
    fi = ks * 4 + rb
    if fi < 64: return 'a[%d:%d]' % (4 * fi, 4 * fi + 3)
    b = XV0 + 4 * (fi - 64)
    return 'v[%d:%d]' % (b, b + 3)

def acc(setn, bl, mx, rb):
    return ACC0 + 64 * setn + (bl * 2 + mx) * 16 + rb * 4

def roles(a):
    a('''v_lshrrev_b32 v10, 6, v0
v_and_b32 v0, 63, v0
s_nop 0
v_readfirstlane_b32 s%d, v10
s_and_b32 s%d, s2, 7
s_lshr_b32 s%d, s2, 3
s_and_b32 s%d, s%d, 3
s_lshr_b32 s%d, s%d, 2
s_lshl_b32 s%d, s%d, 2
s_and_b32 s46, s%d, 3
s_add_u32 s%d, s%d, s46
s_lshl_b32 s%d, s%d, 3
s_lshr_b32 s46, s%d, 2
s_add_u32 s%d, s%d, s46''' % (S_WV, S_TMP, S_TMP2,
        S_FJ, S_TMP,
        S_T, S_TMP,
        S_T, S_T,
        S_TMP2,
        S_T, S_T,
        S_FJ, S_FJ,
        S_TMP2,
        S_FJ, S_FJ))

def setup(a):
    a('''s_load_dwordx2 s[8:9], s[0:1], %d
s_load_dwordx4 s[40:43], s[0:1], %d
s_load_dwordx2 s[12:13], s[0:1], %d''' % (KA_AX, KA_WG, KA_WS))
    roles(a)
    a('''s_waitcnt lgkmcnt(0)
s_mov_b32 s10, %d
s_mov_b32 s11, 0x20000
s_mov_b32 s14, %d
s_mov_b32 s15, 0x20000
s_cmp_ge_u32 s%d, 2
s_cselect_b32 s4, s42, s40
s_cselect_b32 s5, s43, s41
s_mov_b32 s6, %d
s_mov_b32 s7, 0x20000''' % (NB_X, WS_BYTES, S_WV, NB_W))
    a('''v_lshlrev_b32 v%d, 4, v0
v_lshlrev_b32 v%d, 3, v0
v_and_b32 v10, 15, v0
v_lshrrev_b32 v11, 4, v0''' % (V_LANE16, V_LANE8))
    a('''s_lshl_b32 s40, s%d, 8
s_lshl_b32 s41, s%d, 6
s_add_u32 s40, s40, s41
s_mul_i32 s%d, s40, 1152
s_mul_i32 s%d, s%d, 18432
s_add_u32 s%d, s%d, %d
v_lshrrev_b32 v12, 3, v0
v_and_b32 v13, 7, v0
v_xor_b32 v13, v13, v12
v_mul_u32_u24 v12, 1152, v12
v_lshl_add_u32 v%d, v13, 4, v12
v_and_b32 v12, 7, v10
v_xor_b32 v12, v12, v11
v_lshlrev_b32 v12, 4, v12
v_lshl_add_u32 v12, v10, 7, v12
v_add_u32 v%d, s%d, v12
v_xor_b32 v%d, 64, v%d''' % (S_T, S_WV, S_XB, S_XM, S_WV, S_XM, S_XM, 2 * SLOT, V_XD, V_XR0, S_XM, V_XR1, V_XR0))
    a('''v_lshrrev_b32 v12, 2, v0
v_mul_u32_u24 v12, 9216, v12
v_lshrrev_b32 v13, 5, v0
v_lshlrev_b32 v13, 1, v13
v_and_b32 v14, 3, v0
v_xor_b32 v13, v13, v14
v_lshl_add_u32 v%d, v13, 4, v12
v_lshrrev_b32 v12, 1, v0
v_and_b32 v13, 0x13, v12
v_and_b32 v14, 4, v12
v_lshl_or_b32 v13, v14, 1, v13
v_and_b32 v14, 8, v12
v_lshrrev_b32 v14, 1, v14
v_or_b32 v13, v13, v14
v_mul_u32_u24 v13, 9216, v13
v_and_b32 v14, 1, v0
v_lshl_add_u32 v%d, v14, 4, v13''' % (V_DP, V_DS))
    a('''v_lshrrev_b32 v12, 2, v10
v_and_b32 v13, 3, v0
v_lshl_add_u32 v14, v11, 3, v12
v_lshlrev_b32 v14, 6, v14
v_lshl_add_u32 v14, v13, 3, v14
v_and_b32 v15, 1, v11
v_lshl_add_u32 v%d, v15, 5, v14
v_xor_b32 v%d, 32, v%d
v_lshrrev_b32 v14, 1, v11
v_lshlrev_b32 v14, 4, v14
v_lshl_add_u32 v14, v15, 2, v14
v_add_u32 v14, v14, v12
v_lshlrev_b32 v14, 5, v14
v_lshl_add_u32 v%d, v13, 3, v14
v_mov_b32 v%d, 0x%08x
s_mov_b32 s%d, 0x%08x''' % (V_RA0, V_RA1, V_RA0, V_RS, V_C2, f32bits(GC2), S_C1, f32bits(GC1)))
    a('''s_and_b32 s40, s%d, 1
s_and_b32 s41, s%d, 1
s_mul_i32 s42, s%d, 288
s_lshl_b32 s43, s41, 5
s_add_u32 s%d, s42, s43
s_mul_i32 s43, s40, %d
s_add_u32 s%d, s%d, s43
s_xor_b32 s43, s41, 1
s_lshl_b32 s43, s43, 8
s_add_u32 s%d, s42, s43
s_mul_i32 s43, s40, %d
s_add_u32 s%d, s%d, s43
s_mul_i32 s%d, s%d, 9216''' % (S_WV, S_FJ, S_FJ,
        S_DOFFP, 144 * 9216, S_DOFFP, S_DOFFP,
        S_DOFFS, 288 * 9216, S_DOFFS, S_DOFFS,
        S_M0B, S_WV))
    a('''s_lshl_b32 s42, s%d, 4
s_lshl_b32 s43, s%d, 2
s_add_u32 s42, s42, s43
s_lshr_b32 s43, s%d, 1
s_mul_i32 s44, s43, 9
s_mul_i32 s45, s41, 5
s_add_u32 s44, s44, s45
s_mul_i32 s45, s42, 144
s_add_u32 s44, s44, s45
s_lshl_b32 s%d, s44, 10
s_add_u32 s%d, s%d, %d
s_lshl_b32 s44, s42, 4
s_add_u32 s44, s44, s43
s_lshl_b32 s44, s44, 1
s_add_u32 s44, s44, s41
s_lshl_b32 s%d, s44, 9
s_add_u32 s%d, s%d, %d''' % (S_T, S_WV, S_FJ, S_HP, S_HP, S_HP, HF_BASE, S_HSG, S_HSG, S_HSG, HS_BASE))

def x_prefetch(a):
    a('''s_and_b32 s40, s%d, 7
s_mul_i32 s40, s40, 36864
s_mul_i32 s41, s%d, 294912
s_add_u32 s40, s40, s41
s_lshl_b32 s41, s%d, 13
s_add_u32 s41, s41, s40
s_add_u32 s40, s40, 32768
v_lshlrev_b32 v12, 7, v0
buffer_load_dword v13, v12, s[%d:%d], s41 offen
s_cmp_eq_u32 s%d, 0
s_cselect_b32 s42, 32, 0
v_cmp_gt_u32 vcc, s42, v0
s_and_saveexec_b64 s[42:43], vcc
s_cbranch_execz L_xpf_skip
buffer_load_dword v14, v12, s[%d:%d], s40 offen
L_xpf_skip:
s_mov_b64 exec, -1''' % (S_FJ, S_T, S_WV, S_X, S_X + 3, S_WV, S_X, S_X + 3))

def dma_ops(stage, j):
    slot = stage % 4
    if stage < 8:
        p, h = stage >> 1, stage & 1
        off = (288 * h + 16 * j) * 9216 + 64 * p
        base, vo = S_DOFFP, V_DP
    else:
        off = 32 * j * 9216
        base, vo = S_DOFFS, V_DS
    return ['s_add_u32 s%d, s%d, %d' % (S_TMP, base, off),
            's_add_u32 m0, s%d, %d' % (S_M0B, slot * SLOT + j * 1024),
            ('buffer_load_dwordx4 v%d, s[%d:%d], s%d offen lds' % (vo, S_W, S_W + 3, S_TMP), ('dma', stage))]

NXB = 9

def xblocks():
    return [(rb, kp) for rb in range(4) for kp in range(9)]

def x_dma(b):
    rb, kp = xblocks()[b]
    L = []
    for e in range(2):
        L += ['s_add_u32 s%d, s%d, %d' % (S_TMP, S_XB, (16 * rb + 8 * e) * 1152 + kp * 128),
              's_add_u32 m0, s%d, %d' % (S_XM, (b % NXB) * 2048 + e * 1024),
              ('buffer_load_dwordx4 v%d, s[%d:%d], s%d offen lds' % (V_XD, S_X, S_X + 3, S_TMP), ('xd', b))]
    return L

def x_read(b):
    rb, kp = xblocks()[b]
    o = (b % NXB) * 2048
    return ['ds_read_b128 %s, v%d offset:%d' % (xfrag(rb, 2 * kp), V_XR0, o),
            ('ds_read_b128 %s, v%d offset:%d' % (xfrag(rb, 2 * kp + 1), V_XR1, o), ('xr', b))]

def x_steps():
    steps = []
    steps.append([o for b in range(NXB) for o in x_dma(b)])
    for b in range(36):
        st = [('waitvm', ('xd', b))] + x_read(b)
        if b >= 1 and b - 1 + NXB < 36:
            st += [('waitlg', ('xr', b - 1))] + x_dma(b - 1 + NXB)
        steps.append(st)
    return steps

def put2(a, o):
    if isinstance(o, tuple) and o[0] == 'waitvm': a.wait_vm(o[1])
    elif isinstance(o, tuple) and o[0] == 'waitlg': a.wait_lgkm(o[1])
    else: put(a, o)

class GegluState:
    def __init__(self):
        self.tlast = {}
        self.hlast = {}

def geglu_nodes(gs, setn, bl, rb, dst, tset, war):
    g = acc(setn, bl, 0, rb); u = acc(setn, bl, 1, rb)
    t = GT0 + 4 * tset
    prev = gs.tlast.get(tset, [None] * 4)
    N = []
    fin = []
    rows = [[] for _ in range(8)]
    for r in range(4):
        n0 = Node('a', 'v_mul_f32 v%d, v%d, v%d' % (t + r, g + r, g + r), [prev[r]] if prev[r] else [])
        n1 = Node('a', 'v_fma_f32 v%d, v%d, s%d, v%d' % (t + r, t + r, S_C1, V_C2), [n0])
        n2 = Node('a', 'v_mul_f32 v%d, v%d, v%d' % (t + r, t + r, g + r), [n1])
        n3 = Node('T', 'v_exp_f32 v%d, v%d' % (t + r, t + r), [n2])
        nm = Node('a', 'v_mul_f32 v%d, v%d, v%d' % (u + r, g + r, u + r))
        n4 = Node('a', 'v_add_f32 v%d, 1.0, v%d' % (t + r, t + r), [n3])
        n5 = Node('T', 'v_rcp_f32 v%d, v%d' % (t + r, t + r), [n4])
        n6 = Node('a', 'v_mul_f32 v%d, v%d, v%d' % (u + r, u + r, t + r), [n5, nm])
        for i, n in enumerate((n0, n1, n2, n3, nm, n4, n5, n6)): rows[i].append(n)
        fin.append(n6)
    for row in rows: N += row
    c0 = Node('a', 'v_cvt_pk_bf16_f32 v%d, v%d, v%d' % (dst, u, u + 1), fin[:2] + war)
    c1 = Node('a', 'v_cvt_pk_bf16_f32 v%d, v%d, v%d' % (dst + 1, u + 2, u + 3), fin[2:] + war)
    gs.tlast[tset] = fin
    return N + [c0, c1], [c0, c1]

def geglu_pair(gs, p, stflags):
    L = []
    for rb in range(4):
        hs = rb & 1
        hp = HP0 + 4 * hs
        war = [gs.hlast[hs]] if hs in gs.hlast else []
        cv = []
        for bl in range(2):
            n, c = geglu_nodes(gs, p & 1, bl, rb, hp + 2 * bl, bl, war)
            L += n; cv += c
        if stflags == 'none': continue
        sa = Node('S', 's_add_u32 s%d, s%d, %d' % (S_ST + hs, S_HP, rb * 144 * 1024 + p * 1024), war)
        st = Node('X', ('buffer_store_dwordx4 v[%d:%d], v%d, s[%d:%d], s%d offen %s' % (hp, hp + 3, V_LANE16, S_WS, S_WS + 3, S_ST + hs, stflags), ('hst', p)), cv + [sa])
        L += [sa, st]; gs.hlast[hs] = st
    return L

def geglu_single(gs, stflags):
    L = []
    for rb in range(4):
        hs = rb & 1
        hp = HP0 + 4 * hs
        war = [gs.hlast[hs]] if hs in gs.hlast else []
        n, cv = geglu_nodes(gs, 0, 0, rb, hp, rb & 1, war)
        L += n
        if stflags == 'none': continue
        sa = Node('S', 's_add_u32 s%d, s%d, %d' % (S_ST + hs, S_HSG, rb * 16 * 1024), war)
        st = Node('X', ('buffer_store_dwordx2 v[%d:%d], v%d, s[%d:%d], s%d offen %s' % (hp, hp + 1, V_LANE8, S_WS, S_WS + 3, S_ST + hs, stflags), ('hst', 4)), cv + [sa])
        L += [sa, st]; gs.hlast[hs] = st
    return L

def put(a, item):
    if isinstance(item, tuple): a(item[0], tag=item[1])
    else: a(item)

def stage_frags(stage):
    C = []
    for ci in range(4):
        if stage < 8:
            p, h = stage >> 1, stage & 1
            bl, mx = ci >> 1, ci & 1
            ks0 = 9 * h
            C.append(dict(addr=(V_RA0, V_RA1)[bl], off=lambda k, mx=mx: mx * 18432 + k * 2048, setn=p & 1, bl=bl, mx=mx, ks0=ks0))
        else:
            mx, hh = ci & 1, ci >> 1
            C.append(dict(addr=V_RS, off=lambda k, mx=mx, hh=hh: mx * 18432 + (9 * hh + k) * 1024, setn=0, bl=0, mx=mx, ks0=9 * hh))
    return C

def read_ops(stage, ci, k, F):
    c = stage_frags(stage)[ci]
    r = AF0 + 4 * (F % NSL)
    o = c['off'](k)
    return ['ds_read_b64_tr_b16 v[%d:%d], v%d offset:%d' % (r, r + 1, c['addr'], o),
            ('ds_read_b64_tr_b16 v[%d:%d], v%d offset:%d' % (r + 2, r + 3, c['addr'], o + 256), ('fr', F))]

def addr_bump(stage_next):
    d = SLOT if stage_next % 4 else -3 * SLOT
    regs = (V_RA0, V_RA1, V_RS)
    if d > 0: return ['v_add_u32 v%d, %d, v%d' % (r, d, r) for r in regs]
    return ['v_subrev_u32 v%d, %d, v%d' % (r, -d, r) for r in regs]

LEAD = 12

def emit_phase1(a, stflags='sc1', nstage=9, vrate=1.3, extra_dma=None, stamp=None, skip=(), bp=110, w1pos=27):
    if stamp: stamp(a, 10)
    if 'xpf' not in skip: x_prefetch(a)
    xs = x_steps()
    for o in xs[0]: put2(a, o)
    for j in range(9):
        for o in dma_ops(0, j): put(a, o)
    if stamp: stamp(a, 11)
    for i, st in enumerate(xs[1:]):
        for o in st: put2(a, o)
        if w1pos == i:
            for j in range(9):
                for o in dma_ops(1, j): put(a, o)
    a.wait_lgkm(('xr', 35))
    a('s_barrier')
    for j in range(9):
        for o in dma_ops(2, j): put(a, o)
    a.wait_vm(('dma', 0))
    if stamp: stamp(a, 12)
    a('s_barrier')
    if stamp: stamp(a, 0)
    F = 0
    for k in range(9):
        for o in read_ops(0, 0, k, k): put(a, o)
    pk = Packer(a, put2)
    gs = GegluState()
    for st in range(nstage):
        C = stage_frags(st)
        nv = [[] for _ in range(144)]
        BP = bp
        for ci in range(1, 5):
            s2, c2 = (st, ci) if ci < 4 else (st + 1, 0)
            if s2 >= nstage: continue
            for k in range(9):
                Fi = (st * 4 + ci) * 9 + k
                ro = read_ops(s2, c2, k, Fi) if 'reads' not in skip else []
                base = 36 * (ci - 1)
                if ci < 4: pos = (base + 4 * k, base + 4 * k + 2)
                else:
                    span = 143 - (BP + 1)
                    pos = (BP + 1 + (span * (2 * k)) // 18, BP + 1 + (span * (2 * k + 1)) // 18)
                    if k >= 7: pos = (max(pos[0], base + 28 + (k - 7)), max(pos[1], base + 29 + (k - 7)))
                for e, o in enumerate(ro): nv[pos[e]].append(('D', o))
        for ci in range(4):
            for k in (0, 3, 6):
                Fi = (st * 4 + ci) * 9 + k + 2
                pos = 36 * ci + k - 1
                if pos >= 0: nv[pos].append(('W', ('waitlg', ('fr', Fi))))
        if st + 1 < nstage:
            nv[143].append(('W', ('waitlg', ('fr', ((st + 1) * 4) * 9 + 2))))
            for i, o in enumerate(addr_bump(st + 1)): nv[BP - 3 + i].append(('a', o))
            nv[BP] += [('W', ('waitlg', ('fr', (st * 4 + 3) * 9 + 8))), ('W', ('waitvm', ('dma', st + 1)))]
            if 'barrier' not in skip: nv[BP].append(('B', 's_barrier'))
        dl = []
        tgt = st + 3
        if 'dma' in skip: pass
        elif tgt == 8 and nstage > 8:
            for j in range(5): dl += dma_ops(8, j)
        elif tgt == 9 and nstage > 8:
            for j in range(5, 9): dl += dma_ops(8, j)
            if extra_dma is not None: dl += extra_dma(tgt)
        elif tgt < 9 and tgt < nstage:
            for j in range(9): dl += dma_ops(tgt, j)
        elif extra_dma is not None:
            dl += extra_dma(tgt)
        nd = len(dl) // 3
        for i in range(nd):
            want = 3 + (i * 136) // max(nd, 1)
            pM = next(n for n in range(want + 2, 144) if not nv[n])
            pS2 = max(n for n in range(pM) if sum(1 for c, _ in nv[n] if c != 'a') <= 1 and not any(c in 'MB' for c, _ in nv[n]))
            pS1 = max(n for n in range(pS2) if sum(1 for c, _ in nv[n] if c != 'a') <= 1 and not any(c in 'MB' for c, _ in nv[n]))
            nv[pS1].append(('S', dl[3 * i])); nv[pS2].append(('S', dl[3 * i + 1])); nv[pM].append(('M', dl[3 * i + 2]))
        for n in range(144):
            ci, rb, k = n // 36, (n % 36) // 9, n % 9
            c = C[ci]
            ks = c['ks0'] + k
            d = acc(c['setn'], c['bl'], c['mx'], rb)
            fr = AF0 + 4 * (((st * 4 + ci) * 9 + k) % NSL)
            srcc = '0' if ks == 0 else 'v[%d:%d]' % (d, d + 3)
            if ks == 0:
                for nd_ in pk.q:
                    o_ = Op(nd_.item[0] if isinstance(nd_.item, tuple) else nd_.item)
                    assert not ((o_.reads | o_.writes) & {('v', d + i) for i in range(4)}), 'GEGLU backlog overlaps new accumulation'
            a('v_mfma_f32_16x16x32_bf16 v[%d:%d], v[%d:%d], %s, %s' % (d, d + 3, fr, fr + 3, xfrag(rb, ks), srcc))
            fixed = sorted(nv[n], key=lambda f: {'D': 0, 'S': 1, 'M': 1, 'W': 2, 'B': 3, 'a': 4}[f[0]])
            pk.fill(fixed)
        if stamp: stamp(a, st + 1)
        if 'geglu' in skip: continue
        if st < 8 and (st & 1): pk.push(geglu_pair(gs, st >> 1, stflags))
        if st == 8: pk.push(geglu_single(gs, stflags))
    pk.drain()
```

```python
from asmlib import *
from common import *
from sched import Node, Packer

V_LANE16 = 1
V_LANE8 = 2
V2_DM = 4
V2_RA = 13
V2_EW = 14
V2_T = 16
AF2 = 32
NSL2 = 12
ACC2 = 96
V2_ER = 168
HB0 = 0

S_WD = 16
S_WS = 12
S_WV = 20
S2_T, S2_NT, S2_KS = 48, 49, 50
S2_DA, S2_DB = 51, 52
S2_M0 = 53
S2_H, S2_HS = 54, 55
S2_P = 56
S2_T1, S2_T2, S2_T3 = 57, 58, 59

def roles2(a):
    a('''s_and_b32 s46, s2, 7
s_lshr_b32 s47, s2, 3
s_and_b32 s%d, s46, 3
s_lshr_b32 s46, s46, 2
s_lshl_b32 s46, s46, 3
s_and_b32 s%d, s47, 7
s_add_u32 s%d, s%d, s46
s_lshr_b32 s%d, s47, 3''' % (S2_KS, S2_T, S2_T, S2_T, S2_NT))

def setup2(a):
    roles2(a)
    for j in range(9):
        a('''v_add_u32 v16, %d, v0
v_mul_u32_u24 v17, 3641, v16
v_lshrrev_b32 v17, 16, v17
v_mul_u32_u24 v18, 18, v17
v_sub_u32 v18, v16, v18
v_mul_u32_u24 v19, 1152, v17
v_lshl_add_u32 v%d, v18, 4, v19
v_mul_u32_u24 v19, 304, v17
v_lshl_add_u32 v%d, v18, 4, v19''' % (64 * j, V2_DM + j, V2_ER + j))
    a('''v_and_b32 v16, 15, v0
v_lshrrev_b32 v17, 4, v0
v_lshrrev_b32 v18, 2, v16
v_lshl_add_u32 v18, v17, 2, v18
v_mul_u32_u24 v18, 288, v18
v_and_b32 v19, 3, v0
v_lshl_add_u32 v%d, v19, 3, v18
v_mul_u32_u24 v18, 304, v16
v_lshl_add_u32 v18, v17, 3, v18
s_mul_i32 s46, s%d, 9728
v_add_u32 v%d, s46, v18''' % (V2_RA, S_WV, V2_EW))
    for j in range(9): a('v_add_u32 v%d, s46, v%d' % (V2_ER + j, V2_ER + j))
    a('''s_lshr_b32 s46, s%d, 1
s_mul_i32 s46, s46, 9
s_and_b32 s47, s%d, 1
s_mul_i32 s47, s47, 5
s_add_u32 s46, s46, s47
s_mul_i32 s47, s%d, 36
s_add_u32 s46, s46, s47
s_mul_i32 s46, s46, 36864
s_mul_i32 s%d, s%d, 288
s_add_u32 s%d, s46, s%d
s_mul_i32 s46, s%d, 9
s_add_u32 s46, s46, 4
s_add_u32 s46, s46, s47
s_mul_i32 s46, s46, 36864
s_add_u32 s%d, s46, s%d
s_mul_i32 s%d, s%d, 9216''' % (S_WV, S_WV, S2_KS, S2_T1, S2_NT, S2_DA, S2_T1, S_WV, S2_DB, S2_T1, S2_M0, S_WV))
    a('''s_lshl_b32 s46, s%d, 3
s_lshl_b32 s47, s%d, 1
s_add_u32 s46, s46, s47
s_mul_i32 s47, s46, 144
s_mul_i32 s%d, s%d, 36
s_add_u32 s47, s47, s%d
s_lshl_b32 s%d, s47, 10
s_add_u32 s%d, s%d, %d
s_lshl_b32 s47, s46, 4
s_lshl_b32 s%d, s%d, 2
s_add_u32 s47, s47, s%d
s_lshl_b32 s%d, s47, 10
s_add_u32 s%d, s%d, %d''' % (S2_T, S_WV, S2_T1, S2_KS, S2_T1, S2_H, S2_H, S2_H, HF_BASE, S2_T1, S2_KS, S2_T1, S2_HS, S2_HS, S2_HS, HS_BASE))
    a('''s_lshl_b32 s46, s%d, 2
s_add_u32 s46, s46, s%d
s_mul_i32 s46, s46, %d
s_lshl_b32 s47, s%d, 7
s_lshl_b32 s%d, s%d, 5
s_add_u32 s47, s47, s%d
s_mul_i32 s47, s47, 288
s_add_u32 s46, s46, s47
s_add_u32 s%d, s46, %d''' % (S2_KS, S2_NT, P_TILE, S2_T, S2_T1, S_WV, S2_T1, S2_P, P_BASE))

def kkl(st, i):
    if st < 8: return 18 * (st & 1) + (st >> 1) + 9 * (i >> 1) + 5 * (i & 1)
    return 9 * i + 4

def dma2_ops(st, j, slot):
    if st < 8: base, off = S2_DA, (18 * (st & 1) + (st >> 1)) * 36864
    else: base, off = S2_DB, 0
    L = ['s_add_u32 s%d, s%d, %d' % (S2_T1, base, off)] if j == 0 else []
    return L + ['s_add_u32 m0, s%d, %d' % (S2_M0, slot * SLOT + j * 1024),
                ('buffer_load_dwordx4 v%d, s[%d:%d], s%d offen lds' % (V2_DM + j, S_WD, S_WD + 3, S2_T1), ('dma2', st))]

def hfrag(st, i, rb):
    return HB0 + (st % 4) * 32 + (i * 2 + rb) * 4

def h_ops(st, i, rb, ldflags):
    r = hfrag(st, i, rb)
    if st < 8:
        return [('S', 's_add_u32 s%d, s%d, %d' % (S2_T2, S2_H, (rb * 144 + kkl(st, i)) * 1024)),
                ('L', ('buffer_load_dwordx4 a[%d:%d], v%d, s[%d:%d], s%d offen %s' % (r, r + 3, V_LANE16, S_WS, S_WS + 3, S2_T2, ldflags), ('h', st)))]
    return [('S', 's_add_u32 s%d, s%d, %d' % (S2_T2, S2_HS, (rb * 16 + i) * 1024)),
            ('L', ('buffer_load_dwordx2 a[%d:%d], v%d, s[%d:%d], s%d offen %s' % (r, r + 1, V_LANE8, S_WS, S_WS + 3, S2_T2, ldflags), ('h', st))),
            ('L', ('buffer_load_dwordx2 a[%d:%d], v%d, s[%d:%d], s%d offen offset:512 %s' % (r + 2, r + 3, V_LANE8, S_WS, S_WS + 3, S2_T2, ldflags), ('h', st)))]

def acc2(db, rb): return ACC2 + (db * 2 + rb) * 4

def read2_ops(db, i, F):
    r = AF2 + 4 * (F % NSL2)
    o = i * 9216 + db * 32
    return ['ds_read_b64_tr_b16 v[%d:%d], v%d offset:%d' % (r, r + 1, V2_RA, o),
            ('ds_read_b64_tr_b16 v[%d:%d], v%d offset:%d' % (r + 2, r + 3, V2_RA, o + 16 * 288), ('fr2', F))]

def put(a, item):
    if isinstance(item, tuple) and item[0] == 'waitvm': a.wait_vm(item[1])
    elif isinstance(item, tuple) and item[0] == 'waitlg': a.wait_lgkm(item[1])
    elif isinstance(item, tuple): a(item[0], tag=item[1])
    else: a(item)

def bump2(slot_next):
    d = SLOT if slot_next else -3 * SLOT
    return 'v_add_u32 v%d, %d, v%d' % (V2_RA, d, V2_RA) if d > 0 else 'v_subrev_u32 v%d, %d, v%d' % (V2_RA, -d, V2_RA)

def prologue2(a, slot0, ldflags, dma=True):
    if dma:
        for st in range(3):
            for j in range(9):
                for o in dma2_ops(st, j, (slot0 + st) % 4): put(a, o)
    for st in range(2):
        for i in range(4):
            for rb in range(2):
                for c, o in h_ops(st, i, rb, ldflags): put(a, o)

def emit_phase2(a, slot0=0, ldflags='sc1', stamp=None, skip=(), pre_stage=None, bp=61):
    if slot0: a('v_add_u32 v%d, %d, v%d' % (V2_RA, slot0 * SLOT, V2_RA))
    a.wait_vm(('dma2', 0))
    a('s_barrier')
    if stamp: stamp(a, 0)
    for g in range(2):
        for i in range(4):
            for o in read2_ops(g, i, g * 4 + i): put(a, o)
    for st in range(9):
        slot = (slot0 + st) % 4
        nv = [[] for _ in range(72)]
        BP = bp
        for g in range(2, 9):
            for i in range(4):
                F = (st * 9 + g) * 4 + i
                for e, o in enumerate(read2_ops(g, i, F)): nv[8 * (g - 2) + 2 * i + e].append(('D', o))
        if st < 8:
            for g in range(2):
                for i in range(4):
                    F = ((st + 1) * 9 + g) * 4 + i
                    for e, o in enumerate(read2_ops(g, i, F)): nv[BP + 1 + 4 * g + i].append(('D', o))
        for db in range(9):
            F = (st * 9 + db) * 4 + 3
            if db: nv[8 * db - 1].append(('W', ('waitlg', ('fr2', F))))
        if st < 8:
            nv[71].append(('W', ('waitlg', ('fr2', ((st + 1) * 9) * 4 + 3))))
            nv[BP - 1].append(('a', bump2((slot + 1) % 4)))
            nv[BP] += [('W', ('waitlg', ('fr2', (st * 9 + 8) * 4 + 3))), ('W', ('waitvm', ('dma2', st + 1))), ('B', 's_barrier')]
        items = []
        if st + 3 < 9 and 'dma' not in skip:
            for j in range(9):
                o = dma2_ops(st + 3, j, (slot + 3) % 4)
                items.append([('S', x) for x in o[:-1]] + [('M', o[-1])])
        hl = []
        if st + 2 < 9:
            for i in range(4):
                for rb in range(2): hl.append(h_ops(st + 2, i, rb, ldflags))
        if pre_stage: pre_stage(st, nv)
        seq = []
        for x in range(max(len(items), len(hl))):
            if x < len(hl): seq.append(hl[x])
            if x < len(items): seq.append(items[x])
        flat = [o for g in seq for o in g]
        n = 1
        for idx, o in enumerate(flat):
            n = max(n, 1 + (idx * 58) // max(len(flat), 1))
            while any(c in 'MLB' for c, _ in nv[n]) or (o[0] == 'S' and sum(1 for c, _ in nv[n] if c in 'SW') >= 1): n += 1
            nv[n].append(o); n += 1
        for n in range(72):
            db, rb, i = n // 8, (n % 8) // 4, n % 4
            d = acc2(db, rb)
            fr = AF2 + 4 * (((st * 9 + db) * 4 + i) % NSL2)
            h = hfrag(st, i, rb)
            srcc = '0' if (st == 0 and i == 0) else 'v[%d:%d]' % (d, d + 3)
            a('v_mfma_f32_16x16x32_bf16 v[%d:%d], v[%d:%d], a[%d:%d], %s' % (d, d + 3, fr, fr + 3, h, h + 3, srcc))
            for c, o in sorted(nv[n], key=lambda f: {'D': 1, 'S': 0, 'M': 2, 'L': 2, 'W': 3, 'B': 4, 'a': 5}[f[0]]): put(a, o)
        if stamp: stamp(a, st + 1)

def epilogue2(a, stflags='sc1'):
    a('s_barrier')
    for db in range(9):
        for rb in range(2):
            d = acc2(db, rb); t = V2_T + 2 * ((db * 2 + rb) % 8)
            a('v_cvt_pk_bf16_f32 v%d, v%d, v%d\nv_cvt_pk_bf16_f32 v%d, v%d, v%d' % (t, d, d + 1, t + 1, d + 2, d + 3))
            a('ds_write_b64 v%d, v[%d:%d] offset:%d' % (V2_EW, t, t + 1, rb * 16 * 304 + db * 32), tag='pw')
    a.wait_lgkm('pw')
    for j in range(9):
        a('ds_read_b128 v[%d:%d], v%d' % (AF2 + 4 * j, AF2 + 4 * j + 3, V2_ER + j))
    for j in range(9):
        a('s_add_u32 s%d, s%d, %d' % (S2_T1, S2_P, j * 1024))
        a('buffer_store_dwordx4 v[%d:%d], v%d, s[%d:%d], s%d offen %s' % (AF2 + 4 * j, AF2 + 4 * j + 3, V_LANE16, S_WS, S_WS + 3, S2_T1, stflags), tag='pst')
```

```python
COST = {'D': 8, 'M': 12, 'L': 8, 'X': 12, 'S': 4, 'W': 4, 'B': 4, 'a': 4, 'T': 8, 'w': 12}

class Node:
    def __init__(self, cls, item, deps=()):
        self.cls, self.item, self.deps, self.done = cls, item, list(deps), None

class Packer:
    def __init__(self, a, put):
        self.a, self.put = a, put
        self.q = []
        self.gap = 0
        self.aa_prev = False
    def push(self, nodes): self.q += nodes
    def ready(self, n): return all(d.done is not None and d.done < self.gap for d in n.deps)
    def fill(self, fixed, window=14, allow=True):
        a = self.a
        nonv = [f for f in fixed if f[0] not in 'aT']
        vfix = [f for f in fixed if f[0] in 'aT']
        used = sum(COST[c] for c, _ in nonv)
        extra = []
        if allow:
            for n in self.q[:window]:
                if n.cls in 'SX' and self.ready(n):
                    if n.cls == 'S' and used + 4 <= 8: extra.append(n); used += 4
                    elif n.cls == 'X' and used == 0 and not vfix: extra.append(n); used += 12
                    break
        for c, it in nonv: self.put(a, it)
        for n in extra:
            self.put(a, n.item); n.done = self.gap; self.q.remove(n)
        vbud = min(8, 12 - used) - sum(COST[c] for c, _ in vfix)
        for c, it in vfix: self.put(a, it)
        nv = len(vfix)
        if allow:
            while vbud >= 4:
                pick = None
                cands = [n for n in self.q[:window] if n.cls in 'aT' and self.ready(n)]
                if vbud >= 8 and nv == 0:
                    pick = next((n for n in cands if n.cls == 'T'), None)
                if pick is None:
                    pick = next((n for n in cands if n.cls == 'a'), None)
                if pick is None: break
                if nv == 1 and self.aa_prev and len(self.q) < 60 and False: break
                self.put(a, pick.item); pick.done = self.gap; self.q.remove(pick)
                vbud -= COST[pick.cls]; nv += 1
        self.aa_prev = nv >= 2
        self.gap += 1
    def drain(self):
        while self.q:
            prog = False
            for n in list(self.q):
                if all(d.done is not None for d in n.deps):
                    self.put(self.a, n.item); n.done = self.gap; self.q.remove(n); prog = True; self.gap += 1
                    break
            assert prog
```

```python
import sys, re; sys.path.insert(0, 'gen')
from asmlib import *; from common import *
import phase1 as P1, phase2 as P2, abranch as AB

HEADER = open('cdna_kernels/' + KN + '.s.ref').read().split('; Override launch geometry')[0]

def k_p1():
    a = Asm(); P1.setup(a); P1.emit_phase1(a); a('s_waitcnt vmcnt(0)'); return a
def k_p2():
    a = Asm()
    a('''s_load_dwordx2 s[16:17], s[0:1], %d
s_load_dwordx2 s[12:13], s[0:1], %d
v_lshrrev_b32 v10, 6, v0
v_and_b32 v0, 63, v0
s_nop 0
v_readfirstlane_b32 s20, v10
v_lshlrev_b32 v1, 4, v0
v_lshlrev_b32 v2, 3, v0
s_waitcnt lgkmcnt(0)
s_mov_b32 s18, %d
s_mov_b32 s19, 0x20000
s_mov_b32 s14, %d
s_mov_b32 s15, 0x20000''' % (KA_WD, KA_WS, NB_W, WS_BYTES))
    P2.setup2(a); P2.prologue2(a, 0, ''); P2.emit_phase2(a, ldflags=''); P2.epilogue2(a); a('s_waitcnt vmcnt(0)'); return a
def k_a1():
    a = Asm()
    a('''s_load_dwordx2 s[64:65], s[0:1], %d
s_load_dwordx2 s[68:69], s[0:1], %d
s_load_dwordx2 s[12:13], s[0:1], %d
v_lshrrev_b32 v10, 6, v0
v_and_b32 v0, 63, v0
s_nop 0
v_readfirstlane_b32 s20, v10
s_mov_b32 s21, s2
s_waitcnt lgkmcnt(0)
s_mov_b32 s66, %d
s_mov_b32 s67, 0x20000
s_mov_b32 s70, 1152
s_mov_b32 s71, 0x20000
s_mov_b32 s14, %d
s_mov_b32 s15, 0x20000''' % (KA_AX, KA_GW, KA_WS, NB_X, WS_BYTES))
    A = AB.A1(16, 96, 0, 21, None)
    A.loads(a); A.consts(a)
    def gate_to(a, t):
        a('''s_lshl_b32 s46, s21, 5
s_lshl_b32 s47, s20, 3
s_add_u32 s46, s46, s47
s_add_u32 s46, s46, %d
v_mov_b32 v%d, 0
s_mov_b64 s[48:49], exec
s_mov_b64 exec, 1
buffer_store_dwordx2 v[%d:%d], v%d, s[12:15], s46 offen
s_mov_b64 exec, s[48:49]''' % (G_BASE, t + 2, t, t + 1, t + 2))
    A.compute(a, gate_to=gate_to); a('s_waitcnt vmcnt(0)'); return a
def k_a2():
    a = Asm()
    a('''s_cmp_ge_u32 s2, 200
s_cbranch_scc1 L_done
s_load_dwordx4 s[40:43], s[0:1], %d
s_load_dwordx2 s[12:13], s[0:1], %d
v_lshrrev_b32 v10, 6, v0
v_and_b32 v0, 63, v0
s_nop 0
v_readfirstlane_b32 s20, v10
s_mov_b32 s21, s2
s_waitcnt lgkmcnt(0)
s_mov_b32 s64, s40
s_mov_b32 s65, s41
s_mov_b32 s66, %d
s_mov_b32 s67, 0x20000
s_mov_b32 s68, s42
s_mov_b32 s69, s43
s_mov_b32 s70, %d
s_mov_b32 s71, 0x20000
s_mov_b32 s14, %d
s_mov_b32 s15, 0x20000''' % (KA_WR, KA_WS, NB_WRI, NB_WRI, WS_BYTES))
    A = AB.A2(16, 96, 0, 21)
    A.gather_addr(a, 4); A.loads_u(a, 4, ''); A.loads_w(a, 4)
    A.consts(a); A.addr_T(a); A.stage_in(a); A.compute(a); A.stage_out(a); a('s_waitcnt vmcnt(0)'); return a
def k_a3():
    a = Asm()
    a('''s_load_dwordx2 s[64:65], s[0:1], %d
s_load_dwordx2 s[12:13], s[0:1], %d
v_lshrrev_b32 v10, 6, v0
v_and_b32 v0, 63, v0
s_nop 0
v_readfirstlane_b32 s20, v10
s_mov_b32 s21, s2
s_waitcnt lgkmcnt(0)
s_mov_b32 s66, %d
s_mov_b32 s67, 0x20000
s_mov_b32 s14, %d
s_mov_b32 s15, 0x20000''' % (KA_OUT, KA_WS, NB_X, WS_BYTES))
    GL = 60000
    A = AB.A3(16, 0, 21, GL)
    a('''s_lshl_b32 s46, s21, 5
s_add_u32 s46, s46, %d
v_lshlrev_b32 v4, 2, v0
buffer_load_dword v5, v4, s[12:15], s46 offen
v_add_u32 v4, %d, v4
s_waitcnt vmcnt(0)
s_mov_b64 s[48:49], exec
s_mov_b64 exec, 0xff
ds_write_b32 v4, v5
s_mov_b64 exec, s[48:49]''' % (G_BASE, GL))
    A.v_loads(a, ''); A.item_addr(a); A.p_loads(a, '')
    A.consts(a); A.spectral(a); A.mix(a); a('s_waitcnt vmcnt(0)'); return a

def build(out, order):
    ks = {'p1_kernel': (k_p1, 4 * SLOT, 512), 'a1_kernel': (k_a1, 36864, 256), 'a2_kernel': (k_a2, 36864, 256),
          'p2_kernel': (k_p2, 4 * SLOT, 512), 'fin_kernel': (k_a3, 65536, 256)}
    src = HEADER
    for name in order: src += '; @launch kernel=%s grid=(256,1,1) block=(256,1,1) lds=%d\n' % (name, ks[name][1])
    src += '.amdgcn_target "amdgcn-amd-amdhsa--gfx950"\n.text\n'
    for name in order:
        body = ks[name][0]().finalize()
        body = re.sub(r'\bL_(\w+)', lambda m: 'L_%s_%s' % (name, m.group(1)), body)
        src += '.globl %s\n.p2align 8\n.type %s,@function\n%s:\n s_cmp_ge_u32 s2, 256\n s_cbranch_scc1 L_%s_done\n%s\nL_%s_done:\n s_endpgm\n' % (name, name, name, name, body, name)
    src += '.section .rodata,"a"\n'
    for name in order:
        vg = ks[name][2]
        src += kernel_desc(name, vgpr=vg, accum=256) + '\n'
    open(out, 'w').write(src)
    print(out, len(src))
if __name__ == '__main__':
    build(sys.argv[1] if len(sys.argv) > 1 else 'multi.s', ['p1_kernel', 'a1_kernel', 'a2_kernel', 'p2_kernel', 'fin_kernel'])
```

```python
from asmlib import *
from common import *
import math

S_WV = 20
S_WS = 12
MF = 'v_mfma_f32_16x16x32_bf16'

def lit(x): return '0x%08x' % f32bits(x)

class Regs:
    def __init__(self, base): self.n = base
    def get(self, k=1, align=1):
        self.n = (self.n + align - 1) // align * align
        r = self.n; self.n += k
        return r

def lane_floats(a, vn, vq, fn, fq):
    a('v_and_b32 v%d, 15, v0\nv_lshrrev_b32 v%d, 4, v0\nv_cvt_f32_u32 v%d, v%d\nv_cvt_f32_u32 v%d, v%d' % (vn, vq, fn, vn, fq, vq))

def cos_pairs(a, dst, revs):
    for r in revs: a('v_cos_f32 v%d, v%d' % (r, r))
    for k in range(len(revs) // 2): a('v_cvt_pk_bf16_f32 v%d, v%d, v%d' % (dst + k, revs[2 * k], revs[2 * k + 1]))

class A1:
    def __init__(self, base, base2, lds, sw, gl_lds, s_ax=64, s_gw=68):
        self.S_AX, self.S_GW = s_ax, s_gw
        self.s_rl = 72
        R = Regs(base)
        self.lds, self.sw, self.gl = lds, sw, gl_lds
        self.XR, self.XL = lds, lds + 16384
        self.b1c, self.b1s = R.get(4, 4), R.get(4, 4)
        self.twc, self.tws = R.get(8), R.get(8)
        self.a2r, self.a2i = R.get(12, 4), R.get(12, 4)
        self.r8 = R.get(4, 4)
        self.xa, self.xlw, self.msk, self.xlr, self.uo = R.get(), R.get(6), R.get(2), R.get(), R.get()
        self.end1 = R.n
        R = Regs(base2)
        self.dv, self.gx, self.gw = R.get(2), R.get(), R.get(5)
        self.af = R.get(16, 4)
        self.d2 = R.get(24, 4)
        self.d1 = R.get(32, 4)
        self.b2 = R.get(16, 4)
        self.t = R.get(12, 4)
        self.end = R.n
    def loads(self, a):
        t = self.t
        a('''v_lshlrev_b32 v%d, 4, v0
v_add_u32 v%d, 1024, v%d
v_mov_b32 v%d, 0x7ffffff0
v_cmp_gt_u32 vcc, 8, v0
v_cndmask_b32 v%d, v%d, v%d, vcc
s_lshl_b32 s46, s%d, 9
s_add_u32 s46, s46, s%d
s_mul_i32 s46, s46, 1152
s_lshl_b32 s47, s%d, 12
s_add_u32 s47, s47, %d''' % (self.dv, self.dv + 1, self.dv, t, self.dv + 1, t, self.dv + 1, S_WV, self.sw, S_WV, self.XR))
        for e in range(2):
            for h in range(2):
                a('s_add_u32 s45, s46, %d\ns_add_u32 m0, s47, %d' % (e * 256 * 1152, e * 2048 + h * 1024))
                a('buffer_load_dwordx4 v%d, s[%d:%d], s45 offen lds' % (self.dv + h, self.S_AX, self.S_AX + 3), tag='a1x')
        a('v_lshlrev_b32 v%d, 2, v0' % t)
        for i in range(5):
            a('buffer_load_dword v%d, v%d, s[%d:%d], 0 offen offset:%d' % (self.gw + i, t, self.S_GW, self.S_GW + 3, 256 * i), tag='a1g')
    def consts(self, a):
        t = self.t
        vn, vq, fn, fq = t, t + 1, t + 2, t + 3
        x = self.d1
        lane_floats(a, vn, vq, fn, fq)
        a('v_mul_f32 v%d, %s, v%d' % (x + 16, lit(-1 / 24.), fn))
        a('v_mul_f32 v%d, %s, v%d' % (x + 17, lit(8.0), fq))
        a('v_mul_f32 v%d, v%d, v%d' % (x, x + 16, x + 17))
        for i in range(1, 8): a('v_add_f32 v%d, v%d, v%d' % (x + i, x + i - 1, x + 16))
        for i in range(8): a('v_sin_f32 v%d, v%d' % (x + 8 + i, x + i))
        for i in range(8): a('v_cos_f32 v%d, v%d' % (x + i, x + i))
        a('v_cmp_eq_u32 vcc, 3, v%d' % vq)
        for k in range(4):
            a('v_cvt_pk_bf16_f32 v%d, v%d, v%d' % (self.b1c + k, x + 2 * k, x + 2 * k + 1))
            a('v_cvt_pk_bf16_f32 v%d, v%d, v%d' % (self.b1s + k, x + 8 + 2 * k, x + 9 + 2 * k))
        for k in range(4):
            a('v_cndmask_b32_e64 v%d, v%d, 0, vcc' % (self.b1c + k, self.b1c + k))
            a('v_cndmask_b32_e64 v%d, v%d, 0, vcc' % (self.b1s + k, self.b1s + k))
        a('v_mul_f32 v%d, %s, v%d' % (x + 16, lit(-1 / 576.), fn))
        a('v_mul_f32 v%d, 4.0, v%d' % (x + 17, fq))
        a('v_mul_f32 v%d, v%d, v%d' % (x, x + 16, x + 17))
        for r in range(1, 4): a('v_add_f32 v%d, v%d, v%d' % (x + r, x + r - 1, x + 16))
        a('v_mul_f32 v%d, %s, v%d' % (x + 17, lit(16.0), x + 16))
        for r in range(4): a('v_add_f32 v%d, v%d, v%d' % (x + 4 + r, x + r, x + 17))
        for i in range(8): a('v_sin_f32 v%d, v%d' % (self.tws + i, x + i))
        for i in range(8): a('v_cos_f32 v%d, v%d' % (self.twc + i, x + i))
        a('''v_lshrrev_b32 v%d, 1, v%d
v_cvt_f32_u32 v%d, v%d
v_and_b32 v%d, 1, v%d
v_cvt_f32_u32 v%d, v%d''' % (x + 16, vn, x + 16, x + 16, x + 17, vn, x + 17, x + 17))
        a('v_mul_f32 v%d, %s, v%d' % (x + 17, lit(0.25), x + 17))
        a('v_mul_f32 v%d, 4.0, v%d' % (x + 18, fq))
        a('v_cmp_lt_u32 vcc, 1, v%d' % vq)
        for blk in range(3):
            a('v_add_f32 v%d, %s, v%d' % (x + 19, lit(8.0 * blk), x + 16))
            a('v_mul_f32 v%d, %s, v%d' % (x + 19, lit(1 / 24.), x + 19))
            a('v_fma_f32 v%d, v%d, v%d, v%d' % (x, x + 19, x + 18, x + 17))
            for i in range(1, 4): a('v_add_f32 v%d, v%d, v%d' % (x + i, x + i - 1, x + 19))
            a('v_mul_f32 v%d, %s, v%d' % (x + 20, lit(16.0), x + 19))
            for i in range(4): a('v_add_f32 v%d, v%d, v%d' % (x + 4 + i, x + i, x + 20))
            for i in range(8): a('v_add_f32 v%d, %s, v%d' % (x + 8 + i, lit(-0.25), x + i))
            cos_pairs(a, self.a2r + 4 * blk, [x + i for i in range(8)])
            cos_pairs(a, self.a2i + 4 * blk, [x + 8 + i for i in range(8)])
            for k in (2, 3):
                a('v_cndmask_b32_e64 v%d, v%d, 0, vcc' % (self.a2r + 4 * blk + k, self.a2r + 4 * blk + k))
                a('v_cndmask_b32_e64 v%d, v%d, 0, vcc' % (self.a2i + 4 * blk + k, self.a2i + 4 * blk + k))
        self.r8_consts(a, self.r8, +1, x, vn, vq, fq)
        self.addresses(a, vn, vq)
    def r8_consts(self, a, dst, sgn, x, vn, vq, fq):
        a('''v_lshrrev_b32 v%d, 1, v%d
v_cvt_f32_u32 v%d, v%d
v_and_b32 v%d, 1, v%d
v_cvt_f32_u32 v%d, v%d
v_cvt_f32_u32 v%d, s%d''' % (x + 16, vn, x + 16, x + 16, x + 17, vn, x + 17, x + 17, x + 18, self.sw))
        a('v_mul_f32 v%d, %s, v%d' % (x + 17, lit(0.25 * sgn), x + 17))
        if sgn > 0:
            a('v_mul_f32 v%d, %s, v%d' % (x + 18, lit(1 / 256.), x + 18))
            a('v_fma_f32 v%d, %s, v%d, v%d' % (x + 18, '4.0', fq, x + 18))
            a('v_mul_f32 v%d, %s, v%d' % (x + 19, lit(0.125), x + 16))
            a('v_fma_f32 v%d, v%d, v%d, v%d' % (x, x + 18, x + 19, x + 17))
            for jj in range(1, 4): a('v_add_f32 v%d, v%d, v%d' % (x + 2 * jj, x + 2 * jj - 2, x + 19))
        else:
            a('v_mul_f32 v%d, %s, v%d' % (x + 18, lit(1 / 256.), x + 18))
            a('v_add_f32 v%d, v%d, v%d' % (x + 18, x + 18, x + 16))
            a('v_mul_f32 v%d, %s, v%d' % (x + 19, lit(0.125), x + 18))
            a('v_mul_f32 v%d, 4.0, v%d' % (x + 18, fq))
            a('v_fma_f32 v%d, v%d, v%d, v%d' % (x, x + 18, x + 19, x + 17))
            for jj in range(1, 4): a('v_add_f32 v%d, v%d, v%d' % (x + 2 * jj, x + 2 * jj - 2, x + 19))
        for jj in range(4): a('v_add_f32 v%d, %s, v%d' % (x + 2 * jj + 1, lit(-0.25 * sgn), x + 2 * jj))
        cos_pairs(a, dst, [x + i for i in range(8)])
        a('v_cmp_lt_u32 vcc, 1, v%d' % vq)
        for k in range(4): a('v_cndmask_b32_e64 v%d, v%d, 0, vcc' % (dst + k, dst + k))
    def addresses(self, a, vn, vq):
        x = self.d1
        a('''v_lshrrev_b32 v%d, 2, v%d
v_lshl_add_u32 v%d, v%d, 3, v%d
v_mul_u32_u24 v%d, 48, v%d
v_and_b32 v%d, 3, v0
v_lshl_add_u32 v%d, v%d, 3, v%d
s_lshl_b32 s46, s%d, 12
s_add_u32 s46, s46, %d
v_add_u32 v%d, s46, v%d''' % (x, vn, x, vq, x, x, x, x + 1, x, x + 1, x, S_WV, self.XR, self.xa, x))
        a('s_lshl_b32 s46, s%d, 3\ns_add_u32 s46, s46, %d' % (S_WV, self.XL))
        for blk in range(3):
            for rr in range(2):
                d = self.xlw + 2 * blk + rr
                a('''v_lshl_add_u32 v%d, v%d, 1, %d
v_mul_u32_u24 v%d, 24, v%d
v_add_u32 v%d, v%d, v%d
v_sub_u32 v%d, 576, v%d
v_cmp_lt_u32 vcc, 288, v%d
v_cndmask_b32 v%d, v%d, v%d, vcc''' % (x, vq, 8 * blk + rr, x, x, x, x, vn, x + 1, x, x, x + 2, x, x + 1))
                if blk == 1:
                    a('v_mov_b32 v%d, 0x80000000\nv_cndmask_b32_e64 v%d, 0, v%d, vcc' % (x + 3, self.msk + rr, x + 3))
                a('''v_cmp_lt_u32 s[46:47], 12, v%d
v_add_u32 v%d, -1, v%d
v_cmp_lt_u32 s[48:49], 10, v%d
s_and_b64 s[48:49], s[48:49], vcc
s_or_b64 s[48:49], s[48:49], s[46:47]
v_mov_b32 v%d, 300
v_cndmask_b32_e64 v%d, v%d, v%d, s[48:49]
s_lshl_b32 s46, s%d, 3
s_add_u32 s46, s46, %d
v_lshlrev_b32 v%d, 5, v%d
v_add_u32 v%d, s46, v%d''' % (vn, x + 3, vn, x + 3, x + 3, x + 2, x + 2, x + 3, S_WV, self.XL, x + 2, x + 2, d, x + 2))
        a('''s_lshl_b32 s46, s%d, 9
s_add_u32 s46, s46, %d
v_and_b32 v%d, 1, v%d
v_lshlrev_b32 v%d, 4, v%d
v_lshl_add_u32 v%d, v%d, 5, v%d
v_add_u32 v%d, s46, v%d
v_mul_u32_u24 v%d, %d, v%d
v_lshl_add_u32 v%d, v%d, 2, v%d
v_lshlrev_b32 v%d, 2, v0
s_lshl_b32 s46, s%d, 12
s_add_u32 s46, s46, %d
v_add_u32 v%d, s46, v%d''' % (S_WV, self.XL, x, vq, x, x, x, vn, x, self.xlr, x, x, 2 * U_R, vq, self.uo, vn, x,
                              x, S_WV, self.XR, self.gx, x))
    def compute(self, a, stflags='sc1', gate_to=None):
        t = self.t
        a.wait_vm('a1x')
        for e in range(2):
            for i in range(5): a('ds_read_b32 v%d, v%d offset:%d' % (self.d2 + 5 * e + i, self.gx, e * 2048 + 256 * i))
        for e in range(2):
            for mb in range(2):
                r = self.af + 8 * e + 4 * mb
                a('ds_read_b64_tr_b16 v[%d:%d], v%d offset:%d' % (r, r + 1, self.xa, e * 2048 + 32 * mb))
                a('ds_read_b64_tr_b16 v[%d:%d], v%d offset:%d' % (r + 2, r + 3, self.xa, e * 2048 + 32 * mb + 192))
        for e in range(2):
            for mb in range(2):
                r = self.af + 8 * e + 4 * mb
                for c, B in enumerate((self.b1c, self.b1s)):
                    d = self.d1 + 16 * e + 8 * c + 4 * mb
                    a('%s v[%d:%d], v[%d:%d], v[%d:%d], 0' % (MF, d, d + 3, r, r + 3, B, B + 3))
        for e in range(2):
            a('v_mov_b32 v%d, 0' % (t + e))
            for i in range(5): a('v_dot2_f32_bf16 v%d, v%d, v%d, v%d' % (t + e, self.d2 + 5 * e + i, self.gw + i, t + e))
        for e in range(2):
            for mb in range(2):
                for r in range(4):
                    re = self.d1 + 16 * e + 4 * mb + r; im = re + 8
                    c, s = self.twc + 4 * mb + r, self.tws + 4 * mb + r
                    a('v_mul_f32 v%d, v%d, v%d' % (t + 2, im, s))
                    a('v_mul_f32 v%d, v%d, v%d' % (im, im, c))
                    a('v_fma_f32 v%d, v%d, v%d, v%d' % (im, re, s, im))
                    a('v_fma_f32 v%d, v%d, v%d, -v%d' % (re, re, c, t + 2))
            for c in range(2):
                for k in range(4):
                    src = self.d1 + 16 * e + 8 * c + 2 * k
                    a('v_cvt_pk_bf16_f32 v%d, v%d, v%d' % (self.b2 + 8 * e + 4 * c + k, src, src + 1))
        for e in range(2):
            for blk in range(3):
                d = self.d1 + 16 * e + 4 * blk
                br, bi = self.b2 + 8 * e, self.b2 + 8 * e + 4
                a('%s v[%d:%d], v[%d:%d], v[%d:%d], 0' % (MF, d, d + 3, self.a2r + 4 * blk, self.a2r + 4 * blk + 3, br, br + 3))
                a('%s v[%d:%d], v[%d:%d], v[%d:%d], v[%d:%d]' % (MF, d, d + 3, self.a2i + 4 * blk, self.a2i + 4 * blk + 3, bi, bi + 3, d, d + 3))
        for sh in (8, 4, 2, 1):
            for e in range(2): a('v_add_f32_dpp v%d, v%d, v%d row_ror:%d row_mask:0xf bank_mask:0xf' % (t + e, t + e, t + e, sh))
        for e in range(2):
            for k in range(4): a('v_readlane_b32 s%d, v%d, %d' % (self.s_rl + 4 * e + k, t + e, 16 * k))
        for e in range(2):
            a('v_mov_b32 v%d, s%d' % (t + e, self.s_rl + 4 * e))
            for k in range(1, 4): a('v_add_f32 v%d, s%d, v%d' % (t + e, self.s_rl + 4 * e + k, t + e))
            a('v_cvt_pk_bf16_f32 v%d, v%d, v%d' % (t + e, t + e, t + e))
            a('v_lshlrev_b32 v%d, 16, v%d' % (t + e, t + e))
            a('v_mul_f32 v%d, %s, v%d' % (t + e, lit(-math.log2(math.e)), t + e))
            a('v_exp_f32 v%d, v%d' % (t + e, t + e))
            a('v_add_f32 v%d, 1.0, v%d' % (t + e, t + e))
            a('v_rcp_f32 v%d, v%d' % (t + e, t + e))
            a('v_cvt_pk_bf16_f32 v%d, v%d, v%d' % (t + e, t + e, t + e))
            a('v_lshlrev_b32 v%d, 16, v%d' % (t + e, t + e))
        gate_to(a, t)
        for e in range(2):
            for blk in range(3):
                for rr in range(2):
                    src = self.d1 + 16 * e + 4 * blk + 2 * rr
                    p = self.b2 + (blk * 2 + rr)
                    a('v_cvt_pk_bf16_f32 v%d, v%d, v%d' % (p, src, src + 1))
                    if blk == 1: a('v_xor_b32 v%d, v%d, v%d' % (p, self.msk + rr, p))
                    if blk == 2: a('v_xor_b32 v%d, 0x80000000, v%d' % (p, p))
                    a('ds_write_b32 v%d, v%d offset:%d' % (self.xlw + 2 * blk + rr, p, 4 * e), tag='xl')
        a.wait_lgkm('xl')
        a('s_barrier')
        a('s_mul_i32 s46, s%d, %d\ns_lshl_b32 s47, s%d, 6\ns_add_u32 s46, s46, s47\ns_add_u32 s46, s46, %d' % (self.sw, U_W, S_WV, U_BASE))
        for i in range(5):
            r = self.af + 4 * (i % 4)
            a('ds_read_b128 v[%d:%d], v%d offset:%d' % (self.d2 + 4 * i, self.d2 + 4 * i + 3, self.xlr, i * 4 * 512))
        for i in range(5):
            d = self.d1 + 4 * i
            a('%s v[%d:%d], v[%d:%d], v[%d:%d], 0' % (MF, d, d + 3, self.r8, self.r8 + 3, self.d2 + 4 * i, self.d2 + 4 * i + 3))
        for i in range(5):
            d = self.d1 + 4 * i; p = self.b2 + 2 * i
            a('v_cvt_pk_bf16_f32 v%d, v%d, v%d\nv_cvt_pk_bf16_f32 v%d, v%d, v%d' % (p, d, d + 1, p + 1, d + 2, d + 3))
            a('s_add_u32 s47, s46, %d' % (i * 256))
            a('buffer_store_dword v%d, v%d, s[%d:%d], s47 offen %s' % (p, self.uo, S_WS, S_WS + 3, stflags), tag='ust')
            a('buffer_store_dword v%d, v%d, s[%d:%d], s47 offen offset:%d %s' % (p + 1, self.uo, S_WS, S_WS + 3, U_R, stflags), tag='ust')

class A2:
    S_WR = 64
    S_WI = 68
    def __init__(self, ubase, base, lds, sb, wbase=None, tbase=None):
        self.lds, self.sb = lds, sb
        self.LU, self.LW, self.LT = lds, lds + 12288, lds + 24576
        R = Regs(ubase)
        self.u = R.get(12, 4)
        self.wraw = R.get(16, 4) if wbase is None else wbase
        self.uend = R.n
        self.shr = self.wraw + 7
        R = Regs(base)
        self.fre, self.fim = R.get(4, 4), R.get(4, 4)
        self.tc, self.ts, self.tc2, self.ts2 = R.get(4), R.get(4), R.get(4), R.get(4)
        self.rd, self.tw, self.ow, self.wt, self.sh = R.get(), R.get(), R.get(), R.get(), R.get()
        self.ord = R.get(3)
        self.af = R.get(12, 4)
        self.wf = R.get(12, 4)
        self.dr = R.get(12, 4); self.di = R.get(12, 4)
        self.bf = R.get(12, 4)
        self.t = R.get(24, 4) if tbase is None else tbase
        self.end = R.n
    def gather_addr(self, a, t):
        a('''s_lshl_b32 s46, s%d, 2
v_lshrrev_b32 v%d, 4, v0
v_add_u32 v%d, s46, v%d
v_and_b32 v%d, 15, v0
v_lshl_add_u32 v%d, v%d, 4, v%d
s_and_b32 s46, s%d, 7
s_lshr_b32 s47, s%d, 3
v_mul_u32_u24 v%d, %d, v%d
s_mul_i32 s48, s46, %d
s_mul_i32 s49, s47, 48
s_add_u32 s48, s48, s49
s_add_u32 s48, s48, %d
v_lshl_add_u32 v%d, v%d, 3, s46
v_mul_u32_u24 v%d, 289, v%d
s_mul_i32 s49, s47, 12
v_add_u32 v%d, s49, v%d
v_lshlrev_b32 v%d, 1, v%d''' % (S_WV, t + 2, t + 2, t + 2, t + 3, t + 2, t + 3, t + 2,
                                self.sb, self.sb, t, U_W, t + 2, U_R, U_BASE,
                                t + 1, t + 2, t + 1, t + 1, t + 1, t + 1, t + 1, t + 1))
    def w_addr_ops(self, dst, t):
        return ('''s_lshl_b32 s44, s%d, 2
v_lshrrev_b32 v%d, 4, v0
v_add_u32 v%d, s44, v%d
v_and_b32 v%d, 15, v0
v_lshl_add_u32 v%d, v%d, 4, v%d
s_and_b32 s44, s%d, 7
s_lshr_b32 s45, s%d, 3
s_mul_i32 s45, s45, 12
v_lshl_add_u32 v%d, v%d, 3, s44
v_mul_u32_u24 v%d, 289, v%d
v_add_u32 v%d, s45, v%d
v_lshlrev_b32 v%d, 1, v%d''' % (S_WV, t, t, t, t + 1, t, t + 1, t, self.sb, self.sb, t, t, t, t, t, t, dst, t)).split('\n')
    def w_dma_ops(self, addr, raw):
        L = []
        for k, srd in enumerate((self.S_WR, self.S_WI)):
            for h in range(2):
                L.append([('S', 's_lshl_b32 s44, s%d, 10' % S_WV),
                          ('S', 's_add_u32 m0, s44, %d' % (raw + (2 * k + h) * 4096 - 16 * h)),
                          ('M', ('buffer_load_dwordx4 v%d, s[%d:%d], 0 offen offset:%d lds' % (addr, srd, srd + 3, 16 * h), 'a2w'))])
        return L
    def w_from_lds(self, a, raw, byteoff):
        t = self.t
        a('s_lshl_b32 s46, s%d, 10\ns_add_u32 s46, s46, %d\nv_lshlrev_b32 v%d, 4, v0\nv_add_u32 v%d, s46, v%d' % (S_WV, raw, t, t, t))
        for k in range(2):
            for h in range(2):
                r = self.wraw + 8 * k + 4 * h
                a('ds_read_b128 v[%d:%d], v%d offset:%d' % (r, r + 3, t, (2 * k + h) * 4096))
        a('v_and_b32 v%d, 2, v%d\nv_lshlrev_b32 v%d, 3, v%d' % (self.shr, byteoff, self.shr, self.shr))
    def u_addr_ops(self, dst, t, s_off):
        return ('''s_lshl_b32 s44, s%d, 2
v_lshrrev_b32 v%d, 4, v0
v_add_u32 v%d, s44, v%d
v_and_b32 v%d, 15, v0
v_lshl_add_u32 v%d, v%d, 4, v%d
v_mul_u32_u24 v%d, %d, v%d
s_and_b32 s44, s%d, 7
s_mul_i32 s44, s44, %d
s_lshr_b32 s45, s%d, 3
s_mul_i32 s45, s45, 48
s_add_u32 s%d, s44, s45
s_add_u32 s%d, s%d, %d''' % (S_WV, t, t, t, dst, t, dst, t, dst, U_W, t, self.sb, U_R, self.sb, s_off, s_off, s_off, U_BASE)).split('\n')
    def u_load_ops(self, addr, s_off, ldflags='sc1'):
        return [('buffer_load_dwordx4 v[%d:%d], v%d, s[%d:%d], s%d offen offset:%d %s' % (self.u + 4 * k, self.u + 4 * k + 3, addr, S_WS, S_WS + 3, s_off, 16 * k, ldflags), 'a2u') for k in range(3)]
    def loads_w(self, a, t):
        a('v_and_b32 v%d, -4, v%d' % (t + 2, t + 1))
        for k, srd in enumerate((self.S_WR, self.S_WI)):
            r = self.wraw + 8 * k
            a('buffer_load_dwordx4 v[%d:%d], v%d, s[%d:%d], 0 offen' % (r, r + 3, t + 2, srd, srd + 3), tag='a2w')
            a('buffer_load_dwordx3 v[%d:%d], v%d, s[%d:%d], 0 offen offset:16' % (r + 4, r + 6, t + 2, srd, srd + 3), tag='a2w')
        a('v_and_b32 v%d, 2, v%d\nv_lshlrev_b32 v%d, 3, v%d' % (self.wraw + 7, t + 1, self.wraw + 7, self.wraw + 7))
    def loads_u(self, a, t, ldflags='sc1'):
        for k in range(3):
            a('buffer_load_dwordx4 v[%d:%d], v%d, s[%d:%d], s48 offen offset:%d %s' % (self.u + 4 * k, self.u + 4 * k + 3, t, S_WS, S_WS + 3, 16 * k, ldflags), tag='a2u')
    def consts(self, a):
        t = self.t
        vn, vq, fn, fq = t, t + 1, t + 2, t + 3
        x = t + 4
        lane_floats(a, vn, vq, fn, fq)
        a('v_mul_f32 v%d, %s, v%d' % (x + 16, lit(1 / 16.), fn))
        a('v_mul_f32 v%d, 4.0, v%d' % (x + 17, fq))
        a('v_mul_f32 v%d, v%d, v%d' % (x, x + 16, x + 17))
        for j in range(1, 4): a('v_add_f32 v%d, v%d, v%d' % (x + j, x + j - 1, x + 16))
        for j in range(4): a('v_sin_f32 v%d, v%d' % (x + 4 + j, x + j))
        for j in range(4): a('v_cos_f32 v%d, v%d' % (x + j, x + j))
        for j in range(4):
            a('v_cvt_pk_bf16_f32 v%d, v%d, v%d' % (self.fre + j, x + j, x + 4 + j))
            a('v_cvt_pk_bf16_f32 v%d, -v%d, v%d' % (self.fim + j, x + 4 + j, x + j))
        a('v_mul_f32 v%d, %s, v%d' % (x + 16, lit(-1 / 256.), fn))
        a('v_mul_f32 v%d, v%d, v%d' % (x, x + 16, x + 17))
        for j in range(1, 4): a('v_add_f32 v%d, v%d, v%d' % (x + j, x + j - 1, x + 16))
        for j in range(4): a('v_sin_f32 v%d, v%d' % (self.ts + j, x + j))
        for j in range(4): a('v_cos_f32 v%d, v%d' % (self.tc + j, x + j))
        sc = 1.0 / (2048.0 * 576.0)
        for j in range(4):
            a('v_mul_f32 v%d, %s, v%d' % (self.ts2 + j, lit(sc), self.ts + j))
            a('v_mul_f32 v%d, %s, v%d' % (self.tc2 + j, lit(sc), self.tc + j))
        a('''v_lshlrev_b32 v%d, 6, v%d
v_lshl_add_u32 v%d, v%d, 4, v%d
s_lshl_b32 s46, s%d, 10
s_add_u32 s47, s46, %d
v_add_u32 v%d, s47, v%d
s_add_u32 s47, s46, %d
v_lshlrev_b32 v%d, 8, v%d
v_lshl_add_u32 v%d, v%d, 2, v%d
v_add_u32 v%d, s47, v%d
s_add_u32 s47, s46, %d
v_add_u32 v%d, s47, v%d''' % (x, vn, x, vq, x, S_WV, self.lds, self.rd, x, self.LT, x + 1, vq, x + 1, vn, x + 1,
                              self.tw, x + 1, self.LU, self.ow, x + 1))
        a('s_lshl_b32 s46, s%d, 8\ns_add_u32 s46, s46, %d\nv_lshlrev_b32 v%d, 2, v0\nv_add_u32 v%d, s46, v%d' % (S_WV, self.lds, self.wt, self.wt, self.wt))
        for i in range(3):
            a('''s_mul_i32 s46, s%d, 192
s_add_u32 s46, s46, %d
v_add_u32 v%d, s46, v0
v_mul_u32_u24 v%d, 21846, v%d
v_lshrrev_b32 v%d, 16, v%d
v_mul_u32_u24 v%d, 3, v%d
v_sub_u32 v%d, v%d, v%d
v_lshlrev_b32 v%d, 12, v%d
v_lshl_add_u32 v%d, v%d, 2, v%d
v_add_u32 v%d, %d, v%d''' % (S_WV, 64 * i, x, x + 1, x, x + 1, x + 1, x + 2, x + 1, x + 2, x, x + 2, x + 2, x + 2,
                             x + 2, x + 1, x + 2, self.ord + i, self.LU, x + 2))
    def stage_in(self, a):
        t = self.t
        for u in range(12): a('ds_write_b32 v%d, v%d offset:%d' % (self.wt, self.u + u, u * 1024), tag='a2s')
        sh = self.shr
        for k in range(2):
            r = self.wraw + 8 * k
            for x in range(6): a('v_alignbit_b32 v%d, v%d, v%d, v%d' % (t + 6 * k + x, r + x + 1, r + x, sh))
        a('s_mov_b32 s46, 0x05040100\ns_mov_b32 s47, 0x07060302')
        for x in range(6):
            for h in range(2):
                p = t + 12 + ((2 * x + h) % 8)
                a('v_perm_b32 v%d, v%d, v%d, s%d' % (p, t + 6 + x, t + x, 46 + h))
                a('ds_write_b32 v%d, v%d offset:%d' % (self.wt, p, 12288 + (2 * x + h) * 1024), tag='a2s')
        a.wait_lgkm('a2s')
        a('s_barrier')
    def cmul(self, a, re, im, c, s, tmp):
        a('v_mul_f32 v%d, v%d, v%d' % (tmp, im, s))
        a('v_mul_f32 v%d, v%d, v%d' % (im, im, c))
        a('v_fma_f32 v%d, v%d, v%d, v%d' % (im, re, s, im))
        a('v_fma_f32 v%d, v%d, v%d, -v%d' % (re, re, c, tmp))
    def compute(self, a, before_bar=None, after_bar=None):
        t = self.t
        U3 = range(3)
        off = lambda i: i * 4096
        for i in U3:
            a('ds_read_b128 v[%d:%d], v%d offset:%d' % (self.af + 4 * i, self.af + 4 * i + 3, self.rd, off(i)))
        for i in U3:
            a('ds_read_b128 v[%d:%d], v%d offset:%d' % (self.wf + 4 * i, self.wf + 4 * i + 3, self.rd, 12288 + off(i)))
        def mm(dst, A, B): a('%s v[%d:%d], v[%d:%d], v[%d:%d], 0' % (MF, dst, dst + 3, A, A + 3, B, B + 3))
        for i in U3:
            mm(self.dr + 4 * i, self.af + 4 * i, self.fre); mm(self.di + 4 * i, self.af + 4 * i, self.fim)
        for i in U3:
            for r in range(4):
                self.cmul(a, self.dr + 4 * i + r, self.di + 4 * i + r, self.tc + r, self.ts + r, t + r)
            for r in range(4): a('v_cvt_pk_bf16_f32 v%d, v%d, v%d' % (self.bf + 4 * i + r, self.dr + 4 * i + r, self.di + 4 * i + r))
        for i in U3:
            mm(self.dr + 4 * i, self.fre, self.bf + 4 * i); mm(self.di + 4 * i, self.fim, self.bf + 4 * i)
        for i in U3:
            for r in range(4):
                w = self.wf + 4 * i + r; xr, xi = self.dr + 4 * i + r, self.di + 4 * i + r
                wr, wi = t + 2 * r, t + 2 * r + 1
                a('v_lshlrev_b32 v%d, 16, v%d\nv_and_b32 v%d, 0xffff0000, v%d' % (wr, w, wi, w))
                self.cmul(a, xr, xi, wr, wi, t + 8 + r)
            for r in range(4): a('v_cvt_pk_bf16_f32 v%d, v%d, -v%d' % (self.bf + 4 * i + r, self.dr + 4 * i + r, self.di + 4 * i + r))
        for i in U3:
            mm(self.dr + 4 * i, self.fre, self.bf + 4 * i); mm(self.di + 4 * i, self.fim, self.bf + 4 * i)
        for i in U3:
            for r in range(4):
                self.cmul(a, self.dr + 4 * i + r, self.di + 4 * i + r, self.tc2 + r, self.ts2 + r, t + r)
            for r in range(4):
                a('v_cvt_pk_bf16_f32 v%d, v%d, v%d' % (self.bf + 4 * i + r, self.dr + 4 * i + r, self.di + 4 * i + r))
                a('ds_write_b32 v%d, v%d offset:%d' % (self.tw, self.bf + 4 * i + r, r * 64), tag=('a2t', i))
            a.wait_lgkm(('a2t', i))
            a('ds_read_b128 v[%d:%d], v%d offset:%d' % (self.af + 4 * i, self.af + 4 * i + 3, self.rdT(a), 0), tag=('a2r', i))
            a.wait_lgkm(('a2r', i))
        for i in U3:
            mm(self.dr + 4 * i, self.af + 4 * i, self.fre); mm(self.di + 4 * i, self.af + 4 * i, self.fim)
        for i in U3:
            for r in range(4):
                a('v_cvt_pk_bf16_f32 v%d, v%d, -v%d' % (self.bf + 4 * i + r, self.dr + 4 * i + r, self.di + 4 * i + r))
                a('ds_write_b32 v%d, v%d offset:%d' % (self.ow, self.bf + 4 * i + r, off(i) + r * 64), tag='a2o')
        a.wait_lgkm('a2o')
        if before_bar: before_bar(a)
        a('s_barrier')
        if after_bar: after_bar(a)
    def rdT(self, a):
        return self.sh
    def addr_T(self, a):
        a('v_add_u32 v%d, %d, v%d' % (self.sh, self.LT - self.lds, self.rd))
    def stage_out(self, a, stflags='sc1'):
        t = self.t
        a('''s_and_b32 s46, s%d, 7
s_mul_i32 s46, s46, 25
s_lshr_b32 s47, s%d, 3
s_add_u32 s46, s46, s47
s_mul_i32 s46, s46, %d
s_mul_i32 s47, s%d, 3072
s_add_u32 s46, s46, s47
s_add_u32 s46, s46, %d
v_lshlrev_b32 v%d, 4, v0''' % (self.sb, self.sb, V_BLK, S_WV, V_BASE, t + 12))
        for i in range(3):
            for e in range(4): a('ds_read_b32 v%d, v%d offset:%d' % (t + 4 * i + e, self.ord + i, e * 1024))
        for i in range(3):
            a('buffer_store_dwordx4 v[%d:%d], v%d, s[%d:%d], s46 offen offset:%d %s' % (t + 4 * i, t + 4 * i + 3, t + 12, S_WS, S_WS + 3, i * 1024, stflags), tag='vst')

class A3:
    S_OUT = 64
    PITCH = 1536
    def __init__(self, base, lds, sw, gate_lds, vreg=None):
        self.lds, self.sw, self.gl = lds, sw, gate_lds
        self.VL = lds
        self.YR = lds + 10240
        self.YI = self.YR + 8 * self.PITCH
        self.AO = self.YI + 8 * self.PITCH
        R = Regs(base)
        self.v = R.get(12, 4) if vreg is None else vreg
        self.p = R.get(48, 4)
        self.r8 = R.get(4, 4)
        self.cs, self.sn, self.ns = R.get(8, 4), R.get(8, 4), R.get(8, 4)
        self.twc, self.tws = R.get(8), R.get(8)
        self.ab = R.get(8, 4)
        self.vw, self.vr, self.yd, self.ym, self.imk, self.ya = R.get(), R.get(), R.get(5), R.get(5), R.get(5), R.get()
        self.aow = R.get(4)
        self.item = R.get(3); self.oaddr = R.get(3); self.aor = R.get(3); self.gad = R.get(3)
        self.d = R.get(32, 4)
        self.f = R.get(16, 4)
        self.t = R.get(24, 4)
        self.end = R.n
    def v_addr_ops(self, t):
        return ('''s_lshl_b32 s44, s%d, 6
v_add_u32 v%d, s44, v0
v_and_b32 v%d, 7, v%d
v_lshrrev_b32 v%d, 3, v%d
v_mul_u32_u24 v%d, 25, v%d
v_add_u32 v%d, v%d, v%d
v_mul_u32_u24 v%d, %d, v%d
s_and_b32 s45, s%d, 15
s_lshl_b32 s45, s45, 4
s_lshr_b32 s44, s%d, 4
s_add_u32 s45, s45, s44
s_mul_i32 s45, s45, 48
s_add_u32 s45, s45, %d
v_cmp_gt_u32 vcc, 200, v%d
v_mov_b32 v%d, 0x7ffffff0
v_cndmask_b32 v%d, v%d, v%d, vcc''' % (S_WV, t, t + 1, t, t + 2, t, t + 3, t + 1, t + 3, t + 3, t + 2, t + 3, V_BLK, t + 3,
                                      self.sw, self.sw, V_BASE, t, t + 4, t + 3, t + 4, t + 3)).split('\n')
    def v_load_ops(self, t, ldflags='sc1'):
        return [('buffer_load_dwordx4 v[%d:%d], v%d, s[%d:%d], s45 offen offset:%d %s' % (self.v + 4 * k, self.v + 4 * k + 3, t + 3, S_WS, S_WS + 3, 16 * k, ldflags), 'a3v') for k in range(3)]
    def v_lds_addr(self, a):
        t = self.t
        a('''s_lshl_b32 s46, s%d, 6
v_add_u32 v%d, s46, v0
v_and_b32 v%d, 7, v%d
v_lshrrev_b32 v%d, 3, v%d
v_mul_u32_u24 v%d, 384, v%d
v_lshl_add_u32 v%d, v%d, 2, v%d
v_add_u32 v%d, %d, v%d
v_mov_b32 v%d, %d
v_cmp_gt_u32 vcc, 200, v%d
v_cndmask_b32 v%d, v%d, v%d, vcc''' % (S_WV, t, t + 1, t, t + 2, t, t + 4, t + 2, t + 4, t + 1, t + 4, t + 4, self.VL, t + 4, t + 5, self.VL + 304 * 32, t, self.vw, t + 5, t + 4))
    def v_loads(self, a, ldflags='sc1'):
        t = self.t
        for o in self.v_addr_ops(t): a(o)
        for o, tg in self.v_load_ops(t, ldflags): a(o, tag=tg)
        self.v_lds_addr(a)
    def item_addr(self, a):
        t = self.t
        for i in range(3):
            a('''s_lshl_b32 s46, s%d, 6
s_add_u32 s46, s46, %d
v_add_u32 v%d, s46, v0''' % (S_WV, 256 * i, t))
            a('v_mul_u32_u24 v%d, 911, v%d\nv_lshrrev_b32 v%d, 16, v%d' % (t + 1, t, t + 1, t + 1))
            a('v_mul_u32_u24 v%d, 72, v%d\nv_sub_u32 v%d, v%d, v%d' % (t + 2, t + 1, t + 2, t, t + 2))
            a('v_mul_u32_u24 v%d, 3641, v%d\nv_lshrrev_b32 v%d, 16, v%d' % (t + 3, t + 2, t + 3, t + 3))
            a('v_mul_u32_u24 v%d, 18, v%d\nv_sub_u32 v%d, v%d, v%d' % (t + 4, t + 3, t + 4, t + 2, t + 4))
            a('v_lshlrev_b32 v%d, 8, v%d\nv_add_u32 v%d, s%d, v%d' % (t + 5, t + 1, t + 5, self.sw, t + 5))
            a('s_lshr_b32 s47, s%d, 4\ns_lshl_b32 s47, s47, 7\ns_and_b32 s48, s%d, 15\ns_add_u32 s47, s47, s48' % (self.sw, self.sw))
            a('v_lshlrev_b32 v%d, 4, v%d\nv_add_u32 v%d, s47, v%d' % (t + 6, t + 1, t + 6, t + 6))
            a('v_mul_u32_u24 v%d, 288, v%d\nv_lshl_add_u32 v%d, v%d, 4, v%d' % (t + 6, t + 6, t + 6, t + 4, t + 6))
            a('s_mov_b32 s47, %d\nv_mul_lo_u32 v%d, s47, v%d\nv_add_u32 v%d, v%d, v%d' % (P_TILE, t + 7, t + 3, t + 6, t + 6, t + 7))
            a('v_mul_u32_u24 v%d, 1152, v%d\nv_lshl_add_u32 v%d, v%d, 4, v%d' % (t + 7, t + 5, t + 7, t + 2, t + 7))
            a('v_mul_u32_u24 v%d, 2304, v%d\nv_lshl_add_u32 v%d, v%d, 5, v%d\nv_add_u32 v%d, %d, v%d' % (t + 8, t + 1, t + 8, t + 2, t + 8, self.aor + i, self.AO, t + 8))
            a('v_lshlrev_b32 v%d, 2, v%d\nv_add_u32 v%d, %d, v%d' % (t + 8, t + 1, self.gad + i, self.gl, t + 8))
            if i == 2:
                a('''v_cmp_gt_u32 vcc, 576, v%d
v_mov_b32 v%d, 0x7ffffff0
v_cndmask_b32 v%d, v%d, v%d, vcc
v_cndmask_b32 v%d, v%d, v%d, vcc
v_mov_b32 v%d, %d
v_cndmask_b32 v%d, v%d, v%d, vcc
v_mov_b32 v%d, %d
v_cndmask_b32 v%d, v%d, v%d, vcc''' % (t, t + 8, t + 6, t + 8, t + 6, t + 7, t + 8, t + 7,
                                       t + 8, self.AO, self.aor + i, t + 8, self.aor + i, t + 8, self.gl, self.gad + i, t + 8, self.gad + i))
            a('v_mov_b32 v%d, v%d\nv_mov_b32 v%d, v%d' % (self.item + i, t + 6, self.oaddr + i, t + 7))
    def p_loads(self, a, ldflags='sc1'):
        for i in range(3):
            for ks in range(4):
                r = self.p + 16 * i + 4 * ks
                a('s_mov_b32 s46, %d' % (P_BASE + ks * 4 * P_TILE))
                a('buffer_load_dwordx4 v[%d:%d], v%d, s[%d:%d], s46 offen %s' % (r, r + 3, self.item + i, S_WS, S_WS + 3, ldflags), tag='a3p')
    def consts(self, a):
        t = self.t
        vn, vq, fn, fq = t, t + 1, t + 2, t + 3
        x = self.d
        lane_floats(a, vn, vq, fn, fq)
        helper = A1.__new__(A1); helper.sw = self.sw
        helper.r8_consts(a, self.r8, -1, x, vn, vq, fq)
        a('v_mul_f32 v%d, %s, v%d' % (x + 17, lit(8.0), fq))
        for nb in range(2):
            a('v_add_f32 v%d, %s, v%d' % (x + 16, lit(16.0 * nb), fn))
            a('v_mul_f32 v%d, %s, v%d' % (x + 16, lit(1 / 24.), x + 16))
            a('v_mul_f32 v%d, v%d, v%d' % (x, x + 16, x + 17))
            for i in range(1, 8): a('v_add_f32 v%d, v%d, v%d' % (x + i, x + i - 1, x + 16))
            for i in range(8): a('v_sin_f32 v%d, v%d' % (x + 8 + i, x + i))
            for i in range(8): a('v_cos_f32 v%d, v%d' % (x + i, x + i))
            a('v_cmp_eq_u32 vcc, 3, v%d' % vq)
            for k in range(4):
                a('v_cvt_pk_bf16_f32 v%d, v%d, v%d' % (self.cs + 4 * nb + k, x + 2 * k, x + 2 * k + 1))
                a('v_cvt_pk_bf16_f32 v%d, v%d, v%d' % (self.sn + 4 * nb + k, x + 8 + 2 * k, x + 9 + 2 * k))
            for k in range(4):
                a('v_cndmask_b32_e64 v%d, v%d, 0, vcc' % (self.cs + 4 * nb + k, self.cs + 4 * nb + k))
                a('v_cndmask_b32_e64 v%d, v%d, 0, vcc' % (self.sn + 4 * nb + k, self.sn + 4 * nb + k))
                a('v_xor_b32 v%d, 0x80008000, v%d' % (self.ns + 4 * nb + k, self.sn + 4 * nb + k))
        a('v_mul_f32 v%d, 4.0, v%d' % (x + 17, fq))
        for r in range(4):
            a('''v_lshl_add_u32 v%d, v%d, 2, %d
v_mov_b32 v%d, 2.0
v_cmp_eq_u32 vcc, 0, v%d
v_cndmask_b32_e64 v%d, v%d, 1.0, vcc
v_cmp_eq_u32 vcc, 12, v%d
v_cndmask_b32_e64 v%d, v%d, 1.0, vcc
v_cmp_lt_u32 vcc, 12, v%d
v_cndmask_b32_e64 v%d, v%d, 0, vcc''' % (x + 18, vq, r, x + 20 + r, x + 18, x + 20 + r, x + 20 + r, x + 18, x + 20 + r, x + 20 + r, x + 18, x + 20 + r, x + 20 + r))
        for nb in range(2):
            a('v_add_f32 v%d, %s, v%d' % (x + 16, lit(16.0 * nb), fn))
            a('v_mul_f32 v%d, %s, v%d' % (x + 16, lit(1 / 576.), x + 16))
            a('v_mul_f32 v%d, v%d, v%d' % (x, x + 16, x + 17))
            for r in range(1, 4): a('v_add_f32 v%d, v%d, v%d' % (x + r, x + r - 1, x + 16))
            for r in range(4): a('v_sin_f32 v%d, v%d' % (x + 4 + r, x + r))
            for r in range(4): a('v_cos_f32 v%d, v%d' % (x + r, x + r))
            for r in range(4):
                a('v_mul_f32 v%d, v%d, v%d' % (self.twc + 4 * nb + r, x + r, x + 20 + r))
                a('v_mul_f32 v%d, v%d, v%d' % (self.tws + 4 * nb + r, x + 4 + r, x + 20 + r))
        for mb in range(2):
            a('v_add_f32 v%d, %s, v%d' % (x + 16, lit(16.0 * mb), fn))
            a('v_mul_f32 v%d, %s, v%d' % (x + 16, lit(1 / 24.), x + 16))
            a('v_mul_f32 v%d, v%d, v%d' % (x, x + 16, x + 17))
            for i in range(1, 4): a('v_add_f32 v%d, v%d, v%d' % (x + i, x + i - 1, x + 16))
            for i in range(4): a('v_add_f32 v%d, %s, v%d' % (x + 4 + i, lit(0.25), x + i))
            cos_pairs(a, self.ab + 4 * mb, [x + i for i in range(8)])
        a('''s_lshl_b32 s46, s%d, 9
s_add_u32 s46, s46, %d
v_and_b32 v%d, 1, v%d
v_lshlrev_b32 v%d, 4, v%d
v_lshl_add_u32 v%d, v%d, 5, v%d
v_add_u32 v%d, s46, v%d''' % (S_WV, self.VL, x, vq, x, x, x, vn, x, self.vr, x))
        a('s_mov_b32 s50, 0xffff')
        for i in range(5):
            k, dm, di, mi, tmp, row = x, x + 1, x + 2, x + 3, x + 4, x + 5
            a('s_lshl_b32 s46, s%d, 4\ns_add_u32 s46, s46, %d\nv_add_u32 v%d, s46, v%d' % (S_WV, 64 * i, k, vn))
            a('v_mov_b32 v%d, 700' % dm)
            a('v_cmp_ge_u32 vcc, 288, v%d\nv_cndmask_b32 v%d, v%d, v%d, vcc' % (k, di, dm, k))
            a('v_sub_u32 v%d, 576, v%d\nv_add_u32 v%d, -1, v%d' % (mi, k, tmp, k))
            a('v_cmp_gt_u32 vcc, 287, v%d\nv_cndmask_b32 v%d, v%d, v%d, vcc' % (tmp, mi, dm, mi))
            a('v_mul_u32_u24 v%d, %d, v%d' % (row, 2 * self.PITCH, vq))
            a('v_lshl_add_u32 v%d, v%d, 1, v%d\nv_add_u32 v%d, %d, v%d' % (di, di, row, self.yd + i, self.YR, di))
            a('v_lshl_add_u32 v%d, v%d, 1, v%d\nv_add_u32 v%d, %d, v%d' % (mi, mi, row, self.ym + i, self.YR, mi))
            a('v_mov_b32 v%d, -1' % (self.imk + i))
            a('v_mov_b32 v%d, s50' % tmp)
            a('v_cmp_eq_u32 vcc, 0, v%d\nv_cndmask_b32 v%d, v%d, v%d, vcc' % (k, self.imk + i, self.imk + i, tmp))
            a('v_cmp_eq_u32 vcc, 288, v%d\nv_cndmask_b32 v%d, v%d, v%d, vcc' % (k, self.imk + i, self.imk + i, tmp))
        a('''v_min_u32 v%d, 2, v%d
v_lshrrev_b32 v%d, 2, v%d
v_lshl_add_u32 v%d, v%d, 3, v%d
v_mul_u32_u24 v%d, 48, v%d
v_and_b32 v%d, 3, v0
v_lshl_add_u32 v%d, v%d, 3, v%d
s_mul_i32 s46, s%d, %d
s_add_u32 s46, s46, %d
v_add_u32 v%d, s46, v%d''' % (x, vq, x + 1, vn, x, x, x + 1, x, x, x + 1, x, x + 1, x, S_WV, 2 * self.PITCH, self.YR, self.ya, x))
        for mb in range(2):
            for nb in range(2):
                d = self.aow + 2 * mb + nb
                a('''v_lshl_add_u32 v%d, v%d, 2, %d
v_mul_u32_u24 v%d, 24, v%d
v_add_u32 v%d, %d, v%d
v_add_u32 v%d, v%d, v%d
v_lshlrev_b32 v%d, 2, v%d
s_mul_i32 s46, s%d, 4608
s_add_u32 s46, s46, %d
v_add_u32 v%d, s46, v%d''' % (x, vq, 16 * mb, x + 1, x, x + 1, 16 * nb, x + 1, x + 1, x + 1, vn, x + 1, x + 1, S_WV, self.AO, d, x + 1))
                if mb or nb:
                    a('v_mov_b32 v%d, %d' % (x + 2, self.AO + 8 * 2304))
                    if mb: a('v_cmp_lt_u32 vcc, 1, v%d\nv_cndmask_b32 v%d, v%d, v%d, vcc' % (vq, d, d, x + 2))
                    if nb: a('v_cmp_lt_u32 vcc, 7, v%d\nv_cndmask_b32 v%d, v%d, v%d, vcc' % (vn, d, d, x + 2))
    def spectral(self, a):
        t = self.t
        for u in range(12): a('ds_write_b32 v%d, v%d offset:%d' % (self.vw, self.v + u, u * 32), tag='vl')
        a.wait_lgkm('vl')
        a('s_barrier')
        for i in range(5):
            a('ds_read_b128 v[%d:%d], v%d offset:%d' % (self.f + 4 * (i % 4), self.f + 4 * (i % 4) + 3, self.vr, i * 2048))
            d = self.d + 4 * i
            a('%s v[%d:%d], v[%d:%d], v[%d:%d], 0' % (MF, d, d + 3, self.r8, self.r8 + 3, self.f + 4 * (i % 4), self.f + 4 * (i % 4) + 3))
        yi = self.YI - self.YR
        for i in range(5):
            d = self.d + 4 * i
            for e in range(2):
                p = t + 2 * e
                a('v_cvt_pk_bf16_f32 v%d, v%d, v%d' % (p, d + 2 * e, d + 2 * e + 1))
                a('v_and_b32 v%d, v%d, v%d' % (p, self.imk + i, p))
                a('v_xor_b32 v%d, 0x80000000, v%d' % (p + 1, p))
                o = e * self.PITCH
                a('ds_write_b16 v%d, v%d offset:%d' % (self.yd + i, p, o), tag='yl')
                a('ds_write_b16_d16_hi v%d, v%d offset:%d' % (self.yd + i, p, o + yi), tag='yl')
                a('ds_write_b16 v%d, v%d offset:%d' % (self.ym + i, p, o), tag='yl')
                a('ds_write_b16_d16_hi v%d, v%d offset:%d' % (self.ym + i, p + 1, o + yi), tag='yl')
        a.wait_lgkm('yl')
        a('s_barrier')
        for e in range(2):
            o = e * self.PITCH
            fr, fi = self.f + 8 * e, self.f + 8 * e + 4
            a('ds_read_b64_tr_b16 v[%d:%d], v%d offset:%d' % (fr, fr + 1, self.ya, o))
            a('ds_read_b64_tr_b16 v[%d:%d], v%d offset:%d' % (fr + 2, fr + 3, self.ya, o + 192))
            a('ds_read_b64_tr_b16 v[%d:%d], v%d offset:%d' % (fi, fi + 1, self.ya, o + yi))
            a('ds_read_b64_tr_b16 v[%d:%d], v%d offset:%d' % (fi + 2, fi + 3, self.ya, o + yi + 192))
        def mm(dst, A, B, C=None):
            a('%s v[%d:%d], v[%d:%d], v[%d:%d], %s' % (MF, dst, dst + 3, A, A + 3, B, B + 3, '0' if C is None else 'v[%d:%d]' % (C, C + 3)))
        for e in range(2):
            fr, fi = self.f + 8 * e, self.f + 8 * e + 4
            for nb in range(2):
                sr, si = self.d + 16 * e + 8 * nb, self.d + 16 * e + 8 * nb + 4
                mm(sr, fr, self.cs + 4 * nb); mm(si, fr, self.sn + 4 * nb)
                mm(sr, fi, self.ns + 4 * nb, sr); mm(si, fi, self.cs + 4 * nb, si)
        for e in range(2):
            for nb in range(2):
                sr, si = self.d + 16 * e + 8 * nb, self.d + 16 * e + 8 * nb + 4
                for r in range(4):
                    c, s = self.twc + 4 * nb + r, self.tws + 4 * nb + r
                    a('v_mul_f32 v%d, v%d, v%d' % (t + r, si + r, s))
                    a('v_mul_f32 v%d, v%d, v%d' % (si + r, si + r, c))
                    a('v_fma_f32 v%d, v%d, v%d, v%d' % (si + r, sr + r, s, si + r))
                    a('v_fma_f32 v%d, v%d, v%d, -v%d' % (sr + r, sr + r, c, t + r))
                b = self.f + 8 * e + 4 * nb
                a('v_cvt_pk_bf16_f32 v%d, v%d, v%d\nv_cvt_pk_bf16_f32 v%d, v%d, v%d' % (b, sr, sr + 1, b + 1, sr + 2, sr + 3))
                a('v_cvt_pk_bf16_f32 v%d, v%d, v%d\nv_cvt_pk_bf16_f32 v%d, v%d, v%d' % (b + 2, si, si + 1, b + 3, si + 2, si + 3))
        for e in range(2):
            for nb in range(2):
                for mb in range(2):
                    mm(self.d + 16 * e + 8 * nb + 4 * mb, self.ab + 4 * mb, self.f + 8 * e + 4 * nb)
        for e in range(2):
            for nb in range(2):
                for mb in range(2):
                    d = self.d + 16 * e + 8 * nb + 4 * mb
                    for r in range(4):
                        a('ds_write_b32 v%d, v%d offset:%d' % (self.aow + 2 * mb + nb, d + r, e * 2304 + 96 * r), tag='ao')
        a.wait_lgkm('ao')
        a('s_barrier')
    def mix(self, a, stflags=''):
        t = self.t
        for i in range(3):
            a('ds_read_b128 v[%d:%d], v%d' % (self.d + 8 * i, self.d + 8 * i + 3, self.aor + i))
            a('ds_read_b128 v[%d:%d], v%d offset:16' % (self.d + 8 * i + 4, self.d + 8 * i + 7, self.aor + i))
            a('ds_read_b32 v%d, v%d' % (self.f + i, self.gad + i))
        for i in range(3):
            p = self.p + 16 * i
            g, og = self.f + i, self.f + 4 + i
            a('v_sub_f32 v%d, 1.0, v%d' % (og, g))
            a('v_cvt_pk_bf16_f32 v%d, v%d, v%d\nv_lshlrev_b32 v%d, 16, v%d' % (og, og, og, og, og))
            for dw in range(4):
                lo, hi = t + 2 * dw, t + 2 * dw + 1
                a('v_lshlrev_b32 v%d, 16, v%d\nv_and_b32 v%d, 0xffff0000, v%d' % (lo, p + dw, hi, p + dw))
                for ks in range(1, 4):
                    a('v_lshlrev_b32 v%d, 16, v%d\nv_and_b32 v%d, 0xffff0000, v%d' % (t + 8, p + 4 * ks + dw, t + 9, p + 4 * ks + dw))
                    a('v_add_f32 v%d, v%d, v%d\nv_add_f32 v%d, v%d, v%d' % (lo, lo, t + 8, hi, hi, t + 9))
            for x in range(8):
                a('v_mul_f32 v%d, v%d, v%d' % (t + x, t + x, og))
                a('v_fma_f32 v%d, v%d, v%d, v%d' % (t + x, self.d + 8 * i + x, g, t + x))
            for dw in range(4): a('v_cvt_pk_bf16_f32 v%d, v%d, v%d' % (t + 12 + dw, t + 2 * dw, t + 2 * dw + 1))
            a('buffer_store_dwordx4 v[%d:%d], v%d, s[%d:%d], 0 offen %s' % (t + 12, t + 15, self.oaddr + i, self.S_OUT, self.S_OUT + 3, stflags))
```

```python
from asmlib import *
from common import *
from sched import Node, Packer, place_groups

V_LANE16 = 1
V_LANE8 = 2
V_XOFF = 3
V_DP = 4
V_DS = 5
V_RA0 = 6
V_RA1 = 7
V_RS = 8
V_C2 = 9
V_T = 10
V_XD = 80
V_XR0 = 81
V_XR1 = 82
NSL = 16
AF0 = 16
GT0 = 80
HP0 = 88
ACC0 = 96
XV0 = 224

S_W = 4
S_X = 8
S_WS = 12
S_WV, S_T, S_FJ = 20, 21, 22
S_DOFFP, S_DOFFS = 23, 24
S_M0B = 25
S_HP, S_HSG = 26, 27
S_TMP, S_TMP2 = 28, 29
S_C1 = 30
S_RB = 32
S_ST = 36
S_XB = 38
S_XM = 39

LANE8 = [V_LANE8]

def xfrag(rb, ks):
    fi = ks * 4 + rb
    if fi < 64: return 'a[%d:%d]' % (4 * fi, 4 * fi + 3)
    b = XV0 + 4 * (fi - 64)
    return 'v[%d:%d]' % (b, b + 3)

def acc(setn, bl, mx, rb):
    return ACC0 + 64 * setn + (bl * 2 + mx) * 16 + rb * 4

def roles(a):
    a('''v_lshrrev_b32 v10, 6, v0
v_and_b32 v0, 63, v0
s_nop 0
v_readfirstlane_b32 s%d, v10
s_and_b32 s%d, s2, 7
s_lshr_b32 s%d, s2, 3
s_and_b32 s%d, s%d, 3
s_lshr_b32 s%d, s%d, 2
s_lshl_b32 s%d, s%d, 2
s_and_b32 s46, s%d, 3
s_add_u32 s%d, s%d, s46
s_lshl_b32 s%d, s%d, 3
s_lshr_b32 s46, s%d, 2
s_add_u32 s%d, s%d, s46''' % (S_WV, S_TMP, S_TMP2,
        S_FJ, S_TMP,
        S_T, S_TMP,
        S_T, S_T,
        S_TMP2,
        S_T, S_T,
        S_FJ, S_FJ,
        S_TMP2,
        S_FJ, S_FJ))

T0, T1, T2, T3, T4, T5 = 83, 84, 85, 86, 87, 88

def setup_x(a):
    a('''s_lshl_b32 s40, s%d, 5
s_lshr_b32 s41, s%d, 1
s_lshl_b32 s41, s41, 4
s_add_u32 s40, s40, s41
s_and_b32 s41, s%d, 1
s_lshl_b32 s41, s41, 10
s_add_u32 s40, s40, s41
s_mul_i32 s%d, s40, 1152
s_mul_i32 s%d, s%d, 18432
s_add_u32 s%d, s%d, %d
v_lshrrev_b32 v%d, 3, v0
v_and_b32 v%d, 7, v0
v_xor_b32 v%d, v%d, v%d
v_mul_u32_u24 v%d, 1152, v%d
v_lshl_add_u32 v%d, v%d, 4, v%d
v_and_b32 v%d, 15, v0
v_lshrrev_b32 v%d, 4, v0
v_and_b32 v%d, 7, v%d
v_xor_b32 v%d, v%d, v%d
v_lshlrev_b32 v%d, 4, v%d
v_lshl_add_u32 v%d, v%d, 7, v%d
v_add_u32 v%d, s%d, v%d
v_xor_b32 v%d, 64, v%d''' % (S_T, S_WV, S_WV, S_XB, S_XM, S_WV, S_XM, S_XM, 2 * SLOT,
        T0, T1, T1, T1, T0, T0, T0, V_XD, T1, T0,
        T0, T1, T2, T0, T2, T2, T1, T2, T2, T2, T0, T2, V_XR0, S_XM, T2, V_XR1, V_XR0))

def setup_rest(a):
    a('''v_and_b32 v10, 15, v0
v_lshrrev_b32 v11, 4, v0''')
    a('''v_lshrrev_b32 v12, 2, v0
v_mul_u32_u24 v12, 9216, v12
v_lshrrev_b32 v13, 5, v0
v_lshlrev_b32 v13, 1, v13
v_and_b32 v14, 3, v0
v_xor_b32 v13, v13, v14
v_lshl_add_u32 v%d, v13, 4, v12
v_lshrrev_b32 v12, 1, v0
v_and_b32 v13, 0x13, v12
v_and_b32 v14, 4, v12
v_lshl_or_b32 v13, v14, 1, v13
v_and_b32 v14, 8, v12
v_lshrrev_b32 v14, 1, v14
v_or_b32 v13, v13, v14
v_mul_u32_u24 v13, 9216, v13
v_and_b32 v14, 1, v0
v_lshl_add_u32 v%d, v14, 4, v13''' % (V_DP, V_DS))
    a('''v_lshrrev_b32 v12, 2, v10
v_and_b32 v13, 3, v0
v_lshl_add_u32 v14, v11, 3, v12
v_lshlrev_b32 v14, 6, v14
v_lshl_add_u32 v14, v13, 3, v14
v_and_b32 v15, 1, v11
v_lshl_add_u32 v%d, v15, 5, v14
v_xor_b32 v%d, 32, v%d
v_lshrrev_b32 v14, 1, v11
v_lshlrev_b32 v14, 4, v14
v_lshl_add_u32 v14, v15, 2, v14
v_add_u32 v14, v14, v12
v_lshlrev_b32 v14, 5, v14
v_lshl_add_u32 v%d, v13, 3, v14
v_mov_b32 v%d, 0x%08x
s_mov_b32 s%d, 0x%08x''' % (V_RA0, V_RA1, V_RA0, V_RS, V_C2, f32bits(GC2), S_C1, f32bits(GC1)))
    a('''s_and_b32 s40, s%d, 1
s_and_b32 s41, s%d, 1
s_mul_i32 s42, s%d, 288
s_lshl_b32 s43, s41, 5
s_add_u32 s%d, s42, s43
s_mul_i32 s43, s40, %d
s_add_u32 s%d, s%d, s43
s_xor_b32 s43, s41, 1
s_lshl_b32 s43, s43, 8
s_add_u32 s%d, s42, s43
s_mul_i32 s43, s40, %d
s_add_u32 s%d, s%d, s43
s_mul_i32 s%d, s%d, 9216''' % (S_WV, S_FJ, S_FJ,
        S_DOFFP, 144 * 9216, S_DOFFP, S_DOFFP,
        S_DOFFS, 288 * 9216, S_DOFFS, S_DOFFS,
        S_M0B, S_WV))
    a('''s_lshl_b32 s42, s%d, 4
s_lshl_b32 s43, s%d, 2
s_add_u32 s42, s42, s43
s_lshr_b32 s43, s%d, 1
s_mul_i32 s44, s43, 9
s_mul_i32 s45, s41, 5
s_add_u32 s44, s44, s45
s_mul_i32 s45, s42, 144
s_add_u32 s44, s44, s45
s_lshl_b32 s%d, s44, 10
s_add_u32 s%d, s%d, %d
s_lshl_b32 s44, s42, 4
s_add_u32 s44, s44, s43
s_lshl_b32 s44, s44, 1
s_add_u32 s44, s44, s41
s_lshl_b32 s%d, s44, 9
s_add_u32 s%d, s%d, %d''' % (S_T, S_WV, S_FJ, S_HP, S_HP, S_HP, HF_BASE, S_HSG, S_HSG, S_HSG, HS_BASE))


def setup(a):
    a('''s_load_dwordx2 s[8:9], s[0:1], %d
s_load_dwordx4 s[40:43], s[0:1], %d
s_load_dwordx2 s[12:13], s[0:1], %d''' % (KA_AX, KA_WG, KA_WS))
    roles(a)
    a('''s_waitcnt lgkmcnt(0)
s_mov_b32 s10, %d
s_mov_b32 s11, 0x20000
s_mov_b32 s14, %d
s_mov_b32 s15, 0x20000
s_cmp_ge_u32 s%d, 2
s_cselect_b32 s4, s42, s40
s_cselect_b32 s5, s43, s41
s_mov_b32 s6, %d
s_mov_b32 s7, 0x20000''' % (NB_X, WS_BYTES, S_WV, NB_W))
    a('v_lshlrev_b32 v%d, 4, v0\nv_lshlrev_b32 v%d, 3, v0' % (V_LANE16, V_LANE8))
    setup_x(a)
    setup_rest(a)

def x_prefetch(a):
    a('''s_and_b32 s40, s%d, 7
s_mul_i32 s40, s40, 294912
s_mul_i32 s41, s%d, 36864
s_add_u32 s40, s40, s41
s_lshl_b32 s41, s%d, 13
s_add_u32 s41, s41, s40
s_add_u32 s40, s40, 32768
v_lshlrev_b32 v%d, 7, v0
v_cmp_gt_u32 vcc, 32, v0
v_mov_b32 v%d, 0x7ffffff0
v_cndmask_b32 v%d, v%d, v%d, vcc
buffer_load_dword v%d, v%d, s[%d:%d], s41 offen
buffer_load_dword v%d, v%d, s[%d:%d], s40 offen''' % (S_FJ, S_T, S_WV, T0, T1, T1, T1, T0, 254, T0, S_X, S_X + 3, 255, T1, S_X, S_X + 3))

def dma_ops(stage, j):
    slot = stage % 4
    if stage < 8:
        p, h = stage >> 1, stage & 1
        off = (288 * h + 16 * j) * 9216 + 64 * p
        base, vo = S_DOFFP, V_DP
    else:
        off = 32 * j * 9216
        base, vo = S_DOFFS, V_DS
    return ['s_add_u32 s%d, s%d, %d' % (S_TMP, base, off),
            's_add_u32 m0, s%d, %d' % (S_M0B, slot * SLOT + j * 1024),
            ('buffer_load_dwordx4 v%d, s[%d:%d], s%d offen lds' % (vo, S_W, S_W + 3, S_TMP), ('dma', stage))]

NXB = 9

def xblocks():
    return [(rb, kp) for rb in range(4) for kp in range(9)]

def x_dma(b):
    rb, kp = xblocks()[b]
    L = []
    for e in range(2):
        L += ['s_add_u32 s%d, s%d, %d' % (S_TMP, S_XB, (256 * rb + 8 * e) * 1152 + kp * 128),
              's_add_u32 m0, s%d, %d' % (S_XM, (b % NXB) * 2048 + e * 1024),
              ('buffer_load_dwordx4 v%d, s[%d:%d], s%d offen lds' % (V_XD, S_X, S_X + 3, S_TMP), ('xd', b))]
    return L

def x_read(b):
    rb, kp = xblocks()[b]
    o = (b % NXB) * 2048
    return ['ds_read_b128 %s, v%d offset:%d' % (xfrag(rb, 2 * kp), V_XR0, o),
            ('ds_read_b128 %s, v%d offset:%d' % (xfrag(rb, 2 * kp + 1), V_XR1, o), ('xr', b))]

def x_steps():
    steps = []
    steps.append([o for b in range(NXB) for o in x_dma(b)])
    for b in range(36):
        st = [('waitvm', ('xd', b))] + x_read(b)
        if b >= 1 and b - 1 + NXB < 36:
            st += [('waitlg', ('xr', b - 1))] + x_dma(b - 1 + NXB)
        steps.append(st)
    return steps

def put2(a, o):
    if isinstance(o, tuple) and o[0] == 'waitvm': a.wait_vm(o[1])
    elif isinstance(o, tuple) and o[0] == 'waitlg': a.wait_lgkm(o[1])
    else: put(a, o)

class GegluState:
    def __init__(self):
        self.tlast = {}
        self.hlast = {}

def geglu_nodes(gs, setn, bl, rb, dst, tset, war):
    g = acc(setn, bl, 0, rb); u = acc(setn, bl, 1, rb)
    t = GT0 + 4 * tset
    prev = gs.tlast.get(tset, [None] * 4)
    N = []
    fin = []
    rows = [[] for _ in range(8)]
    for r in range(4):
        n0 = Node('a', 'v_mul_f32 v%d, v%d, v%d' % (t + r, g + r, g + r), [prev[r]] if prev[r] else [])
        n1 = Node('a', 'v_fma_f32 v%d, v%d, s%d, v%d' % (t + r, t + r, S_C1, V_C2), [n0])
        n2 = Node('a', 'v_mul_f32 v%d, v%d, v%d' % (t + r, t + r, g + r), [n1])
        n3 = Node('T', 'v_exp_f32 v%d, v%d' % (t + r, t + r), [n2])
        nm = Node('a', 'v_mul_f32 v%d, v%d, v%d' % (u + r, g + r, u + r))
        n4 = Node('a', 'v_add_f32 v%d, 1.0, v%d' % (t + r, t + r), [n3])
        n5 = Node('T', 'v_rcp_f32 v%d, v%d' % (t + r, t + r), [n4])
        n6 = Node('a', 'v_mul_f32 v%d, v%d, v%d' % (u + r, u + r, t + r), [n5, nm])
        for i, n in enumerate((n0, n1, n2, n3, nm, n4, n5, n6)): rows[i].append(n)
        fin.append(n6)
    for row in rows: N += row
    c0 = Node('a', 'v_cvt_pk_bf16_f32 v%d, v%d, v%d' % (dst, u, u + 1), fin[:2] + war)
    c1 = Node('a', 'v_cvt_pk_bf16_f32 v%d, v%d, v%d' % (dst + 1, u + 2, u + 3), fin[2:] + war)
    gs.tlast[tset] = fin
    return N + [c0, c1], [c0, c1]

def geglu_pair(gs, p, stflags):
    L = []
    for rb in range(4):
        hs = rb & 1
        hp = HP0 + 4 * hs
        war = [gs.hlast[hs]] if hs in gs.hlast else []
        cv = []
        for bl in range(2):
            n, c = geglu_nodes(gs, p & 1, bl, rb, hp + 2 * bl, bl, war)
            L += n; cv += c
        if stflags == 'none': continue
        sa = Node('S', 's_add_u32 s%d, s%d, %d' % (S_ST + hs, S_HP, rb * 144 * 1024 + p * 1024), war)
        st = Node('X', ('buffer_store_dwordx4 v[%d:%d], v%d, s[%d:%d], s%d offen %s' % (hp, hp + 3, V_LANE16, S_WS, S_WS + 3, S_ST + hs, stflags), ('hst', p)), cv + [sa])
        L += [sa, st]; gs.hlast[hs] = st
    return L

def geglu_single(gs, stflags):
    L = []
    for rb in range(4):
        hs = rb & 1
        hp = HP0 + 4 * hs
        war = [gs.hlast[hs]] if hs in gs.hlast else []
        n, cv = geglu_nodes(gs, 0, 0, rb, hp, rb & 1, war)
        L += n
        if stflags == 'none': continue
        sa = Node('S', 's_add_u32 s%d, s%d, %d' % (S_ST + hs, S_HSG, rb * 16 * 1024), war)
        st = Node('X', ('buffer_store_dwordx2 v[%d:%d], v%d, s[%d:%d], s%d offen %s' % (hp, hp + 1, LANE8[0], S_WS, S_WS + 3, S_ST + hs, stflags), ('hst', 4)), cv + [sa])
        L += [sa, st]; gs.hlast[hs] = st
    return L

def put(a, item):
    if isinstance(item, tuple): a(item[0], tag=item[1])
    else: a(item)

def stage_frags(stage):
    C = []
    for ci in range(4):
        if stage < 8:
            p, h = stage >> 1, stage & 1
            bl, mx = ci >> 1, ci & 1
            ks0 = 9 * h
            C.append(dict(addr=(V_RA0, V_RA1)[bl], off=lambda k, mx=mx: mx * 18432 + k * 2048, setn=p & 1, bl=bl, mx=mx, ks0=ks0))
        else:
            mx, hh = ci & 1, ci >> 1
            C.append(dict(addr=V_RS, off=lambda k, mx=mx, hh=hh: mx * 18432 + (9 * hh + k) * 1024, setn=0, bl=0, mx=mx, ks0=9 * hh))
    return C

def read_ops(stage, ci, k, F):
    c = stage_frags(stage)[ci]
    r = AF0 + 4 * (F % NSL)
    o = c['off'](k)
    return ['ds_read_b64_tr_b16 v[%d:%d], v%d offset:%d' % (r, r + 1, c['addr'], o),
            ('ds_read_b64_tr_b16 v[%d:%d], v%d offset:%d' % (r + 2, r + 3, c['addr'], o + 256), ('fr', F))]

def addr_bump(stage_next):
    d = SLOT if stage_next % 4 else -3 * SLOT
    regs = (V_RA0, V_RA1, V_RS)
    if d > 0: return ['v_add_u32 v%d, %d, v%d' % (r, d, r) for r in regs]
    return ['v_subrev_u32 v%d, %d, v%d' % (r, -d, r) for r in regs]

LEAD = 12

def emit_phase1(a, stflags='sc1', nstage=9, extra_dma=None, stamp=None, skip=(), bp=110, w1pos=27, prologue=True, hook=None, tail=True, dma_slots=None):
    if prologue:
        if stamp: stamp(a, 10)
        if 'xpf' not in skip: x_prefetch(a)
        xs = x_steps()
        for o in xs[0]: put2(a, o)
        for j in range(9):
            for o in dma_ops(0, j): put(a, o)
        if stamp: stamp(a, 11)
        for i, st in enumerate(xs[1:]):
            for o in st: put2(a, o)
            if w1pos == i:
                for j in range(9):
                    for o in dma_ops(1, j): put(a, o)
        a.wait_lgkm(('xr', 35))
        a('s_barrier')
        for j in range(9):
            for o in dma_ops(2, j): put(a, o)
        a.wait_vm(('dma', 0))
        if stamp: stamp(a, 12)
        a('s_barrier')
    if stamp: stamp(a, 0)
    F = 0
    for k in range(9):
        for o in read_ops(0, 0, k, k): put(a, o)
    pk = Packer(a, put2)
    gs = GegluState()
    for st in range(nstage):
        C = stage_frags(st)
        nv = [[] for _ in range(144)]
        BP = bp
        for ci in range(1, 5):
            s2, c2 = (st, ci) if ci < 4 else (st + 1, 0)
            if s2 >= nstage: continue
            for k in range(9):
                Fi = (st * 4 + ci) * 9 + k
                ro = read_ops(s2, c2, k, Fi) if 'reads' not in skip else []
                base = 36 * (ci - 1)
                if ci < 4: pos = (base + 4 * k, base + 4 * k + 2)
                else:
                    span = 143 - (BP + 1)
                    pos = (BP + 1 + (span * (2 * k)) // 18, BP + 1 + (span * (2 * k + 1)) // 18)
                    if k >= 7: pos = (max(pos[0], base + 28 + (k - 7)), max(pos[1], base + 29 + (k - 7)))
                for e, o in enumerate(ro): nv[pos[e]].append(('D', o))
        for ci in range(4):
            for k in (0, 3, 6):
                Fi = (st * 4 + ci) * 9 + k + 2
                pos = 36 * ci + k - 1
                if pos >= 0: nv[pos].append(('W', ('waitlg', ('fr', Fi))))
        if st + 1 < nstage:
            nv[143].append(('W', ('waitlg', ('fr', ((st + 1) * 4) * 9 + 2))))
            for i, o in enumerate(addr_bump(st + 1)): nv[BP - 3 + i].append(('a', o))
            nv[BP] += [('W', ('waitlg', ('fr', (st * 4 + 3) * 9 + 8))), ('W', ('waitvm', ('dma', st + 1)))]
            if 'barrier' not in skip: nv[BP].append(('B', 's_barrier'))
        dl = []
        tgt = st + 3
        if 'dma' in skip: pass
        elif tgt == 8 and nstage > 8: dl = [dma_ops(8, j) for j in range(5)]
        elif tgt == 9 and nstage > 8: dl = [dma_ops(8, j) for j in range(5, 9)]
        elif tgt < 9 and tgt < nstage: dl = [dma_ops(tgt, j) for j in range(9)]
        groups = [(2 + (i * 132) // len(dl), [('S', d[0]), ('S', d[1]), ('M', d[2])]) for i, d in enumerate(dl)]
        if extra_dma: groups += extra_dma(st, nv)
        place_groups(nv, groups)
        if hook: hook(st, nv, pk)
        for n in range(144):
            ci, rb, k = n // 36, (n % 36) // 9, n % 9
            c = C[ci]
            ks = c['ks0'] + k
            d = acc(c['setn'], c['bl'], c['mx'], rb)
            fr = AF0 + 4 * (((st * 4 + ci) * 9 + k) % NSL)
            srcc = '0' if ks == 0 else 'v[%d:%d]' % (d, d + 3)
            if ks == 0:
                for nd_ in pk.q:
                    o_ = Op(nd_.item[0] if isinstance(nd_.item, tuple) else nd_.item)
                    assert not ((o_.reads | o_.writes) & {('v', d + i) for i in range(4)}), 'GEGLU backlog overlaps new accumulation'
            a('v_mfma_f32_16x16x32_bf16 v[%d:%d], v[%d:%d], %s, %s' % (d, d + 3, fr, fr + 3, xfrag(rb, ks), srcc))
            fixed = sorted(nv[n], key=lambda f: {'D': 0, 'S': 1, 'M': 1, 'L': 1, 'X': 1, 'W': 2, 'B': 3, 'Z': 3, 'a': 4, 'T': 4}[f[0]])
            pk.fill(fixed)
        if stamp: stamp(a, st + 1)
        if 'geglu' in skip: continue
        if st < 8 and (st & 1): pk.push(geglu_pair(gs, st >> 1, stflags))
        if st == 8: pk.push(geglu_single(gs, stflags))
    if tail: pk.drain()
    return pk
```

```python
from asmlib import *
from common import *
from sched import Node, Packer, place_groups

V_LANE16 = 1
V_LANE8 = 8
DM = [2, 3, 10, 11, 12, 13, 14, 15, 5]
V2_RA = 6
V2_EW = 7
V2_T = 16
AF2 = 32
NSL2 = 12
ACC2 = 96
V2_ER = 168
HB0 = 0
EPI_LDS = 2 * SLOT

S_WD = 16
S_WS = 12
S_WV = 20
S2_T, S2_NT, S2_KS = 48, 49, 50
S2_DA, S2_DB = 51, 52
S2_M0 = 53
S2_H, S2_HS = 54, 55
S2_P = 56
S2_T1, S2_T2, S2_T3 = 57, 58, 59

def roles2(a):
    a('''s_and_b32 s46, s2, 7
s_lshr_b32 s47, s2, 3
s_and_b32 s%d, s46, 3
s_lshr_b32 s46, s46, 2
s_lshl_b32 s46, s46, 3
s_and_b32 s%d, s47, 7
s_add_u32 s%d, s%d, s46
s_lshr_b32 s%d, s47, 3''' % (S2_KS, S2_T, S2_T, S2_T, S2_NT))

def dm_calc(j, t, er=False):
    L = ['v_add_u32 v%d, %d, v0' % (t, 64 * j), 'v_mul_u32_u24 v%d, 3641, v%d' % (t + 1, t), 'v_lshrrev_b32 v%d, 16, v%d' % (t + 1, t + 1),
         'v_mul_u32_u24 v%d, 18, v%d' % (t + 2, t + 1), 'v_sub_u32 v%d, v%d, v%d' % (t + 2, t, t + 2)]
    if not er: L += ['v_mul_u32_u24 v%d, 1152, v%d' % (t + 3, t + 1), 'v_lshl_add_u32 v%d, v%d, 4, v%d' % (DM[j], t + 2, t + 3)]
    else: L += ['v_mul_u32_u24 v%d, 304, v%d' % (t + 3, t + 1), 'v_lshl_add_u32 v%d, v%d, 4, v%d' % (V2_ER + j, t + 2, t + 3)]
    return L

def setup2_vec(a):
    a('''v_and_b32 v16, 15, v0
v_lshrrev_b32 v17, 4, v0
v_lshrrev_b32 v18, 2, v16
v_lshl_add_u32 v18, v17, 2, v18
v_mul_u32_u24 v18, 288, v18
v_and_b32 v19, 3, v0
v_lshl_add_u32 v%d, v19, 3, v18
v_mul_u32_u24 v18, 304, v16
v_lshl_add_u32 v18, v17, 3, v18
s_mul_i32 s46, s%d, 9728
s_add_u32 s46, s46, %d
v_add_u32 v%d, s46, v18
v_lshlrev_b32 v%d, 3, v0''' % (V2_RA, S_WV, EPI_LDS, V2_EW, V_LANE8))

def epi_ops(t):
    L = []
    for j in range(9): L += dm_calc(j, t, er=True)
    L += ['s_mul_i32 s43, s%d, 9728' % S_WV, 's_add_u32 s43, s43, %d' % EPI_LDS]
    L += ['v_add_u32 v%d, s43, v%d' % (V2_ER + j, V2_ER + j) for j in range(9)]
    return L

def setup2_epi(a):
    for o in epi_ops(16): a(o)

def setup2(a):
    for j in range(9):
        for o in dm_calc(j, 16): a(o)
    setup2_vec(a); setup2_epi(a); setup2_scalar(a)

def setup2_scalar(a):
    roles2(a)
    a('''s_lshr_b32 s46, s%d, 1
s_mul_i32 s46, s46, 9
s_and_b32 s47, s%d, 1
s_mul_i32 s47, s47, 5
s_add_u32 s46, s46, s47
s_mul_i32 s47, s%d, 36
s_add_u32 s46, s46, s47
s_mul_i32 s46, s46, 36864
s_mul_i32 s%d, s%d, 288
s_add_u32 s%d, s46, s%d
s_mul_i32 s46, s%d, 9
s_add_u32 s46, s46, 4
s_add_u32 s46, s46, s47
s_mul_i32 s46, s46, 36864
s_add_u32 s%d, s46, s%d
s_mul_i32 s%d, s%d, 9216''' % (S_WV, S_WV, S2_KS, S2_T1, S2_NT, S2_DA, S2_T1, S_WV, S2_DB, S2_T1, S2_M0, S_WV))
    a('''s_lshl_b32 s46, s%d, 3
s_lshl_b32 s47, s%d, 1
s_add_u32 s46, s46, s47
s_mul_i32 s47, s46, 144
s_mul_i32 s%d, s%d, 36
s_add_u32 s47, s47, s%d
s_lshl_b32 s%d, s47, 10
s_add_u32 s%d, s%d, %d
s_lshl_b32 s47, s46, 4
s_lshl_b32 s%d, s%d, 2
s_add_u32 s47, s47, s%d
s_lshl_b32 s%d, s47, 10
s_add_u32 s%d, s%d, %d''' % (S2_T, S_WV, S2_T1, S2_KS, S2_T1, S2_H, S2_H, S2_H, HF_BASE, S2_T1, S2_KS, S2_T1, S2_HS, S2_HS, S2_HS, HS_BASE))
    a('''s_lshl_b32 s46, s%d, 2
s_add_u32 s46, s46, s%d
s_mul_i32 s46, s46, %d
s_lshl_b32 s47, s%d, 7
s_lshl_b32 s%d, s%d, 5
s_add_u32 s47, s47, s%d
s_mul_i32 s47, s47, 288
s_add_u32 s46, s46, s47
s_add_u32 s%d, s46, %d''' % (S2_KS, S2_NT, P_TILE, S2_T, S2_T1, S_WV, S2_T1, S2_P, P_BASE))

def kkl(st, i):
    if st < 8: return 18 * (st & 1) + (st >> 1) + 9 * (i >> 1) + 5 * (i & 1)
    return 9 * i + 4

def dma2_ops(st, j, slot):
    if st < 8: base, off = S2_DA, (18 * (st & 1) + (st >> 1)) * 36864
    else: base, off = S2_DB, 0
    L = ['s_add_u32 s%d, s%d, %d' % (S2_T1, base, off)] if j == 0 else []
    return L + ['s_add_u32 m0, s%d, %d' % (S2_M0, slot * SLOT + j * 1024),
                ('buffer_load_dwordx4 v%d, s[%d:%d], s%d offen lds' % (DM[j], S_WD, S_WD + 3, S2_T1), ('dma2', st))]

def hfrag(st, i, rb):
    return HB0 + (st % 4) * 32 + (i * 2 + rb) * 4

def h_ops(st, i, rb, ldflags):
    r = hfrag(st, i, rb)
    if st < 8:
        return [('S', 's_add_u32 s%d, s%d, %d' % (S2_T2, S2_H, (rb * 144 + kkl(st, i)) * 1024)),
                ('L', ('buffer_load_dwordx4 a[%d:%d], v%d, s[%d:%d], s%d offen %s' % (r, r + 3, V_LANE16, S_WS, S_WS + 3, S2_T2, ldflags), ('h', st)))]
    return [('S', 's_add_u32 s%d, s%d, %d' % (S2_T2, S2_HS, (rb * 16 + i) * 1024)),
            ('L', ('buffer_load_dwordx2 a[%d:%d], v%d, s[%d:%d], s%d offen %s' % (r, r + 1, V_LANE8, S_WS, S_WS + 3, S2_T2, ldflags), ('h', st))),
            ('L', ('buffer_load_dwordx2 a[%d:%d], v%d, s[%d:%d], s%d offen offset:512 %s' % (r + 2, r + 3, V_LANE8, S_WS, S_WS + 3, S2_T2, ldflags), ('h', st)))]

def acc2(db, rb): return ACC2 + (db * 2 + rb) * 4

def read2_ops(db, i, F):
    r = AF2 + 4 * (F % NSL2)
    o = i * 9216 + db * 32
    return ['ds_read_b64_tr_b16 v[%d:%d], v%d offset:%d' % (r, r + 1, V2_RA, o),
            ('ds_read_b64_tr_b16 v[%d:%d], v%d offset:%d' % (r + 2, r + 3, V2_RA, o + 16 * 288), ('fr2', F))]

def put(a, item):
    if isinstance(item, tuple) and item[0] == 'waitvm': a.wait_vm(item[1])
    elif isinstance(item, tuple) and item[0] == 'waitlg': a.wait_lgkm(item[1])
    elif isinstance(item, tuple): a(item[0], tag=item[1])
    else: a(item)

def bump2(slot_next):
    d = SLOT if slot_next else -3 * SLOT
    return 'v_add_u32 v%d, %d, v%d' % (V2_RA, d, V2_RA) if d > 0 else 'v_subrev_u32 v%d, %d, v%d' % (V2_RA, -d, V2_RA)

def place2(nv, groups):
    ptr = 0
    for want, items in sorted(groups, key=lambda g: g[0]):
        ptr = max(ptr, want)
        for cls, it in items:
            while any(c in 'MLBZX' for c, _ in nv[ptr]) or sum(1 for c, _ in nv[ptr] if c in 'SW') >= 1 or sum(1 for c, _ in nv[ptr] if c == 'D') > 1:
                ptr += 1
            nv[ptr].append((cls, it)); ptr += 1

def prologue2(a, slot0, ldflags, dma=True):
    if dma:
        for st in range(3):
            for j in range(9):
                for o in dma2_ops(st, j, (slot0 + st) % 4): put(a, o)
    for st in range(2):
        for i in range(4):
            for rb in range(2):
                for c, o in h_ops(st, i, rb, ldflags): put(a, o)

def emit_phase2(a, slot0=0, ldflags='sc1', stamp=None, skip=(), pre_stage=None, bp=61):
    if slot0: a('v_add_u32 v%d, %d, v%d' % (V2_RA, slot0 * SLOT, V2_RA))
    a.wait_vm(('dma2', 0))
    a('s_barrier')
    if stamp: stamp(a, 0)
    for g in range(2):
        for i in range(4):
            for o in read2_ops(g, i, g * 4 + i): put(a, o)
    for st in range(9):
        slot = (slot0 + st) % 4
        nv = [[] for _ in range(72)]
        BP = bp
        for g in range(2, 9):
            for i in range(4):
                F = (st * 9 + g) * 4 + i
                for e, o in enumerate(read2_ops(g, i, F)): nv[8 * (g - 2) + 2 * i + e].append(('D', o))
        if st < 8:
            for g in range(2):
                for i in range(4):
                    F = ((st + 1) * 9 + g) * 4 + i
                    for e, o in enumerate(read2_ops(g, i, F)): nv[BP + 1 + 4 * g + i].append(('D', o))
        for db in range(9):
            F = (st * 9 + db) * 4 + 3
            if db: nv[8 * db - 1].append(('W', ('waitlg', ('fr2', F))))
        if st < 8:
            nv[71].append(('W', ('waitlg', ('fr2', ((st + 1) * 9) * 4 + 3))))
            nv[BP - 1].append(('a', bump2((slot + 1) % 4)))
            nv[BP] += [('W', ('waitlg', ('fr2', (st * 9 + 8) * 4 + 3))), ('W', ('waitvm', ('dma2', st + 1))), ('B', 's_barrier')]
        groups = []
        if st + 3 < 9 and 'dma' not in skip:
            for j in range(9):
                o = dma2_ops(st + 3, j, (slot + 3) % 4)
                groups.append((1 + (j * 56) // 9, [('S', x) for x in o[:-1]] + [('L', o[-1])]))
        hw = 0
        if pre_stage: hw = pre_stage(st, nv, groups) or 0
        if st + 2 < 9 and 'h' not in skip:
            for i in range(4):
                for rb in range(2):
                    groups.append((hw + 3 + ((i * 2 + rb) * (56 - hw)) // 8, h_ops(st + 2, i, rb, ldflags)))
        place2(nv, groups)
        for n in range(72):
            db, rb, i = n // 8, (n % 8) // 4, n % 4
            d = acc2(db, rb)
            fr = AF2 + 4 * (((st * 9 + db) * 4 + i) % NSL2)
            h = hfrag(st, i, rb)
            srcc = '0' if (st == 0 and i == 0) else 'v[%d:%d]' % (d, d + 3)
            a('v_mfma_f32_16x16x32_bf16 v[%d:%d], v[%d:%d], a[%d:%d], %s' % (d, d + 3, fr, fr + 3, h, h + 3, srcc))
            for c, o in sorted(nv[n], key=lambda f: {'D': 1, 'S': 0, 'M': 2, 'L': 2, 'X': 2, 'W': 3, 'B': 4, 'Z': 4, 'a': 5, 'T': 5}[f[0]]): put(a, o)
        if stamp: stamp(a, st + 1)

def epilogue2(a, stflags='sc1'):
    for db in range(9):
        for rb in range(2):
            d = acc2(db, rb); t = V2_T + 2 * ((db * 2 + rb) % 8)
            a('v_cvt_pk_bf16_f32 v%d, v%d, v%d\nv_cvt_pk_bf16_f32 v%d, v%d, v%d' % (t, d, d + 1, t + 1, d + 2, d + 3))
            a('ds_write_b64 v%d, v[%d:%d] offset:%d' % (V2_EW, t, t + 1, rb * 16 * 304 + db * 32), tag='pw')
    a.wait_lgkm('pw')
    for j in range(9):
        a('ds_read_b128 v[%d:%d], v%d' % (AF2 + 4 * j, AF2 + 4 * j + 3, V2_ER + j))
    for j in range(9):
        a('s_add_u32 s%d, s%d, %d' % (S2_T1, S2_P, j * 1024))
        a('buffer_store_dwordx4 v[%d:%d], v%d, s[%d:%d], s%d offen %s' % (AF2 + 4 * j, AF2 + 4 * j + 3, V_LANE16, S_WS, S_WS + 3, S2_T1, stflags), tag='pst')
```

```python
COST = {'D': 8, 'M': 12, 'L': 8, 'X': 12, 'S': 4, 'W': 4, 'B': 4, 'Z': 4, 'a': 4, 'T': 8, 'w': 12}

class Node:
    def __init__(self, cls, item, deps=()):
        self.cls, self.item, self.deps, self.done = cls, item, list(deps), None

class Packer:
    def __init__(self, a, put):
        self.a, self.put = a, put
        self.q = []
        self.gap = 0
        self.aa_prev = False
    def push(self, nodes): self.q += nodes
    def ready(self, n): return all(d.done is not None and d.done < self.gap for d in n.deps)
    def fill(self, fixed, window=14, allow=True):
        a = self.a
        nonv = [f for f in fixed if f[0] not in 'aT']
        vfix = [f for f in fixed if f[0] in 'aT']
        used = sum(COST[c] for c, _ in nonv)
        extra = []
        if allow:
            for n in self.q[:window]:
                if n.cls in 'SX' and self.ready(n):
                    if n.cls == 'S' and used + 4 <= 8: extra.append(n); used += 4
                    elif n.cls == 'X' and used == 0 and not vfix: extra.append(n); used += 12
                    break
        for c, it in nonv: self.put(a, it)
        for n in extra:
            self.put(a, n.item); n.done = self.gap; self.q.remove(n)
        vbud = min(8, 12 - used) - sum(COST[c] for c, _ in vfix)
        for c, it in vfix: self.put(a, it)
        nv = len(vfix)
        if allow:
            while vbud >= 4:
                pick = None
                cands = [n for n in self.q[:window] if n.cls in 'aT' and self.ready(n)]
                if vbud >= 8 and nv == 0:
                    pick = next((n for n in cands if n.cls == 'T'), None)
                if pick is None:
                    pick = next((n for n in cands if n.cls == 'a'), None)
                if pick is None: break
                if nv == 1 and self.aa_prev and len(self.q) < 60 and False: break
                self.put(a, pick.item); pick.done = self.gap; self.q.remove(pick)
                vbud -= COST[pick.cls]; nv += 1
        self.aa_prev = nv >= 2
        self.gap += 1
    def drain(self):
        while self.q:
            prog = False
            for n in list(self.q):
                if all(d.done is not None for d in n.deps):
                    self.put(self.a, n.item); n.done = self.gap; self.q.remove(n); prog = True; self.gap += 1
                    break
            assert prog


def gap_cost(items):
    return sum(COST[c] for c, _ in items if c not in 'aT')

def place_groups(nv, groups, last=None):
    n_max = len(nv) if last is None else last
    ptr = 0
    for want, items in sorted(groups, key=lambda g: g[0]):
        ptr = max(ptr, want)
        for cls, it in items:
            while True:
                assert ptr < n_max, 'no room for ' + str(it)
                busy = gap_cost(nv[ptr])
                hasv = any(c in 'aT' for c, _ in nv[ptr])
                blocked = any(c in 'MBXZ' for c, _ in nv[ptr])
                if cls in 'MX': ok = busy == 0 and not hasv
                else: ok = (not blocked) and busy + COST[cls] <= 12 - (4 if hasv else 0)
                if ok: break
                ptr += 1
            nv[ptr].append((cls, it)); ptr += 1
```

```python
import sys, re; sys.path.insert(0, 'gen')
from asmlib import *; from common import *
import phase1 as P1, phase2 as P2, abranch as AB
from sched import Node

HEADER = open('cdna_kernels/' + KN + '.s.ref').read().split('; Override launch geometry')[0]
LDS_BYTES = 163840
RAW = 4 * SLOT
FU = FLAG_BASE
FH1 = FU + 4096
FH2 = FH1 + 4096
FV = FH2 + 4096
FP = FV + 4096
EPOCH = FP + 4096
S_NONCE, S_SPIN = 60, 61
S_FHP, S_FHC, S_UO, S_FPP, S_FPC = 31, 32, 33, 34, 35
SPIN = 300000

def put(a, item):
    if isinstance(item, list):
        for x in item: put(a, x)
    elif isinstance(item, tuple) and item[0] == 'waitvm': a.wait_vm(item[1])
    elif isinstance(item, tuple) and item[0] == 'waitlg': a.wait_lgkm(item[1])
    elif isinstance(item, tuple): a(item[0], tag=item[1])
    else: a(item)
P1.put2 = put; P1.put = put; P2.put = put

class Fused:
    def __init__(self, stamps=False, opt=None):
        self.a = Asm(); self.cold = Asm(); self.nlab = 0; self.stamps = stamps; self.marks = []; self.opt = opt or {}
    def mark(self, name):
        if not self.stamps: return
        i = len(self.marks); self.marks.append(name)
        assert i < 60
        self.a('s_memtime s[98:99]')
        self.a('s_waitcnt lgkmcnt(0)')
        self.a('v_mov_b32 v%d, s98' % self.stamp_tmp)
        self.a('s_mov_b64 exec, 1')
        self.a('buffer_store_dword v%d, v1, s[12:15], s96 offen offset:%d' % (self.stamp_tmp, 4 * i))
        self.a('s_mov_b64 exec, -1')
    def publish(self, soff, vtmp, add=0):
        return ['v_mov_b32 v%d, s%d' % (vtmp, S_NONCE), 's_mov_b64 exec, 1',
                'buffer_store_dword v%d, v1, s[12:15], s%d offen offset:%d sc1' % (vtmp, soff, add), 's_mov_b64 exec, -1']
    def flags(self, kind, r, soff, vaddr, tag, add=0):
        self.nlab += 1
        L, R = 'L_poll%d' % self.nlab, 'L_back%d' % self.nlab
        if kind == 'one': test = ['v_cmp_eq_u32 vcc, s%d, v%d' % (S_NONCE, r)]
        else:
            test = ['v_xor_b32 v%d, s%d, v%d' % (r + i, S_NONCE, r + i) for i in range(4)] + \
                   ['v_or3_b32 v%d, v%d, v%d, v%d' % (r, r, r + 1, r + 2), 'v_or_b32 v%d, v%d, v%d' % (r, r, r + 3), 'v_cmp_eq_u32 vcc, 0, v%d' % r]
        ld = ('buffer_load_dword v%d' % r if kind == 'one' else 'buffer_load_dwordx4 v[%d:%d]' % (r, r + 3)) + \
             ', v%d, s[12:15], s%d offen offset:%d sc1' % (vaddr, soff, add)
        c = self.cold
        c(L + ':'); c('s_mov_b32 s%d, %d' % (S_SPIN, SPIN))
        c(L + '_loop:'); c(ld); c('s_waitcnt vmcnt(0)')
        for o in test: c(o)
        c('s_nop 1\ns_cmp_eq_u64 vcc, exec\ns_cbranch_scc1 %s\ns_sleep 2\ns_sub_u32 s%d, s%d, 1\ns_cmp_lg_u32 s%d, 0\ns_cbranch_scc1 %s_loop\ns_branch %s' % (R, S_SPIN, S_SPIN, S_SPIN, L, R))
        return (ld, tag), [('waitvm', tag)] + test + ['s_cmp_eq_u64 vcc, exec', 's_cbranch_scc0 ' + L, R + ':']

    def build(self):
        a, opt = self.a, self.opt
        self.stamp_tmp = 83
        a('''s_load_dwordx16 s[64:79], s[0:1], 0
s_load_dwordx2 s[80:81], s[0:1], %d
s_load_dwordx2 s[82:83], s[0:1], %d''' % (KA_OUT, KA_WS))
        if self.stamps: a('s_memrealtime s[90:91]\ns_memtime s[92:93]')
        P1.roles(a)
        a('''s_waitcnt lgkmcnt(0)
s_mov_b32 s8, s64
s_mov_b32 s9, s65
s_mov_b32 s10, %d
s_mov_b32 s11, 0x20000
s_mov_b32 s12, s82
s_mov_b32 s13, s83
s_mov_b32 s14, %d
s_mov_b32 s15, 0x20000
s_mov_b32 s84, s66
s_mov_b32 s85, s67
s_mov_b32 s86, s68
s_mov_b32 s87, s69
s_cmp_ge_u32 s20, 2
s_cselect_b32 s4, s74, s72
s_cselect_b32 s5, s75, s73
s_mov_b32 s6, %d
s_mov_b32 s7, 0x20000
s_mov_b32 s16, s76
s_mov_b32 s17, s77
s_mov_b32 s18, %d
s_mov_b32 s19, 0x20000
s_mov_b32 s64, s78
s_mov_b32 s65, s79
s_mov_b32 s66, 1152
s_mov_b32 s67, 0x20000
v_lshlrev_b32 v1, 4, v0''' % (NB_X, WS_BYTES, NB_W, NB_W))
        if self.stamps:
            a('s_lshl_b32 s96, s2, 2\ns_add_u32 s96, s96, s20\ns_lshl_b32 s96, s96, 8\ns_add_u32 s96, s96, %d' % (STAMP_BASE + 65536))
        if opt.get('codepf', True):
            a('''s_getpc_b64 s[44:45]
L_pc:
s_lshr_b32 s46, s2, 3
s_lshl_b32 s46, s46, 2
s_add_u32 s46, s46, s20
s_lshl_b32 s46, s46, 2
v_and_b32 v248, 3, v0
v_add_u32 v248, s46, v248
v_lshlrev_b32 v248, 7, v248
v_min_u32 v248, L_done - L_pc, v248
v_mov_b32 v249, s45
v_add_co_u32 v248, vcc, s44, v248
v_addc_co_u32 v249, vcc, 0, v249, vcc
global_load_dword v247, v[248:249], off''')
        A1 = AB.A1(16, 96, SLOT, 2, None, s_ax=8, s_gw=64)
        A1.loads(a)
        a('s_mov_b32 s46, %d\nv_mov_b32 v251, 0' % EPOCH)
        a('buffer_load_dword v250, v251, s[12:15], s46 offen sc1', tag='epoch')
        P1.x_prefetch(a)
        P1.setup_x(a)
        xs = P1.x_steps()
        for o in xs[0]: put(a, o)
        P1.setup_rest(a)
        for j in range(9):
            for o in P1.dma_ops(0, j): put(a, o)
        self.mark('issued')
        P2.setup2_scalar(a)
        a('''s_lshl_b32 s44, s21, 2
s_lshr_b32 s45, s22, 3
s_add_u32 s44, s44, s45
s_lshl_b32 s44, s44, 7
s_and_b32 s45, s22, 7
s_lshl_b32 s45, s45, 2
s_add_u32 s44, s44, s45
s_add_u32 s%d, s44, %d
s_lshr_b32 s44, s%d, 1
s_lshl_b32 s44, s44, 2
s_add_u32 s44, s44, s%d
s_lshl_b32 s44, s44, 7
s_add_u32 s%d, s44, %d
s_lshl_b32 s44, s%d, 7
s_lshl_b32 s45, s%d, 4
s_add_u32 s44, s44, s45
s_lshl_b32 s45, s%d, 2
s_add_u32 s44, s44, s45
s_add_u32 s%d, s44, %d
s_lshr_b32 s44, s2, 4
s_lshl_b32 s44, s44, 7
s_add_u32 s%d, s44, %d''' % (S_FHP, FH1, P2.S2_T, P2.S2_KS, S_FHC, FH1, P2.S2_T, P2.S2_NT, P2.S2_KS, S_FPP, FP, S_FPC, FP))
        for j in range(8):
            for o in P2.dm_calc(j, 83): a(o)
        A2 = AB.A2(128, 16, 0, 2, wbase=144, tbase=160)
        A2.S_WR, A2.S_WI = 72, 68
        V_WA = 87
        for o in A2.w_addr_ops(V_WA, 85): a(o)
        a('v_and_b32 v%d, -4, v%d' % (V_WA, V_WA))
        a('''s_mov_b32 s72, s84
s_mov_b32 s73, s85
s_mov_b32 s74, %d
s_mov_b32 s75, 0x20000
s_mov_b32 s68, s86
s_mov_b32 s69, s87
s_mov_b32 s70, %d
s_mov_b32 s71, 0x20000''' % (NB_WRI, NB_WRI))
        A1.consts(a)
        a.wait_vm('epoch')
        a('v_readfirstlane_b32 s%d, v250' % S_NONCE)
        a('s_nop 0\ns_mul_i32 s%d, s%d, 0x19660d\ns_add_u32 s%d, s%d, 0x3c6ef35f' % ((S_NONCE,) * 4))
        self.mark('consts')
        b = Asm()
        def gate_to(a_, t):
            a_('''s_lshl_b32 s46, s2, 5
s_lshl_b32 s47, s20, 3
s_add_u32 s46, s46, s47
s_add_u32 s46, s46, %d
s_mov_b64 exec, 1
buffer_store_dwordx2 v[%d:%d], v1, s[12:15], s46 offen
s_mov_b64 exec, -1''' % (G_BASE, t, t + 1))
        A1.s_rl = 40
        A1.compute(b, gate_to=gate_to)
        steps = xs[1:]
        every = opt.get('a1_every', 10)
        si = 0; cnt = 0; inexec = False
        for op in b.ops:
            a.add(op)
            if op.text.startswith('s_mov_b64 exec, 1'): inexec = True
            if op.text.startswith('s_mov_b64 exec, -1'): inexec = False
            cnt += 1
            if cnt >= every and si < len(steps) and not inexec:
                for o in steps[si]: put(a, o)
                si += 1; cnt = 0
        for st_ in steps[si:]:
            for o in st_: put(a, o)
        self.mark('xdone')
        a.wait_lgkm(('xr', 35))
        a('s_barrier')
        for s_ in (1, 2):
            for j in range(9):
                for o in P1.dma_ops(s_, j): put(a, o)
        a.wait_vm(('dma', 0)); a.wait_vm('ust')
        a('s_barrier')
        a('s_lshl_b32 s46, s2, 2\ns_add_u32 s46, s46, %d' % FU)
        put(a, self.publish(46, 83))
        self.mark('p1start')
        P1.LANE8[0] = 4
        fu_ld, fu_chk = self.flags('four', 144, 42, 1, 'fu')
        fh_ld, fh_chk = self.flags('one', 148, S_FHC, 149, 'fh1')
        def extra(st, nv):
            g = []
            if st == 1:
                for i, grp in enumerate(A2.w_dma_ops(V_WA, RAW)): g.append((20 + 28 * i, grp))
            if st == 7:
                for j in range(8):
                    o = P2.dma2_ops(0, j, 1)
                    g.append((10 + (j * 120) // 8, [('S', x) for x in o[:-1]] + [('M', o[-1])]))
            if st == 8:
                uo = A2.u_addr_ops(140, 141, S_UO)
                pre = [('S' if x.startswith('s_') else 'a', x) for x in uo] + [('a', 'v_and_b32 v149, 7, v0'), ('a', 'v_lshlrev_b32 v149, 2, v149'), ('S', 's_mov_b32 s42, %d' % FU)]
                g.append((0, pre + [('L', fu_ld), ('L', fh_ld)]))
                for s_ in (1, 2):
                    for j in range(8):
                        o = P2.dma2_ops(s_, j, 1 + s_)
                        g.append((22 + ((8 * (s_ - 1) + j) * 48) // 16, [('S', x) for x in o[:-1]] + [('M', o[-1])]))
                g.append((56, [('Z', fu_chk)] + [('L', x) for x in A2.u_load_ops(140, S_UO)]))
                hl = [('Z', fh_chk)]
                for s_ in range(2):
                    for i in range(4):
                        for rb in range(2): hl += P2.h_ops(s_, i, rb, 'sc1')
                g.append((74, hl))
            return g
        def touches(pk, lo, hi):
            for n in pk.q:
                o = Op(n.item[0] if isinstance(n.item, tuple) else n.item)
                if (o.reads | o.writes) & {('v', i) for i in range(lo, hi)}: return True
            return False
        def hook(st, nv, pk):
            if st == 8: assert not touches(pk, 128, 160), 'GEGLU of pair 2 still pending in stage 8'
            if st == 6:
                assert not any(isinstance(n.item, tuple) and n.item[1] == ('hst', 1) for n in pk.q)
                nv[110].insert(0, ('W', ('waitvm', ('hst', 1))))
                nv[111].append(('Z', self.publish(S_FHP, 4)))
            if st == 7:
                nv[2].append(('a', 'v_lshlrev_b32 v4, 3, v0'))
        pk = P1.emit_phase1(a, extra_dma=extra, prologue=False, hook=hook, tail=False)
        self.stamp_tmp = 255
        self.mark('p1end')
        P2.setup2_vec(a)
        for o in P2.dm_calc(8, 16): a(o)
        for s_ in range(3):
            o = P2.dma2_ops(s_, 0, 1 + s_)[0:1] + P2.dma2_ops(s_, 8, 1 + s_)
            for x in o: put(a, x)
        pk.drain()
        self.mark('geglu')
        a('s_cmp_ge_u32 s2, 200\ns_cbranch_scc1 L_noa2')
        for o in A2.w_addr_ops(140, 141): a(o)
        a.wait_vm('a2w')
        a('s_barrier')
        A2.w_from_lds(a, RAW, 140)
        A2.consts(a); A2.addr_T(a)
        A2.stage_in(a)
        A2.compute(a, before_bar=lambda a_: a_.wait_vm(('hst', 4)), after_bar=lambda a_: put(a_, self.publish(S_FHP, 252, 4096)))
        A2.stage_out(a)
        a('L_a2done:')
        c = self.cold
        c('L_noa2:'); c('s_waitcnt vmcnt(0)\ns_barrier')
        put(c, self.publish(S_FHP, 252, 4096)); c('s_waitcnt vmcnt(0)\ns_branch L_a2done')
        self.mark('a2')
        A3 = AB.A3(16, 0, 2, 60000, vreg=240)
        h2_ld, h2_chk = self.flags('one', 80, S_FHC, 81, 'fh2', add=4096)
        fv_ld, fv_chk = self.flags('four', 84, 42, 82, 'fv')
        epi = P2.epi_ops(88)
        def pre2(st, nv, groups):
            if st == 1:
                nv[0].append(('a', 'v_and_b32 v81, 7, v0')); nv[1].append(('a', 'v_lshlrev_b32 v81, 2, v81'))
                groups.append((4, [('L', h2_ld)]))
                nv[61].insert(0, ('W', ('waitvm', 'vst')))
                nv[62].append(('Z', ['s_lshl_b32 s43, s2, 2', 's_add_u32 s43, s43, %d' % FV] + self.publish(43, 83)))
            if st == 2:
                nv[0].append(('Z', h2_chk)); return 2
            if st == 5:
                for i, o in enumerate(epi[:42]): nv[i].append(('a', o))
            if st == 6:
                for i, o in enumerate(epi[42:]): nv[i].append(('a', o))
            if st == 7:
                nv[0].append(('a', 'v_min_u32 v82, 49, v0')); nv[1].append(('a', 'v_lshlrev_b32 v82, 4, v82'))
                groups.append((4, [('S', 's_mov_b32 s42, %d' % FV), ('L', fv_ld)]))
            if st == 8:
                va = A3.v_addr_ops(88)
                nv[0].append(('Z', fv_chk))
                for i, o in enumerate(va): nv[1 + i].append(('a', o))
                groups.append((len(va) + 3, [('L', x) for x in A3.v_load_ops(88)]))
        def st2(a_, i): self.mark('t%d' % i)
        P2.emit_phase2(a, slot0=1, ldflags='sc1', pre_stage=pre2, stamp=(st2 if self.stamps and opt.get('stage_marks') else None))
        self.mark('p2end')
        P2.epilogue2(a)
        a('s_lshl_b32 s46, s2, 5\ns_add_u32 s46, s46, %d\nv_lshlrev_b32 v4, 2, v0' % G_BASE)
        a('buffer_load_dword v5, v4, s[12:15], s46 offen', tag='g')
        a('s_mov_b32 s64, s80\ns_mov_b32 s65, s81\ns_mov_b32 s66, %d\ns_mov_b32 s67, 0x20000' % NB_X)
        A3.v_lds_addr(a); A3.item_addr(a); A3.consts(a)
        self.mark('a3consts')
        a.wait_vm('pst')
        a('s_barrier')
        put(a, self.publish(S_FPP, 252))
        a('v_add_u32 v4, %d, v4' % A3.gl)
        a.wait_vm('g')
        a('s_mov_b64 exec, 0xff\nds_write_b32 v4, v5\ns_mov_b64 exec, -1')
        A3.spectral(a)
        self.mark('spectral')
        fp_ld, fp_chk = self.flags('one', 4, S_FPC, 5, 'fp')
        a('v_and_b32 v5, 15, v0\nv_lshlrev_b32 v5, 2, v5')
        put(a, fp_ld); put(a, fp_chk)
        self.mark('pflags')
        A3.p_loads(a)
        A3.mix(a)
        a('s_cmp_lg_u32 s2, 0\ns_cbranch_scc1 L_fin')
        a('s_mov_b32 s46, %d' % EPOCH)
        put(a, self.publish(46, 252))
        a('L_fin:')
        self.mark('end')
        a('s_waitcnt vmcnt(0)')
        if self.stamps:
            a('''s_memrealtime s[94:95]
s_memtime s[98:99]
s_waitcnt lgkmcnt(0)
v_mov_b32 v10, s90
v_mov_b32 v11, s92
v_mov_b32 v12, s94
v_mov_b32 v13, s98
s_lshl_b32 s40, s2, 2
s_add_u32 s40, s40, s20
s_lshl_b32 s40, s40, 4
s_add_u32 s40, s40, %d
s_mov_b64 exec, 1
buffer_store_dwordx4 v[10:13], v1, s[12:15], s40 offen
s_waitcnt vmcnt(0)''' % STAMP_BASE)
        a('s_endpgm')
        body = a.finalize(); cold = self.cold.finalize()
        Kn = KN + '_kernel'
        src = HEADER + '; @launch grid=(256,1,1) block=(256,1,1) lds=%d\n' % LDS_BYTES
        src += '.amdgcn_target "amdgcn-amd-amdhsa--gfx950"\n.text\n.globl %s\n.p2align 8\n.type %s,@function\n%s:\n s_cmp_ge_u32 s2, 256\n s_cbranch_scc1 L_done\n' % (Kn, Kn, Kn)
        src += body + '\n' + cold + '\nL_done:\n s_endpgm\n.section .rodata,"a"\n' + kernel_desc(Kn) + '\n'
        return src

if __name__ == '__main__':
    out = sys.argv[1] if len(sys.argv) > 1 else 'fused.s'
    f = Fused(); src = f.build(); open(out, 'w').write(src); print(out, f.a.stats, len(src))
    f = Fused(stamps=True, opt={'stage_marks': True}); src = f.build(); open(out.replace('.s', '_st.s'), 'w').write(src)
    import json; json.dump(f.marks, open(out.replace('.s', '_st.json'), 'w')); print(len(f.marks), 'marks')
```

```python
from asmlib import *
from common import *
import math

S_WV = 20
S_WS = 12
MF = 'v_mfma_f32_16x16x32_bf16'

def lit(x): return '0x%08x' % f32bits(x)

class Regs:
    def __init__(self, base): self.n = base
    def get(self, k=1, align=1):
        self.n = (self.n + align - 1) // align * align
        r = self.n; self.n += k
        return r

def lane_floats(a, vn, vq, fn, fq):
    a('v_and_b32 v%d, 15, v0\nv_lshrrev_b32 v%d, 4, v0\nv_cvt_f32_u32 v%d, v%d\nv_cvt_f32_u32 v%d, v%d' % (vn, vq, fn, vn, fq, vq))

def cos_pairs(a, dst, revs):
    for r in revs: a('v_cos_f32 v%d, v%d' % (r, r))
    for k in range(len(revs) // 2): a('v_cvt_pk_bf16_f32 v%d, v%d, v%d' % (dst + k, revs[2 * k], revs[2 * k + 1]))

class A1:
    def __init__(self, base, base2, lds, sw, gl_lds, s_ax=64, s_gw=68, s_wt=84, wl=None):
        self.S_AX, self.S_GW = s_ax, s_gw
        self.S_WT, self.WL = s_wt, wl
        self.s_rl = 72
        R = Regs(base)
        self.lds, self.sw, self.gl = lds, sw, gl_lds
        self.RP = 1600
        self.XR, self.XL = lds, lds + 8 * self.RP
        if wl is None: self.WL = self.XL + 10240
        self.b1c, self.b1s = R.get(4, 4), R.get(4, 4)
        self.twc, self.tws = R.get(8), R.get(8)
        self.a2r, self.a2i = R.get(12, 4), R.get(12, 4)
        self.r8 = R.get(4, 4)
        self.xa, self.xlw, self.msk, self.xlr = R.get(), R.get(6), R.get(2), R.get()
        self.end1 = R.n
        R = Regs(base2)
        self.dv, self.gx, self.gw = R.get(2), R.get(), R.get(5)
        self.af = R.get(16, 4)
        self.d2 = R.get(24, 4)
        self.d1 = R.get(32, 4)
        self.b2 = R.get(16, 4)
        self.t = R.get(12, 4)
        self.wa = R.get(); self.uo = R.get(5)
        self.wx = [self.d1 + 20 + i for i in range(12)] + [self.t + i for i in range(8)]
        self.end = R.n
    def loads(self, a):
        t = self.t
        a('''v_lshlrev_b32 v%d, 4, v0
v_add_u32 v%d, 1024, v%d
v_mov_b32 v%d, 0x7ffffff0
v_cmp_gt_u32 vcc, 8, v0
v_cndmask_b32 v%d, v%d, v%d, vcc
s_lshl_b32 s46, s%d, 9
s_add_u32 s46, s46, s%d
s_mul_i32 s46, s46, 1152
s_mul_i32 s47, s%d, %d
s_add_u32 s47, s47, %d''' % (self.dv, self.dv + 1, self.dv, t, self.dv + 1, t, self.dv + 1, S_WV, self.sw, S_WV, 2 * self.RP, self.XR))
        for e in range(2):
            for h in range(2):
                a('s_add_u32 s45, s46, %d\ns_add_u32 m0, s47, %d' % (e * 256 * 1152, e * self.RP + h * 1024))
                if h: a('s_mov_b32 exec_hi, 0xf')
                a('buffer_load_dwordx4 v%d, s[%d:%d], s45 offen lds' % (self.dv + h, self.S_AX, self.S_AX + 3), tag='a1x')
                if h: a('s_mov_b64 exec, -1')
        a('v_lshlrev_b32 v%d, 2, v0' % t)
        for i in range(5):
            a('buffer_load_dword v%d, v%d, s[%d:%d], 0 offen offset:%d' % (self.gw + i, t, self.S_GW, self.S_GW + 3, 256 * i), tag='a1g')
    def loads_w(self, a):
        a('''s_mul_i32 s46, s%d, 4624
s_and_b32 s47, s%d, 1
s_mul_i32 s47, s47, 3072
s_add_u32 s46, s46, s47
s_mul_i32 s47, s%d, 3072
s_add_u32 s47, s47, %d''' % (self.sw, S_WV, S_WV, self.WL))
        for i in range(3):
            a('s_add_u32 s45, s46, %d\ns_add_u32 m0, s47, %d' % (1024 * i, 1024 * i))
            a('buffer_load_dwordx4 v%d, s[%d:%d], s45 offen lds' % (self.dv, self.S_WT, self.S_WT + 3), tag='a1w')
    def consts(self, a):
        t = self.t
        vn, vq, fn, fq = t, t + 1, t + 2, t + 3
        x = self.d1
        lane_floats(a, vn, vq, fn, fq)
        a('v_mul_f32 v%d, %s, v%d' % (x + 16, lit(-1 / 24.), fn))
        a('v_mul_f32 v%d, %s, v%d' % (x + 17, lit(8.0), fq))
        a('v_mul_f32 v%d, v%d, v%d' % (x, x + 16, x + 17))
        for i in range(1, 8): a('v_add_f32 v%d, v%d, v%d' % (x + i, x + i - 1, x + 16))
        for i in range(8): a('v_sin_f32 v%d, v%d' % (x + 8 + i, x + i))
        for i in range(8): a('v_cos_f32 v%d, v%d' % (x + i, x + i))
        a('v_cmp_eq_u32 vcc, 3, v%d' % vq)
        for k in range(4):
            a('v_cvt_pk_bf16_f32 v%d, v%d, v%d' % (self.b1c + k, x + 2 * k, x + 2 * k + 1))
            a('v_cvt_pk_bf16_f32 v%d, v%d, v%d' % (self.b1s + k, x + 8 + 2 * k, x + 9 + 2 * k))
        for k in range(4):
            a('v_cndmask_b32_e64 v%d, v%d, 0, vcc' % (self.b1c + k, self.b1c + k))
            a('v_cndmask_b32_e64 v%d, v%d, 0, vcc' % (self.b1s + k, self.b1s + k))
        a('v_mul_f32 v%d, %s, v%d' % (x + 16, lit(-1 / 576.), fn))
        a('v_mul_f32 v%d, 4.0, v%d' % (x + 17, fq))
        a('v_mul_f32 v%d, v%d, v%d' % (x, x + 16, x + 17))
        for r in range(1, 4): a('v_add_f32 v%d, v%d, v%d' % (x + r, x + r - 1, x + 16))
        a('v_mul_f32 v%d, %s, v%d' % (x + 17, lit(16.0), x + 16))
        for r in range(4): a('v_add_f32 v%d, v%d, v%d' % (x + 4 + r, x + r, x + 17))
        for i in range(8): a('v_sin_f32 v%d, v%d' % (self.tws + i, x + i))
        for i in range(8): a('v_cos_f32 v%d, v%d' % (self.twc + i, x + i))
        a('''v_lshrrev_b32 v%d, 1, v%d
v_cvt_f32_u32 v%d, v%d
v_and_b32 v%d, 1, v%d
v_cvt_f32_u32 v%d, v%d''' % (x + 16, vn, x + 16, x + 16, x + 17, vn, x + 17, x + 17))
        a('v_mul_f32 v%d, %s, v%d' % (x + 17, lit(0.25), x + 17))
        a('v_mul_f32 v%d, 4.0, v%d' % (x + 18, fq))
        a('v_cmp_lt_u32 vcc, 1, v%d' % vq)
        for blk in range(3):
            a('v_add_f32 v%d, %s, v%d' % (x + 19, lit(8.0 * blk), x + 16))
            a('v_mul_f32 v%d, %s, v%d' % (x + 19, lit(1 / 24.), x + 19))
            a('v_fma_f32 v%d, v%d, v%d, v%d' % (x, x + 19, x + 18, x + 17))
            for i in range(1, 4): a('v_add_f32 v%d, v%d, v%d' % (x + i, x + i - 1, x + 19))
            a('v_mul_f32 v%d, %s, v%d' % (x + 20, lit(16.0), x + 19))
            for i in range(4): a('v_add_f32 v%d, v%d, v%d' % (x + 4 + i, x + i, x + 20))
            for i in range(8): a('v_add_f32 v%d, %s, v%d' % (x + 8 + i, lit(-0.25), x + i))
            cos_pairs(a, self.a2r + 4 * blk, [x + i for i in range(8)])
            cos_pairs(a, self.a2i + 4 * blk, [x + 8 + i for i in range(8)])
            for k in (2, 3):
                a('v_cndmask_b32_e64 v%d, v%d, 0, vcc' % (self.a2r + 4 * blk + k, self.a2r + 4 * blk + k))
                a('v_cndmask_b32_e64 v%d, v%d, 0, vcc' % (self.a2i + 4 * blk + k, self.a2i + 4 * blk + k))
        self.r8_consts(a, self.r8, +1, x, vn, vq, fq)
        self.addresses(a, vn, vq)
    def r8_consts(self, a, dst, sgn, x, vn, vq, fq):
        a('''v_lshrrev_b32 v%d, 1, v%d
v_cvt_f32_u32 v%d, v%d
v_and_b32 v%d, 1, v%d
v_cvt_f32_u32 v%d, v%d
v_cvt_f32_u32 v%d, s%d''' % (x + 16, vn, x + 16, x + 16, x + 17, vn, x + 17, x + 17, x + 18, self.sw))
        a('v_mul_f32 v%d, %s, v%d' % (x + 17, lit(0.25 * sgn), x + 17))
        if sgn > 0:
            a('v_mul_f32 v%d, %s, v%d' % (x + 18, lit(1 / 256.), x + 18))
            a('v_fma_f32 v%d, %s, v%d, v%d' % (x + 18, '4.0', fq, x + 18))
            a('v_mul_f32 v%d, %s, v%d' % (x + 19, lit(0.125), x + 16))
            a('v_fma_f32 v%d, v%d, v%d, v%d' % (x, x + 18, x + 19, x + 17))
            for jj in range(1, 4): a('v_add_f32 v%d, v%d, v%d' % (x + 2 * jj, x + 2 * jj - 2, x + 19))
        else:
            a('v_mul_f32 v%d, %s, v%d' % (x + 18, lit(1 / 256.), x + 18))
            a('v_add_f32 v%d, v%d, v%d' % (x + 18, x + 18, x + 16))
            a('v_mul_f32 v%d, %s, v%d' % (x + 19, lit(0.125), x + 18))
            a('v_mul_f32 v%d, 4.0, v%d' % (x + 18, fq))
            a('v_fma_f32 v%d, v%d, v%d, v%d' % (x, x + 18, x + 19, x + 17))
            for jj in range(1, 4): a('v_add_f32 v%d, v%d, v%d' % (x + 2 * jj, x + 2 * jj - 2, x + 19))
        for jj in range(4): a('v_add_f32 v%d, %s, v%d' % (x + 2 * jj + 1, lit(-0.25 * sgn), x + 2 * jj))
        cos_pairs(a, dst, [x + i for i in range(8)])
        a('v_cmp_lt_u32 vcc, 1, v%d' % vq)
        for k in range(4): a('v_cndmask_b32_e64 v%d, v%d, 0, vcc' % (dst + k, dst + k))
    def addresses(self, a, vn, vq):
        x = self.d1
        a('''v_lshrrev_b32 v%d, 2, v%d
v_lshl_add_u32 v%d, v%d, 3, v%d
v_mul_u32_u24 v%d, 48, v%d
v_and_b32 v%d, 3, v0
v_lshl_add_u32 v%d, v%d, 3, v%d
s_mul_i32 s46, s%d, %d
s_add_u32 s46, s46, %d
v_add_u32 v%d, s46, v%d''' % (x, vn, x, vq, x, x, x, x + 1, x, x + 1, x, S_WV, 2 * self.RP, self.XR, self.xa, x))
        a('s_lshl_b32 s46, s%d, 3\ns_add_u32 s46, s46, %d' % (S_WV, self.XL))
        for blk in range(3):
            for rr in range(2):
                d = self.xlw + 2 * blk + rr
                a('''v_lshl_add_u32 v%d, v%d, 1, %d
v_mul_u32_u24 v%d, 24, v%d
v_add_u32 v%d, v%d, v%d
v_sub_u32 v%d, 576, v%d
v_cmp_lt_u32 vcc, 288, v%d
v_cndmask_b32 v%d, v%d, v%d, vcc''' % (x, vq, 8 * blk + rr, x, x, x, x, vn, x + 1, x, x, x + 2, x, x + 1))
                if blk == 1:
                    a('v_mov_b32 v%d, 0x80000000\nv_cndmask_b32_e64 v%d, 0, v%d, vcc' % (x + 3, self.msk + rr, x + 3))
                a('''v_cmp_lt_u32 s[46:47], 12, v%d
v_add_u32 v%d, -1, v%d
v_cmp_lt_u32 s[48:49], 10, v%d
s_and_b64 s[48:49], s[48:49], vcc
s_or_b64 s[48:49], s[48:49], s[46:47]
v_mov_b32 v%d, 300
v_cndmask_b32_e64 v%d, v%d, v%d, s[48:49]
s_lshl_b32 s46, s%d, 3
s_add_u32 s46, s46, %d
v_lshlrev_b32 v%d, 5, v%d
v_add_u32 v%d, s46, v%d''' % (vn, x + 3, vn, x + 3, x + 3, x + 2, x + 2, x + 3, S_WV, self.XL, x + 2, x + 2, d, x + 2))
        a('''s_lshl_b32 s46, s%d, 9
s_add_u32 s46, s46, %d
v_and_b32 v%d, 1, v%d
v_lshlrev_b32 v%d, 4, v%d
v_lshl_add_u32 v%d, v%d, 5, v%d
v_add_u32 v%d, s46, v%d
v_lshlrev_b32 v%d, 2, v0
s_mul_i32 s46, s%d, %d
s_add_u32 s46, s46, %d
v_add_u32 v%d, s46, v%d''' % (S_WV, self.XL, x, vq, x, x, x, vn, x, self.xlr, x, x, S_WV, 2 * self.RP, self.XR, self.gx, x))
        a('v_mul_u32_u24 v%d, %d, v%d' % (x + 3, 2 * 25 * 128, vq))
        for i in range(5):
            a('s_lshl_b32 s46, s%d, 4\ns_add_u32 s46, s46, %d\nv_add_u32 v%d, s46, v%d' % (S_WV, 64 * i, x, vn))
            a('v_mul_u32_u24 v%d, 5462, v%d\nv_lshrrev_b32 v%d, 16, v%d' % (x + 1, x, x + 1, x + 1))
            a('v_mul_u32_u24 v%d, 12, v%d\nv_sub_u32 v%d, v%d, v%d' % (x + 2, x + 1, x + 2, x, x + 2))
            a('v_lshlrev_b32 v%d, 7, v%d\nv_lshl_add_u32 v%d, v%d, 3, v%d' % (x + 1, x + 1, x + 2, x + 2, x + 1))
            a('v_add_u32 v%d, v%d, v%d\nv_add_u32 v%d, %d, v%d' % (x + 2, x + 2, x + 3, self.uo + i, self.lds, x + 2))
            if i == 4:
                a('v_mov_b32 v%d, %d\nv_cmp_gt_u32 vcc, 300, v%d\nv_cndmask_b32 v%d, v%d, v%d, vcc' % (x + 1, self.lds + 200 * 128, x, self.uo + i, x + 1, self.uo + i))
        a('''v_mul_u32_u24 v%d, 1156, v%d
v_lshl_add_u32 v%d, v%d, 1, v%d
s_lshl_b32 s46, s%d, 5
s_add_u32 s46, s46, %d
v_add_u32 v%d, s46, v%d''' % (x, vq, x, vn, x, S_WV, self.WL, self.wa, x))
    def compute(self, a, stflags='sc1', gate_to=None):
        t = self.t
        a.wait_vm('a1x')
        for e in range(2):
            for i in range(5): a('ds_read_b32 v%d, v%d offset:%d' % (self.d2 + 5 * e + i, self.gx, e * self.RP + 256 * i))
        for e in range(2):
            for mb in range(2):
                r = self.af + 8 * e + 4 * mb
                a('ds_read_b64_tr_b16 v[%d:%d], v%d offset:%d' % (r, r + 1, self.xa, e * self.RP + 32 * mb))
                a('ds_read_b64_tr_b16 v[%d:%d], v%d offset:%d' % (r + 2, r + 3, self.xa, e * self.RP + 32 * mb + 192))
        for e in range(2):
            for mb in range(2):
                r = self.af + 8 * e + 4 * mb
                for c, B in enumerate((self.b1c, self.b1s)):
                    d = self.d1 + 16 * e + 8 * c + 4 * mb
                    a('%s v[%d:%d], v[%d:%d], v[%d:%d], 0' % (MF, d, d + 3, r, r + 3, B, B + 3))
        for e in range(2):
            a('v_mov_b32 v%d, 0' % (t + e))
            for i in range(5): a('v_dot2_f32_bf16 v%d, v%d, v%d, v%d' % (t + e, self.d2 + 5 * e + i, self.gw + i, t + e))
        for e in range(2):
            for mb in range(2):
                for r in range(4):
                    re = self.d1 + 16 * e + 4 * mb + r; im = re + 8
                    c, s = self.twc + 4 * mb + r, self.tws + 4 * mb + r
                    a('v_mul_f32 v%d, v%d, v%d' % (t + 2, im, s))
                    a('v_mul_f32 v%d, v%d, v%d' % (im, im, c))
                    a('v_fma_f32 v%d, v%d, v%d, v%d' % (im, re, s, im))
                    a('v_fma_f32 v%d, v%d, v%d, -v%d' % (re, re, c, t + 2))
            for c in range(2):
                for k in range(4):
                    src = self.d1 + 16 * e + 8 * c + 2 * k
                    a('v_cvt_pk_bf16_f32 v%d, v%d, v%d' % (self.b2 + 8 * e + 4 * c + k, src, src + 1))
        for e in range(2):
            for blk in range(3):
                d = self.d1 + 16 * e + 4 * blk
                br, bi = self.b2 + 8 * e, self.b2 + 8 * e + 4
                a('%s v[%d:%d], v[%d:%d], v[%d:%d], 0' % (MF, d, d + 3, self.a2r + 4 * blk, self.a2r + 4 * blk + 3, br, br + 3))
                a('%s v[%d:%d], v[%d:%d], v[%d:%d], v[%d:%d]' % (MF, d, d + 3, self.a2i + 4 * blk, self.a2i + 4 * blk + 3, bi, bi + 3, d, d + 3))
        for sh in (8, 4, 2, 1):
            for e in range(2): a('v_add_f32_dpp v%d, v%d, v%d row_ror:%d row_mask:0xf bank_mask:0xf' % (t + e, t + e, t + e, sh))
        for e in range(2):
            for k in range(4): a('v_readlane_b32 s%d, v%d, %d' % (self.s_rl + 4 * e + k, t + e, 16 * k))
        for e in range(2):
            a('v_mov_b32 v%d, s%d' % (t + e, self.s_rl + 4 * e))
            for k in range(1, 4): a('v_add_f32 v%d, s%d, v%d' % (t + e, self.s_rl + 4 * e + k, t + e))
            a('v_cvt_pk_bf16_f32 v%d, v%d, v%d' % (t + e, t + e, t + e))
            a('v_lshlrev_b32 v%d, 16, v%d' % (t + e, t + e))
            a('v_mul_f32 v%d, %s, v%d' % (t + e, lit(-math.log2(math.e)), t + e))
            a('v_exp_f32 v%d, v%d' % (t + e, t + e))
            a('v_add_f32 v%d, 1.0, v%d' % (t + e, t + e))
            a('v_rcp_f32 v%d, v%d' % (t + e, t + e))
            a('v_cvt_pk_bf16_f32 v%d, v%d, v%d' % (t + e, t + e, t + e))
            a('v_lshlrev_b32 v%d, 16, v%d' % (t + e, t + e))
        gate_to(a, t)
        for e in range(2):
            for blk in range(3):
                for rr in range(2):
                    src = self.d1 + 16 * e + 4 * blk + 2 * rr
                    p = self.b2 + (blk * 2 + rr)
                    a('v_cvt_pk_bf16_f32 v%d, v%d, v%d' % (p, src, src + 1))
                    if blk == 1: a('v_xor_b32 v%d, v%d, v%d' % (p, self.msk + rr, p))
                    if blk == 2: a('v_xor_b32 v%d, 0x80000000, v%d' % (p, p))
                    a('ds_write_b32 v%d, v%d offset:%d' % (self.xlw + 2 * blk + rr, p, 4 * e), tag='xl')
        a.wait_lgkm('xl')
        a.wait_vm('a1w')
        a('s_barrier')
        for i in range(5):
            a('ds_read_b128 v[%d:%d], v%d offset:%d' % (self.d2 + 4 * i, self.d2 + 4 * i + 3, self.xlr, i * 4 * 512))
        for i in range(5):
            for rr in range(2):
                for k in range(2):
                    a('ds_read_u16 v%d, v%d offset:%d' % (self.wx[4 * i + 2 * rr + k], self.wa, k * 6144 + rr * 578 + i * 128))
        for i in range(5):
            d = self.d1 + 4 * i
            a('%s v[%d:%d], v[%d:%d], v[%d:%d], 0' % (MF, d, d + 3, self.r8, self.r8 + 3, self.d2 + 4 * i, self.d2 + 4 * i + 3))
        for i in range(5):
            d = self.d1 + 4 * i; p = self.af + 4 * (i % 4) if i < 4 else self.b2
            for rr in range(2):
                w0, w1 = self.wx[4 * i + 2 * rr], self.wx[4 * i + 2 * rr + 1]
                a('v_cvt_pk_bf16_f32 v%d, v%d, v%d' % (p + 2 * rr, d + 2 * rr, d + 2 * rr + 1))
                a('v_lshl_or_b32 v%d, v%d, 16, v%d' % (p + 2 * rr + 1, w1, w0))
        a('s_barrier')
        for i in range(5):
            p = self.af + 4 * (i % 4) if i < 4 else self.b2
            for rr in range(2):
                a('ds_write_b64 v%d, v[%d:%d] offset:%d' % (self.uo + i, p + 2 * rr, p + 2 * rr + 1, rr * 25 * 128), tag='usg')
        t = self.t
        a('''v_lshrrev_b32 v%d, 3, v0
v_and_b32 v%d, 7, v0
v_lshlrev_b32 v%d, 4, v%d
v_lshl_add_u32 v%d, v%d, 15, v%d
s_mul_i32 s46, s%d, 7168
s_add_u32 s46, s46, %d
v_lshlrev_b32 v%d, 4, v0
v_add_u32 v%d, s46, v%d
s_and_b32 s46, s%d, 15
s_lshl_b32 s46, s46, 4
s_lshr_b32 s47, s%d, 4
s_add_u32 s46, s46, s47
s_lshl_b32 s46, s46, 7
s_mul_i32 s47, s%d, %d
s_add_u32 s46, s46, s47
s_add_u32 s46, s46, %d''' % (t, t + 1, t + 1, t + 1, t, t, t + 1, S_WV, self.lds, t + 1, t + 1, t + 1, self.sw, self.sw, S_WV, 7 * 8 * U_BLK, U_BASE))
        a.wait_lgkm('usg')
        a('s_barrier')
        for i in range(7):
            a('ds_read_b128 v[%d:%d], v%d offset:%d' % (self.d1 + 4 * i, self.d1 + 4 * i + 3, t + 1, i * 1024))
        for i in range(7):
            a('s_add_u32 s47, s46, %d' % (i * 8 * U_BLK))
            if i >= 4: a('s_cmp_eq_u32 s%d, 3\ns_cselect_b32 s47, 0x7ff00000, s47' % S_WV)
            a('buffer_store_dwordx4 v[%d:%d], v%d, s[%d:%d], s47 offen %s' % (self.d1 + 4 * i, self.d1 + 4 * i + 3, t, S_WS, S_WS + 3, stflags), tag='ust')

class A2:
    S_WR = 64
    S_WI = 68
    def __init__(self, ubase, base, lds, sb, wbase=None, tbase=None):
        self.lds, self.sb = lds, sb
        self.PU = 1040
        self.LU, self.LW, self.LT = lds, lds + 12 * self.PU, lds + 24 * self.PU
        R = Regs(ubase)
        self.u = R.get(32, 4)
        self.wraw = R.get(16, 4) if wbase is None else wbase
        self.uend = R.n
        self.shr = self.wraw + 7
        R = Regs(base)
        self.fre, self.fim = R.get(4, 4), R.get(4, 4)
        self.tc, self.ts, self.tc2, self.ts2 = R.get(4, 4), R.get(4, 4), R.get(4), R.get(4)
        self.rd, self.tw, self.ow, self.wt, self.sh = R.get(), R.get(), R.get(), R.get(), R.get()
        self.ord = R.get(3)
        self.af = R.get(12, 4)
        self.wf = R.get(12, 4)
        self.dr = R.get(12, 4); self.di = R.get(12, 4)
        self.bf = R.get(12, 4)
        self.t = R.get(24, 4) if tbase is None else tbase
        self.end = R.n
    def gather_addr(self, a, t):
        a('''s_lshl_b32 s46, s%d, 2
v_lshrrev_b32 v%d, 4, v0
v_add_u32 v%d, s46, v%d
v_and_b32 v%d, 15, v0
v_lshl_add_u32 v%d, v%d, 4, v%d
s_and_b32 s46, s%d, 7
s_lshr_b32 s47, s%d, 3
v_mul_u32_u24 v%d, %d, v%d
s_mul_i32 s48, s46, %d
s_mul_i32 s49, s47, 48
s_add_u32 s48, s48, s49
s_add_u32 s48, s48, %d
v_lshl_add_u32 v%d, v%d, 3, s46
v_mul_u32_u24 v%d, 289, v%d
s_mul_i32 s49, s47, 12
v_add_u32 v%d, s49, v%d
v_lshlrev_b32 v%d, 1, v%d''' % (S_WV, t + 2, t + 2, t + 2, t + 3, t + 2, t + 3, t + 2,
                                self.sb, self.sb, t, U_W, t + 2, U_R, U_BASE,
                                t + 1, t + 2, t + 1, t + 1, t + 1, t + 1, t + 1, t + 1))
    def w_addr_ops(self, dst, t):
        return ('''s_lshl_b32 s44, s%d, 2
v_lshrrev_b32 v%d, 4, v0
v_add_u32 v%d, s44, v%d
v_and_b32 v%d, 15, v0
v_lshl_add_u32 v%d, v%d, 4, v%d
s_and_b32 s44, s%d, 7
s_lshr_b32 s45, s%d, 3
s_mul_i32 s45, s45, 12
v_lshl_add_u32 v%d, v%d, 3, s44
v_mul_u32_u24 v%d, 289, v%d
v_add_u32 v%d, s45, v%d
v_lshlrev_b32 v%d, 1, v%d''' % (S_WV, t, t, t, t + 1, t, t + 1, t, self.sb, self.sb, t, t, t, t, t, t, dst, t)).split('\n')
    def w_dma_ops(self, addr, raw):
        L = []
        for k, srd in enumerate((self.S_WR, self.S_WI)):
            for h in range(2):
                L.append([('S', 's_lshl_b32 s44, s%d, 10' % S_WV),
                          ('S', 's_add_u32 m0, s44, %d' % (raw + (2 * k + h) * 4096 - 16 * h)),
                          ('M', ('buffer_load_dwordx4 v%d, s[%d:%d], 0 offen offset:%d lds' % (addr, srd, srd + 3, 16 * h), 'a2w'))])
        return L
    def w_from_lds(self, a, raw, byteoff):
        t = self.t
        a('s_lshl_b32 s46, s%d, 10\ns_add_u32 s46, s46, %d\nv_lshlrev_b32 v%d, 4, v0\nv_add_u32 v%d, s46, v%d' % (S_WV, raw, t, t, t))
        for k in range(2):
            for h in range(2):
                r = self.wraw + 8 * k + 4 * h
                a('ds_read_b128 v[%d:%d], v%d offset:%d' % (r, r + 3, t, (2 * k + h) * 4096))
        a('v_and_b32 v%d, 2, v%d\nv_lshlrev_b32 v%d, 3, v%d' % (self.shr, byteoff, self.shr, self.shr))
    def u_base_ops(self, s_off):
        return ['s_and_b32 s44, s%d, 7' % self.sb, 's_mul_i32 s44, s44, 25', 's_lshr_b32 s45, s%d, 3' % self.sb, 's_add_u32 s44, s44, s45',
                's_mul_i32 s44, s44, %d' % U_BLK, 's_lshl_b32 s45, s%d, 13' % S_WV, 's_add_u32 s44, s44, s45', 's_add_u32 s%d, s44, %d' % (s_off, U_BASE)]
    def u_load_ops(self, s_off, ldflags='sc1'):
        L = []
        for k in range(8):
            L.append(['s_add_u32 s45, s%d, %d' % (s_off, 1024 * k),
                      ('buffer_load_dwordx4 v[%d:%d], v1, s[%d:%d], s45 offen %s' % (self.u + 4 * k, self.u + 4 * k + 3, S_WS, S_WS + 3, ldflags), 'a2u')])
        return L
    def loads_w(self, a, t):
        a('v_and_b32 v%d, -4, v%d' % (t + 2, t + 1))
        for k, srd in enumerate((self.S_WR, self.S_WI)):
            r = self.wraw + 8 * k
            a('buffer_load_dwordx4 v[%d:%d], v%d, s[%d:%d], 0 offen' % (r, r + 3, t + 2, srd, srd + 3), tag='a2w')
            a('buffer_load_dwordx3 v[%d:%d], v%d, s[%d:%d], 0 offen offset:16' % (r + 4, r + 6, t + 2, srd, srd + 3), tag='a2w')
        a('v_and_b32 v%d, 2, v%d\nv_lshlrev_b32 v%d, 3, v%d' % (self.wraw + 7, t + 1, self.wraw + 7, self.wraw + 7))
    def loads_u(self, a, t, ldflags='sc1'):
        for k in range(3):
            a('buffer_load_dwordx4 v[%d:%d], v%d, s[%d:%d], s48 offen offset:%d %s' % (self.u + 4 * k, self.u + 4 * k + 3, t, S_WS, S_WS + 3, 16 * k, ldflags), tag='a2u')
    def float_consts(self, a, t, fre, fim, tc, ts):
        vn, vq, fn, fq = t, t + 1, t + 2, t + 3
        x = t + 4
        lane_floats(a, vn, vq, fn, fq)
        a('v_mul_f32 v%d, %s, v%d' % (x + 16, lit(1 / 16.), fn))
        a('v_mul_f32 v%d, 4.0, v%d' % (x + 17, fq))
        a('v_mul_f32 v%d, v%d, v%d' % (x, x + 16, x + 17))
        for j in range(1, 4): a('v_add_f32 v%d, v%d, v%d' % (x + j, x + j - 1, x + 16))
        for j in range(4): a('v_sin_f32 v%d, v%d' % (x + 4 + j, x + j))
        for j in range(4): a('v_cos_f32 v%d, v%d' % (x + j, x + j))
        for j in range(4):
            a('v_cvt_pk_bf16_f32 v%d, v%d, v%d' % (fre + j, x + j, x + 4 + j))
            a('v_cvt_pk_bf16_f32 v%d, -v%d, v%d' % (fim + j, x + 4 + j, x + j))
        a('v_mul_f32 v%d, %s, v%d' % (x + 16, lit(-1 / 256.), fn))
        a('v_mul_f32 v%d, v%d, v%d' % (x + 8, x + 16, x + 17))
        for j in range(1, 4): a('v_add_f32 v%d, v%d, v%d' % (x + 8 + j, x + 8 + j - 1, x + 16))
        for j in range(4): a('v_sin_f32 v%d, v%d' % (ts + j, x + 8 + j))
        for j in range(4): a('v_cos_f32 v%d, v%d' % (tc + j, x + 8 + j))
    def scaled_twiddles(self, a):
        sc = 1.0 / (2048.0 * 576.0)
        for j in range(4):
            a('v_mul_f32 v%d, %s, v%d' % (self.ts2 + j, lit(sc), self.ts + j))
            a('v_mul_f32 v%d, %s, v%d' % (self.tc2 + j, lit(sc), self.tc + j))
    def consts(self, a):
        self.float_consts(a, self.t, self.fre, self.fim, self.tc, self.ts)
        self.scaled_twiddles(a)
        self.addresses(a)
    def addresses(self, a):
        t = self.t
        vn, vq = t, t + 1
        x = t + 4
        a('v_and_b32 v%d, 15, v0\nv_lshrrev_b32 v%d, 4, v0' % (vn, vq))
        PU = self.PU
        a('''v_lshlrev_b32 v%d, 6, v%d
v_lshl_add_u32 v%d, v%d, 4, v%d
s_mul_i32 s46, s%d, %d
s_add_u32 s47, s46, %d
v_add_u32 v%d, s47, v%d
s_lshl_b32 s45, s%d, 10
s_add_u32 s45, s45, %d
v_add_u32 v%d, s45, v%d
v_lshlrev_b32 v%d, 8, v%d
v_lshl_add_u32 v%d, v%d, 2, v%d
v_add_u32 v%d, s45, v%d
v_add_u32 v%d, s47, v%d''' % (x, vn, x, vq, x, S_WV, PU, self.LU, self.rd, x, S_WV, self.LT, self.sh, x,
                              x + 1, vq, x + 1, vn, x + 1, self.tw, x + 1, self.ow, x + 1))
        a('''v_and_b32 v%d, 7, v0
v_mul_u32_u24 v%d, %d, v%d
v_lshrrev_b32 v%d, 3, v0
v_lshl_add_u32 v%d, v%d, 2, v%d
s_lshl_b32 s46, s%d, 8
s_add_u32 s46, s46, %d
v_add_u32 v%d, s46, v%d''' % (x, x, 2 * PU, x, x + 1, x, x + 1, x, S_WV, self.LU, self.wt, x))
        for i in range(3):
            a('''s_mul_i32 s46, s%d, 192
s_add_u32 s46, s46, %d
v_add_u32 v%d, s46, v0
v_mul_u32_u24 v%d, 21846, v%d
v_lshrrev_b32 v%d, 16, v%d
v_mul_u32_u24 v%d, 3, v%d
v_sub_u32 v%d, v%d, v%d
v_mul_u32_u24 v%d, %d, v%d
v_lshl_add_u32 v%d, v%d, 2, v%d
v_add_u32 v%d, %d, v%d''' % (S_WV, 64 * i, x, x + 1, x, x + 1, x + 1, x + 2, x + 1, x + 2, x, x + 2, x + 2, 4 * PU, x + 2,
                             x + 2, x + 1, x + 2, self.ord + i, self.LU, x + 2))
    def stage_in(self, a):
        PU = self.PU
        a('s_mov_b32 s46, 0x3f3f3f3f\ns_mov_b32 s47, 0x3f3f3f3f')
        a.wait_vm('a2u')
        a('s_mov_b64 exec, s[46:47]')
        for k in range(8):
            r = self.u + 4 * k
            for e in range(4):
                a('ds_write_b32 v%d, v%d offset:%d' % (self.wt, r + e, 32 * k + (e >> 1) * PU + (e & 1) * 12 * PU), tag='a2s')
        a('s_mov_b64 exec, -1')
        a.wait_lgkm('a2s')
        a('s_barrier')
    def cmul(self, a, re, im, c, s, tmp):
        a('v_mul_f32 v%d, v%d, v%d' % (tmp, im, s))
        a('v_mul_f32 v%d, v%d, v%d' % (im, im, c))
        a('v_fma_f32 v%d, v%d, v%d, v%d' % (im, re, s, im))
        a('v_fma_f32 v%d, v%d, v%d, -v%d' % (re, re, c, tmp))
    def compute(self, a, before_bar=None, after_bar=None):
        t = self.t
        U3 = range(3)
        off = lambda i: i * 4 * self.PU
        for i in U3:
            a('ds_read_b128 v[%d:%d], v%d offset:%d' % (self.af + 4 * i, self.af + 4 * i + 3, self.rd, off(i)))
        for i in U3:
            a('ds_read_b128 v[%d:%d], v%d offset:%d' % (self.wf + 4 * i, self.wf + 4 * i + 3, self.rd, 12 * self.PU + off(i)))
        def mm(dst, A, B): a('%s v[%d:%d], v[%d:%d], v[%d:%d], 0' % (MF, dst, dst + 3, A, A + 3, B, B + 3))
        for i in U3:
            mm(self.dr + 4 * i, self.af + 4 * i, self.fre); mm(self.di + 4 * i, self.af + 4 * i, self.fim)
        for i in U3:
            for r in range(4):
                self.cmul(a, self.dr + 4 * i + r, self.di + 4 * i + r, self.tc + r, self.ts + r, t + r)
            for r in range(4): a('v_cvt_pk_bf16_f32 v%d, v%d, v%d' % (self.bf + 4 * i + r, self.dr + 4 * i + r, self.di + 4 * i + r))
        for i in U3:
            mm(self.dr + 4 * i, self.fre, self.bf + 4 * i); mm(self.di + 4 * i, self.fim, self.bf + 4 * i)
        for i in U3:
            for r in range(4):
                w = self.wf + 4 * i + r; xr, xi = self.dr + 4 * i + r, self.di + 4 * i + r
                wr, wi = t + 2 * r, t + 2 * r + 1
                a('v_lshlrev_b32 v%d, 16, v%d\nv_and_b32 v%d, 0xffff0000, v%d' % (wr, w, wi, w))
                self.cmul(a, xr, xi, wr, wi, t + 8 + r)
            for r in range(4): a('v_cvt_pk_bf16_f32 v%d, v%d, -v%d' % (self.bf + 4 * i + r, self.dr + 4 * i + r, self.di + 4 * i + r))
        for i in U3:
            mm(self.dr + 4 * i, self.fre, self.bf + 4 * i); mm(self.di + 4 * i, self.fim, self.bf + 4 * i)
        for i in U3:
            for r in range(4):
                self.cmul(a, self.dr + 4 * i + r, self.di + 4 * i + r, self.tc2 + r, self.ts2 + r, t + r)
            for r in range(4):
                a('v_cvt_pk_bf16_f32 v%d, v%d, v%d' % (self.bf + 4 * i + r, self.dr + 4 * i + r, self.di + 4 * i + r))
                a('ds_write_b32 v%d, v%d offset:%d' % (self.tw, self.bf + 4 * i + r, r * 64), tag=('a2t', i))
            a.wait_lgkm(('a2t', i))
            a('ds_read_b128 v[%d:%d], v%d offset:%d' % (self.af + 4 * i, self.af + 4 * i + 3, self.rdT(a), 0), tag=('a2r', i))
            a.wait_lgkm(('a2r', i))
        for i in U3:
            mm(self.dr + 4 * i, self.af + 4 * i, self.fre); mm(self.di + 4 * i, self.af + 4 * i, self.fim)
        for i in U3:
            for r in range(4):
                a('v_cvt_pk_bf16_f32 v%d, v%d, -v%d' % (self.bf + 4 * i + r, self.dr + 4 * i + r, self.di + 4 * i + r))
                a('ds_write_b32 v%d, v%d offset:%d' % (self.ow, self.bf + 4 * i + r, off(i) + r * 64), tag='a2o')
        a.wait_lgkm('a2o')
        if before_bar: before_bar(a)
        a('s_barrier')
        if after_bar: after_bar(a)
    def rdT(self, a):
        return self.sh
    def addr_T(self, a):
        pass
    def stage_out(self, a, stflags='sc1'):
        t = self.t
        a('''s_and_b32 s46, s%d, 7
s_mul_i32 s46, s46, 25
s_lshr_b32 s47, s%d, 3
s_add_u32 s46, s46, s47
s_mul_i32 s46, s46, %d
s_mul_i32 s47, s%d, 3072
s_add_u32 s46, s46, s47
s_add_u32 s46, s46, %d
v_lshlrev_b32 v%d, 4, v0''' % (self.sb, self.sb, V_BLK, S_WV, V_BASE, t + 12))
        for i in range(3):
            for e in range(4): a('ds_read_b32 v%d, v%d offset:%d' % (t + 4 * i + e, self.ord + i, e * self.PU))
        for i in range(3):
            a('buffer_store_dwordx4 v[%d:%d], v%d, s[%d:%d], s46 offen offset:%d %s' % (t + 4 * i, t + 4 * i + 3, t + 12, S_WS, S_WS + 3, i * 1024, stflags), tag='vst')

class A3:
    S_OUT = 64
    PITCH = 1536
    def __init__(self, base, lds, sw, gate_lds, vreg=None, abase=None, tbase=None):
        self.lds, self.sw, self.gl = lds, sw, gate_lds
        self.VL = lds
        self.YR = lds + 10240
        self.YI = self.YR + 8 * self.PITCH
        self.AO = self.YI + 8 * self.PITCH
        R = Regs(base)
        self.v = R.get(12, 4) if vreg is None else vreg
        self.p = R.get(48, 4)
        self.r8 = R.get(4, 4)
        self.cs, self.sn, self.ns = R.get(8, 4), R.get(8, 4), R.get(8, 4)
        self.twc, self.tws = R.get(8, 4), R.get(8, 4)
        self.ab = R.get(8, 4)
        self.d = R.get(32, 4)
        self.f = R.get(16, 4)
        if abase is not None: self.end0 = R.n; R = Regs(abase)
        self.vw, self.vr, self.yd, self.ym, self.imk, self.ya = R.get(), R.get(), R.get(5), R.get(5), R.get(5), R.get()
        self.aow = R.get(4)
        self.item = R.get(3); self.oaddr = R.get(3); self.aor = R.get(3); self.gad = R.get(3)
        self.t = R.get(24, 4) if tbase is None else tbase
        self.end = R.n
        self.tt = self.t
        self.xx = self.d
    def v_addr_ops(self, t):
        return ('''s_lshl_b32 s44, s%d, 6
v_add_u32 v%d, s44, v0
v_and_b32 v%d, 7, v%d
v_lshrrev_b32 v%d, 3, v%d
v_mul_u32_u24 v%d, 25, v%d
v_add_u32 v%d, v%d, v%d
v_mul_u32_u24 v%d, %d, v%d
s_and_b32 s45, s%d, 15
s_lshl_b32 s45, s45, 4
s_lshr_b32 s44, s%d, 4
s_add_u32 s45, s45, s44
s_mul_i32 s45, s45, 48
s_add_u32 s45, s45, %d
v_cmp_gt_u32 vcc, 200, v%d
v_mov_b32 v%d, 0x7ffffff0
v_cndmask_b32 v%d, v%d, v%d, vcc''' % (S_WV, t, t + 1, t, t + 2, t, t + 3, t + 1, t + 3, t + 3, t + 2, t + 3, V_BLK, t + 3,
                                      self.sw, self.sw, V_BASE, t, t + 4, t + 3, t + 4, t + 3)).split('\n')
    def v_load_ops(self, t, ldflags='sc1'):
        return [('buffer_load_dwordx4 v[%d:%d], v%d, s[%d:%d], s45 offen offset:%d %s' % (self.v + 4 * k, self.v + 4 * k + 3, t + 3, S_WS, S_WS + 3, 16 * k, ldflags), 'a3v') for k in range(3)]
    def v_lds_addr(self, a):
        t = self.tt
        a('''s_lshl_b32 s46, s%d, 6
v_add_u32 v%d, s46, v0
v_and_b32 v%d, 7, v%d
v_lshrrev_b32 v%d, 3, v%d
v_mul_u32_u24 v%d, 384, v%d
v_lshl_add_u32 v%d, v%d, 2, v%d
v_add_u32 v%d, %d, v%d
v_mov_b32 v%d, %d
v_cmp_gt_u32 vcc, 200, v%d
v_cndmask_b32 v%d, v%d, v%d, vcc''' % (S_WV, t, t + 1, t, t + 2, t, t + 4, t + 2, t + 4, t + 1, t + 4, t + 4, self.VL, t + 4, t + 5, self.VL + 304 * 32, t, self.vw, t + 5, t + 4))
    def v_loads(self, a, ldflags='sc1'):
        t = self.t
        for o in self.v_addr_ops(t): a(o)
        for o, tg in self.v_load_ops(t, ldflags): a(o, tag=tg)
        self.v_lds_addr(a)
    def item_addr(self, a):
        t = self.tt
        for i in range(3):
            a('''s_lshl_b32 s46, s%d, 6
s_add_u32 s46, s46, %d
v_add_u32 v%d, s46, v0''' % (S_WV, 256 * i, t))
            a('v_mul_u32_u24 v%d, 911, v%d\nv_lshrrev_b32 v%d, 16, v%d' % (t + 1, t, t + 1, t + 1))
            a('v_mul_u32_u24 v%d, 72, v%d\nv_sub_u32 v%d, v%d, v%d' % (t + 2, t + 1, t + 2, t, t + 2))
            a('v_mul_u32_u24 v%d, 3641, v%d\nv_lshrrev_b32 v%d, 16, v%d' % (t + 3, t + 2, t + 3, t + 3))
            a('v_mul_u32_u24 v%d, 18, v%d\nv_sub_u32 v%d, v%d, v%d' % (t + 4, t + 3, t + 4, t + 2, t + 4))
            a('v_lshlrev_b32 v%d, 8, v%d\nv_add_u32 v%d, s%d, v%d' % (t + 5, t + 1, t + 5, self.sw, t + 5))
            a('s_lshr_b32 s47, s%d, 4\ns_lshl_b32 s47, s47, 7\ns_and_b32 s48, s%d, 15\ns_add_u32 s47, s47, s48' % (self.sw, self.sw))
            a('v_lshlrev_b32 v%d, 4, v%d\nv_add_u32 v%d, s47, v%d' % (t + 6, t + 1, t + 6, t + 6))
            a('v_mul_u32_u24 v%d, 288, v%d\nv_lshl_add_u32 v%d, v%d, 4, v%d' % (t + 6, t + 6, t + 6, t + 4, t + 6))
            a('s_mov_b32 s47, %d\nv_mul_lo_u32 v%d, s47, v%d\nv_add_u32 v%d, v%d, v%d' % (P_TILE, t + 7, t + 3, t + 6, t + 6, t + 7))
            a('v_mul_u32_u24 v%d, 1152, v%d\nv_lshl_add_u32 v%d, v%d, 4, v%d' % (t + 7, t + 5, t + 7, t + 2, t + 7))
            a('v_mul_u32_u24 v%d, 2304, v%d\nv_lshl_add_u32 v%d, v%d, 5, v%d\nv_add_u32 v%d, %d, v%d' % (t + 8, t + 1, t + 8, t + 2, t + 8, self.aor + i, self.AO, t + 8))
            a('v_lshlrev_b32 v%d, 2, v%d\nv_add_u32 v%d, %d, v%d' % (t + 8, t + 1, self.gad + i, self.gl, t + 8))
            if i == 2:
                a('''v_cmp_gt_u32 vcc, 576, v%d
v_mov_b32 v%d, 0x7ffffff0
v_cndmask_b32 v%d, v%d, v%d, vcc
v_cndmask_b32 v%d, v%d, v%d, vcc
v_mov_b32 v%d, %d
v_cndmask_b32 v%d, v%d, v%d, vcc
v_mov_b32 v%d, %d
v_cndmask_b32 v%d, v%d, v%d, vcc''' % (t, t + 8, t + 6, t + 8, t + 6, t + 7, t + 8, t + 7,
                                       t + 8, self.AO, self.aor + i, t + 8, self.aor + i, t + 8, self.gl, self.gad + i, t + 8, self.gad + i))
            a('v_mov_b32 v%d, v%d\nv_mov_b32 v%d, v%d' % (self.item + i, t + 6, self.oaddr + i, t + 7))
    def p_loads(self, a, ldflags='sc1'):
        for i in range(3):
            for ks in range(4):
                r = self.p + 16 * i + 4 * ks
                a('s_mov_b32 s46, %d' % (P_BASE + ks * 4 * P_TILE))
                a('buffer_load_dwordx4 v[%d:%d], v%d, s[%d:%d], s46 offen %s' % (r, r + 3, self.item + i, S_WS, S_WS + 3, ldflags), tag='a3p')
    def consts(self, a):
        self.float_consts(a, self.t, self.d, self.r8, self.cs, self.sn, self.twc, self.tws, self.ab)
        self.negsin(a)
        self.addresses(a)
    def negsin(self, a):
        for k in range(8): a('v_xor_b32 v%d, 0x80008000, v%d' % (self.ns + k, self.sn + k))
    def float_consts(self, a, t, x, r8, cs, sn, twc, tws, ab, done=None):
        vn, vq, fn, fq = t, t + 1, t + 2, t + 3
        done = done or (lambda a_, n: None)
        lane_floats(a, vn, vq, fn, fq)
        helper = A1.__new__(A1); helper.sw = self.sw
        helper.r8_consts(a, r8, -1, x, vn, vq, fq)
        done(a, 'r8')
        wide = done is None or getattr(self, 'wide', True)
        a('v_mul_f32 v%d, %s, v%d' % (x + 17, lit(8.0), fq))
        for nb in range(2):
            a('v_add_f32 v%d, %s, v%d' % (x + 16, lit(16.0 * nb), fn))
            a('v_mul_f32 v%d, %s, v%d' % (x + 16, lit(1 / 24.), x + 16))
            a('v_mul_f32 v%d, v%d, v%d' % (x, x + 16, x + 17))
            for i in range(1, 8): a('v_add_f32 v%d, v%d, v%d' % (x + i, x + i - 1, x + 16))
            for i in range(8): a('v_sin_f32 v%d, v%d' % (x + 8 + i, x + i))
            for i in range(8): a('v_cos_f32 v%d, v%d' % (x + i, x + i))
            a('v_cmp_eq_u32 vcc, 3, v%d' % vq)
            for k in range(4):
                a('v_cvt_pk_bf16_f32 v%d, v%d, v%d' % (cs + (4 * nb if wide else 0) + k, x + 2 * k, x + 2 * k + 1))
                a('v_cvt_pk_bf16_f32 v%d, v%d, v%d' % (sn + (4 * nb if wide else 0) + k, x + 8 + 2 * k, x + 9 + 2 * k))
            for k in range(4):
                a('v_cndmask_b32_e64 v%d, v%d, 0, vcc' % (cs + (4 * nb if wide else 0) + k, cs + (4 * nb if wide else 0) + k))
                a('v_cndmask_b32_e64 v%d, v%d, 0, vcc' % (sn + (4 * nb if wide else 0) + k, sn + (4 * nb if wide else 0) + k))
            done(a, 'cs%d' % nb)
        a('v_mul_f32 v%d, 4.0, v%d' % (x + 17, fq))
        for r in range(4):
            a('''v_lshl_add_u32 v%d, v%d, 2, %d
v_mov_b32 v%d, 2.0
v_cmp_eq_u32 vcc, 0, v%d
v_cndmask_b32_e64 v%d, v%d, 1.0, vcc
v_cmp_eq_u32 vcc, 12, v%d
v_cndmask_b32_e64 v%d, v%d, 1.0, vcc
v_cmp_lt_u32 vcc, 12, v%d
v_cndmask_b32_e64 v%d, v%d, 0, vcc''' % (x + 18, vq, r, x + 20 + r, x + 18, x + 20 + r, x + 20 + r, x + 18, x + 20 + r, x + 20 + r, x + 18, x + 20 + r, x + 20 + r))
        for nb in range(2):
            a('v_add_f32 v%d, %s, v%d' % (x + 16, lit(16.0 * nb), fn))
            a('v_mul_f32 v%d, %s, v%d' % (x + 16, lit(1 / 576.), x + 16))
            a('v_mul_f32 v%d, v%d, v%d' % (x, x + 16, x + 17))
            for r in range(1, 4): a('v_add_f32 v%d, v%d, v%d' % (x + r, x + r - 1, x + 16))
            for r in range(4): a('v_sin_f32 v%d, v%d' % (x + 4 + r, x + r))
            for r in range(4): a('v_cos_f32 v%d, v%d' % (x + r, x + r))
            for r in range(4):
                a('v_mul_f32 v%d, v%d, v%d' % (twc + (4 * nb if wide else 0) + r, x + r, x + 20 + r))
                a('v_mul_f32 v%d, v%d, v%d' % (tws + (4 * nb if wide else 0) + r, x + 4 + r, x + 20 + r))
            done(a, 'tw%d' % nb)
        for mb in range(2):
            a('v_add_f32 v%d, %s, v%d' % (x + 16, lit(16.0 * mb), fn))
            a('v_mul_f32 v%d, %s, v%d' % (x + 16, lit(1 / 24.), x + 16))
            a('v_mul_f32 v%d, v%d, v%d' % (x, x + 16, x + 17))
            for i in range(1, 4): a('v_add_f32 v%d, v%d, v%d' % (x + i, x + i - 1, x + 16))
            for i in range(4): a('v_add_f32 v%d, %s, v%d' % (x + 4 + i, lit(0.25), x + i))
            cos_pairs(a, ab + (4 * mb if wide else 0), [x + i for i in range(8)])
            done(a, 'ab%d' % mb)
    def addresses(self, a):
        t = self.tt; x = self.xx
        vn, vq = t, t + 1
        a('v_and_b32 v%d, 15, v0\nv_lshrrev_b32 v%d, 4, v0' % (vn, vq))
        a('''s_lshl_b32 s46, s%d, 9
s_add_u32 s46, s46, %d
v_and_b32 v%d, 1, v%d
v_lshlrev_b32 v%d, 4, v%d
v_lshl_add_u32 v%d, v%d, 5, v%d
v_add_u32 v%d, s46, v%d''' % (S_WV, self.VL, x, vq, x, x, x, vn, x, self.vr, x))
        a('s_mov_b32 s50, 0xffff')
        for i in range(5):
            k, dm, di, mi, tmp, row = x, x + 1, x + 2, x + 3, x + 4, x + 5
            a('s_lshl_b32 s46, s%d, 4\ns_add_u32 s46, s46, %d\nv_add_u32 v%d, s46, v%d' % (S_WV, 64 * i, k, vn))
            a('v_mov_b32 v%d, 700' % dm)
            a('v_cmp_ge_u32 vcc, 288, v%d\nv_cndmask_b32 v%d, v%d, v%d, vcc' % (k, di, dm, k))
            a('v_sub_u32 v%d, 576, v%d\nv_add_u32 v%d, -1, v%d' % (mi, k, tmp, k))
            a('v_cmp_gt_u32 vcc, 287, v%d\nv_cndmask_b32 v%d, v%d, v%d, vcc' % (tmp, mi, dm, mi))
            a('v_mul_u32_u24 v%d, %d, v%d' % (row, 2 * self.PITCH, vq))
            a('v_lshl_add_u32 v%d, v%d, 1, v%d\nv_add_u32 v%d, %d, v%d' % (di, di, row, self.yd + i, self.YR, di))
            a('v_lshl_add_u32 v%d, v%d, 1, v%d\nv_add_u32 v%d, %d, v%d' % (mi, mi, row, self.ym + i, self.YR, mi))
            a('v_mov_b32 v%d, -1' % (self.imk + i))
            a('v_mov_b32 v%d, s50' % tmp)
            a('v_cmp_eq_u32 vcc, 0, v%d\nv_cndmask_b32 v%d, v%d, v%d, vcc' % (k, self.imk + i, self.imk + i, tmp))
            a('v_cmp_eq_u32 vcc, 288, v%d\nv_cndmask_b32 v%d, v%d, v%d, vcc' % (k, self.imk + i, self.imk + i, tmp))
        a('''v_min_u32 v%d, 2, v%d
v_lshrrev_b32 v%d, 2, v%d
v_lshl_add_u32 v%d, v%d, 3, v%d
v_mul_u32_u24 v%d, 48, v%d
v_and_b32 v%d, 3, v0
v_lshl_add_u32 v%d, v%d, 3, v%d
s_mul_i32 s46, s%d, %d
s_add_u32 s46, s46, %d
v_add_u32 v%d, s46, v%d''' % (x, vq, x + 1, vn, x, x, x + 1, x, x, x + 1, x, x + 1, x, S_WV, 2 * self.PITCH, self.YR, self.ya, x))
        for mb in range(2):
            for nb in range(2):
                d = self.aow + 2 * mb + nb
                a('''v_lshl_add_u32 v%d, v%d, 2, %d
v_mul_u32_u24 v%d, 24, v%d
v_add_u32 v%d, %d, v%d
v_add_u32 v%d, v%d, v%d
v_lshlrev_b32 v%d, 2, v%d
s_mul_i32 s46, s%d, 4608
s_add_u32 s46, s46, %d
v_add_u32 v%d, s46, v%d''' % (x, vq, 16 * mb, x + 1, x, x + 1, 16 * nb, x + 1, x + 1, x + 1, vn, x + 1, x + 1, S_WV, self.AO, d, x + 1))
                if mb or nb:
                    a('v_mov_b32 v%d, %d' % (x + 2, self.AO + 8 * 2304))
                    if mb: a('v_cmp_lt_u32 vcc, 1, v%d\nv_cndmask_b32 v%d, v%d, v%d, vcc' % (vq, d, d, x + 2))
                    if nb: a('v_cmp_lt_u32 vcc, 7, v%d\nv_cndmask_b32 v%d, v%d, v%d, vcc' % (vn, d, d, x + 2))
    def spectral(self, a, mid_before=None, mid_after=None):
        t = self.t
        for u in range(12): a('ds_write_b32 v%d, v%d offset:%d' % (self.vw, self.v + u, u * 32), tag='vl')
        a.wait_lgkm('vl')
        a('s_barrier')
        for i in range(5):
            a('ds_read_b128 v[%d:%d], v%d offset:%d' % (self.f + 4 * (i % 4), self.f + 4 * (i % 4) + 3, self.vr, i * 2048))
            d = self.d + 4 * i
            a('%s v[%d:%d], v[%d:%d], v[%d:%d], 0' % (MF, d, d + 3, self.r8, self.r8 + 3, self.f + 4 * (i % 4), self.f + 4 * (i % 4) + 3))
        yi = self.YI - self.YR
        for i in range(5):
            d = self.d + 4 * i
            for e in range(2):
                p = t + 2 * e
                a('v_cvt_pk_bf16_f32 v%d, v%d, v%d' % (p, d + 2 * e, d + 2 * e + 1))
                a('v_and_b32 v%d, v%d, v%d' % (p, self.imk + i, p))
                a('v_xor_b32 v%d, 0x80000000, v%d' % (p + 1, p))
                o = e * self.PITCH
                a('ds_write_b16 v%d, v%d offset:%d' % (self.yd + i, p, o), tag='yl')
                a('ds_write_b16_d16_hi v%d, v%d offset:%d' % (self.yd + i, p, o + yi), tag='yl')
                a('ds_write_b16 v%d, v%d offset:%d' % (self.ym + i, p, o), tag='yl')
                a('ds_write_b16_d16_hi v%d, v%d offset:%d' % (self.ym + i, p + 1, o + yi), tag='yl')
        a.wait_lgkm('yl')
        if mid_before: mid_before(a)
        a('s_barrier')
        if mid_after: mid_after(a)
        for e in range(2):
            o = e * self.PITCH
            fr, fi = self.f + 8 * e, self.f + 8 * e + 4
            a('ds_read_b64_tr_b16 v[%d:%d], v%d offset:%d' % (fr, fr + 1, self.ya, o))
            a('ds_read_b64_tr_b16 v[%d:%d], v%d offset:%d' % (fr + 2, fr + 3, self.ya, o + 192))
            a('ds_read_b64_tr_b16 v[%d:%d], v%d offset:%d' % (fi, fi + 1, self.ya, o + yi))
            a('ds_read_b64_tr_b16 v[%d:%d], v%d offset:%d' % (fi + 2, fi + 3, self.ya, o + yi + 192))
        def mm(dst, A, B, C=None):
            a('%s v[%d:%d], v[%d:%d], v[%d:%d], %s' % (MF, dst, dst + 3, A, A + 3, B, B + 3, '0' if C is None else 'v[%d:%d]' % (C, C + 3)))
        for e in range(2):
            fr, fi = self.f + 8 * e, self.f + 8 * e + 4
            for nb in range(2):
                sr, si = self.d + 16 * e + 8 * nb, self.d + 16 * e + 8 * nb + 4
                mm(sr, fr, self.cs + 4 * nb); mm(si, fr, self.sn + 4 * nb)
                mm(sr, fi, self.ns + 4 * nb, sr); mm(si, fi, self.cs + 4 * nb, si)
        for e in range(2):
            for nb in range(2):
                sr, si = self.d + 16 * e + 8 * nb, self.d + 16 * e + 8 * nb + 4
                for r in range(4):
                    c, s = self.twc + 4 * nb + r, self.tws + 4 * nb + r
                    a('v_mul_f32 v%d, v%d, v%d' % (t + r, si + r, s))
                    a('v_mul_f32 v%d, v%d, v%d' % (si + r, si + r, c))
                    a('v_fma_f32 v%d, v%d, v%d, v%d' % (si + r, sr + r, s, si + r))
                    a('v_fma_f32 v%d, v%d, v%d, -v%d' % (sr + r, sr + r, c, t + r))
                b = self.f + 8 * e + 4 * nb
                a('v_cvt_pk_bf16_f32 v%d, v%d, v%d\nv_cvt_pk_bf16_f32 v%d, v%d, v%d' % (b, sr, sr + 1, b + 1, sr + 2, sr + 3))
                a('v_cvt_pk_bf16_f32 v%d, v%d, v%d\nv_cvt_pk_bf16_f32 v%d, v%d, v%d' % (b + 2, si, si + 1, b + 3, si + 2, si + 3))
        for e in range(2):
            for nb in range(2):
                for mb in range(2):
                    mm(self.d + 16 * e + 8 * nb + 4 * mb, self.ab + 4 * mb, self.f + 8 * e + 4 * nb)
        for e in range(2):
            for nb in range(2):
                for mb in range(2):
                    d = self.d + 16 * e + 8 * nb + 4 * mb
                    for r in range(4):
                        a('ds_write_b32 v%d, v%d offset:%d' % (self.aow + 2 * mb + nb, d + r, e * 2304 + 96 * r), tag='ao')
        a.wait_lgkm('ao')
        a('s_barrier')
    def mix(self, a, stflags=''):
        t = self.t
        for i in range(3):
            a('ds_read_b128 v[%d:%d], v%d' % (self.d + 8 * i, self.d + 8 * i + 3, self.aor + i))
            a('ds_read_b128 v[%d:%d], v%d offset:16' % (self.d + 8 * i + 4, self.d + 8 * i + 7, self.aor + i))
            a('ds_read_b32 v%d, v%d' % (self.f + i, self.gad + i))
        for i in range(3):
            p = self.p + 16 * i
            g, og = self.f + i, self.f + 4 + i
            a('v_sub_f32 v%d, 1.0, v%d' % (og, g))
            a('v_cvt_pk_bf16_f32 v%d, v%d, v%d\nv_lshlrev_b32 v%d, 16, v%d' % (og, og, og, og, og))
            for dw in range(4):
                lo, hi = t + 2 * dw, t + 2 * dw + 1
                a('v_lshlrev_b32 v%d, 16, v%d\nv_and_b32 v%d, 0xffff0000, v%d' % (lo, p + dw, hi, p + dw))
                for ks in range(1, 4):
                    a('v_lshlrev_b32 v%d, 16, v%d\nv_and_b32 v%d, 0xffff0000, v%d' % (t + 8, p + 4 * ks + dw, t + 9, p + 4 * ks + dw))
                    a('v_add_f32 v%d, v%d, v%d\nv_add_f32 v%d, v%d, v%d' % (lo, lo, t + 8, hi, hi, t + 9))
            for x in range(8):
                a('v_mul_f32 v%d, v%d, v%d' % (t + x, t + x, og))
                a('v_fma_f32 v%d, v%d, v%d, v%d' % (t + x, self.d + 8 * i + x, g, t + x))
            for dw in range(4): a('v_cvt_pk_bf16_f32 v%d, v%d, v%d' % (t + 12 + dw, t + 2 * dw, t + 2 * dw + 1))
            a('buffer_store_dwordx4 v[%d:%d], v%d, s[%d:%d], 0 offen %s' % (t + 12, t + 15, self.oaddr + i, self.S_OUT, self.S_OUT + 3, stflags))
```

```python
from asmlib import *
from common import *
from sched import Node, Packer, place_groups

V_LANE16 = 1
V_LANE8 = 2
V_XOFF = 3
V_DP = 4
V_DS = 5
V_RA0 = 6
V_RA1 = 7
V_RS = 8
V_C2 = 9
V_T = 10
V_XD = 80
V_XR0 = 81
V_XR1 = 82
NSL = 16
AF0 = 16
GT0 = 80
HP0 = 88
ACC0 = 96
XV0 = 224

S_W = 4
S_X = 8
S_WS = 12
S_WV, S_T, S_FJ = 20, 21, 22
S_DOFFP, S_DOFFS = 23, 24
S_M0B = 25
S_HP, S_HSG = 26, 27
S_TMP, S_TMP2 = 28, 29
S_C1 = 30
S_RB = 32
S_ST = 36
S_XB = 38
S_XM = 39

FUSED = [False]
SPLIT8 = [[(0, 5), (5, 9), (9, 9)]]
S_PFP, S_PFS = 62, 63
S_XPF = 77
S_PFM = 78
V_DUMMY = 8
LANE8 = [V_LANE8]

def xfrag(rb, ks):
    fi = ks * 4 + rb
    if fi < 64: return 'a[%d:%d]' % (4 * fi, 4 * fi + 3)
    b = XV0 + 4 * (fi - 64)
    return 'v[%d:%d]' % (b, b + 3)

def acc(setn, bl, mx, rb):
    return ACC0 + 64 * setn + (bl * 2 + mx) * 16 + rb * 4

def roles(a):
    a('''v_lshrrev_b32 v10, 6, v0
v_and_b32 v0, 63, v0
s_nop 0
v_readfirstlane_b32 s%d, v10
s_and_b32 s%d, s2, 7
s_lshr_b32 s%d, s2, 3
s_and_b32 s%d, s%d, 3
s_lshr_b32 s%d, s%d, 2
s_lshl_b32 s%d, s%d, 2
s_and_b32 s46, s%d, 3
s_add_u32 s%d, s%d, s46
s_lshl_b32 s%d, s%d, 3
s_lshr_b32 s46, s%d, 2
s_add_u32 s%d, s%d, s46''' % (S_WV, S_TMP, S_TMP2,
        S_FJ, S_TMP,
        S_T, S_TMP,
        S_T, S_T,
        S_TMP2,
        S_T, S_T,
        S_FJ, S_FJ,
        S_TMP2,
        S_FJ, S_FJ))

T0, T1, T2, T3, T4, T5 = 83, 84, 85, 86, 87, 88

def setup_x(a):
    a('''s_lshl_b32 s40, s%d, 5
s_lshr_b32 s41, s%d, 1
s_lshl_b32 s41, s41, 4
s_add_u32 s40, s40, s41
s_and_b32 s41, s%d, 1
s_lshl_b32 s41, s41, 10
s_add_u32 s40, s40, s41
s_mul_i32 s%d, s40, 1152
s_mul_i32 s%d, s%d, 18432
s_add_u32 s%d, s%d, %d
v_lshrrev_b32 v%d, 3, v0
v_and_b32 v%d, 7, v0
v_xor_b32 v%d, v%d, v%d
v_mul_u32_u24 v%d, 1152, v%d
v_lshl_add_u32 v%d, v%d, 4, v%d
v_and_b32 v%d, 15, v0
v_lshrrev_b32 v%d, 4, v0
v_and_b32 v%d, 7, v%d
v_xor_b32 v%d, v%d, v%d
v_lshlrev_b32 v%d, 4, v%d
v_lshl_add_u32 v%d, v%d, 7, v%d
v_add_u32 v%d, s%d, v%d
v_xor_b32 v%d, 64, v%d''' % (S_T, S_WV, S_WV, S_XB, S_XM, S_WV, S_XM, S_XM, 2 * SLOT,
        T0, T1, T1, T1, T0, T0, T0, V_XD, T1, T0,
        T0, T1, T2, T0, T2, T2, T1, T2, T2, T2, T0, T2, V_XR0, S_XM, T2, V_XR1, V_XR0))

def setup_rest(a):
    a('''v_and_b32 v10, 15, v0
v_lshrrev_b32 v11, 4, v0''')
    a('''v_lshrrev_b32 v12, 2, v0
v_mul_u32_u24 v12, 9216, v12
v_lshrrev_b32 v13, 5, v0
v_lshlrev_b32 v13, 1, v13
v_and_b32 v14, 3, v0
v_xor_b32 v13, v13, v14
v_lshl_add_u32 v%d, v13, 4, v12
v_lshrrev_b32 v12, 1, v0
v_and_b32 v13, 0x13, v12
v_and_b32 v14, 4, v12
v_lshl_or_b32 v13, v14, 1, v13
v_and_b32 v14, 8, v12
v_lshrrev_b32 v14, 1, v14
v_or_b32 v13, v13, v14
v_mul_u32_u24 v13, 9216, v13
v_and_b32 v14, 1, v0
v_lshl_add_u32 v%d, v14, 4, v13''' % (V_DP, V_DS))
    a('''v_lshrrev_b32 v12, 2, v10
v_and_b32 v13, 3, v0
v_lshl_add_u32 v14, v11, 3, v12
v_lshlrev_b32 v14, 6, v14
v_lshl_add_u32 v14, v13, 3, v14
v_and_b32 v15, 1, v11
v_lshl_add_u32 v%d, v15, 5, v14
v_xor_b32 v%d, 32, v%d
v_lshrrev_b32 v14, 1, v11
v_lshlrev_b32 v14, 4, v14
v_lshl_add_u32 v14, v15, 2, v14
v_add_u32 v14, v14, v12
v_lshlrev_b32 v14, 5, v14
v_lshl_add_u32 v%d, v13, 3, v14
v_mov_b32 v%d, 0x%08x
s_mov_b32 s%d, 0x%08x''' % (V_RA0, V_RA1, V_RA0, V_RS, V_C2, f32bits(GC2), S_C1, f32bits(GC1)))
    a('''s_and_b32 s40, s%d, 1
s_and_b32 s41, s%d, 1
s_mul_i32 s42, s%d, 288
s_lshl_b32 s43, s41, 5
s_add_u32 s%d, s42, s43
s_mul_i32 s43, s40, %d
s_add_u32 s%d, s%d, s43
s_xor_b32 s43, s41, 1
s_lshl_b32 s43, s43, 8
s_add_u32 s%d, s42, s43
s_mul_i32 s43, s40, %d
s_add_u32 s%d, s%d, s43
s_mul_i32 s%d, s%d, 9216''' % (S_WV, S_FJ, S_FJ,
        S_DOFFP, 144 * 9216, S_DOFFP, S_DOFFP,
        S_DOFFS, 288 * 9216, S_DOFFS, S_DOFFS,
        S_M0B, S_WV))
    a('''s_lshl_b32 s42, s%d, 4
s_lshl_b32 s43, s%d, 2
s_add_u32 s42, s42, s43
s_lshr_b32 s43, s%d, 1
s_mul_i32 s44, s43, 9
s_mul_i32 s45, s41, 5
s_add_u32 s44, s44, s45
s_mul_i32 s45, s42, 144
s_add_u32 s44, s44, s45
s_lshl_b32 s%d, s44, 10
s_add_u32 s%d, s%d, %d
s_lshl_b32 s44, s42, 4
s_add_u32 s44, s44, s43
s_lshl_b32 s44, s44, 1
s_add_u32 s44, s44, s41
s_lshl_b32 s%d, s44, 9
s_add_u32 s%d, s%d, %d''' % (S_T, S_WV, S_FJ, S_HP, S_HP, S_HP, HF_BASE, S_HSG, S_HSG, S_HSG, HS_BASE))


def setup(a):
    a('''s_load_dwordx2 s[8:9], s[0:1], %d
s_load_dwordx4 s[40:43], s[0:1], %d
s_load_dwordx2 s[12:13], s[0:1], %d''' % (KA_AX, KA_WG, KA_WS))
    roles(a)
    a('''s_waitcnt lgkmcnt(0)
s_mov_b32 s10, %d
s_mov_b32 s11, 0x20000
s_mov_b32 s14, %d
s_mov_b32 s15, 0x20000
s_cmp_ge_u32 s%d, 2
s_cselect_b32 s4, s42, s40
s_cselect_b32 s5, s43, s41
s_mov_b32 s6, %d
s_mov_b32 s7, 0x20000''' % (NB_X, WS_BYTES, S_WV, NB_W))
    a('v_lshlrev_b32 v%d, 4, v0\nv_lshlrev_b32 v%d, 3, v0' % (V_LANE16, V_LANE8))
    setup_x(a)
    setup_rest(a)

def w_prefetch(stage):
    G = []
    if stage < 8:
        p, h = stage >> 1, stage & 1
        offs = [(S_PFP, (288 * h) * 9216 + 64 * p), (S_PFP, (288 * h + 64) * 9216 + 64 * p), (S_DOFFP, (288 * h + 128) * 9216 + 64 * p)]
        vo = V_DP
    else:
        offs = [(S_PFS, 0), (S_PFS, 128 * 9216), (S_DOFFS, 256 * 9216)]
        vo = V_DS
    for i, (base, off) in enumerate(offs):
        ld = ('buffer_load_dword v%d, v%d, s[%d:%d], s%d offen' % (V_DUMMY, vo, S_W, S_W + 3, S_TMP2), 'pf')
        if i < 2: G.append([('S', 's_add_u32 s%d, s%d, %d' % (S_TMP2, base, off)), ('L', ld)])
        else:
            G.append([('S', 's_add_u32 s%d, s%d, %d' % (S_TMP2, base, off)),
                      ('Z', ['s_mov_b64 exec, s[%d:%d]' % (S_PFM, S_PFM + 1), ld, 's_mov_b64 exec, -1'])])
    return G

def wd_prefetch(e, s_base, s_srd):
    return [('S', 's_add_u32 s%d, s%d, %d' % (S_TMP2, s_base, 0)), ]

def setup_pf(a):
    a('''s_and_b32 s40, s%d, 3
s_mul_i32 s41, s40, 147456
s_add_u32 s%d, s%d, s41
s_mul_i32 s41, s40, 294912
s_add_u32 s%d, s%d, s41
s_lshl_b32 s41, s40, 4
s_mov_b64 s[%d:%d], 0xffff
s_lshl_b64 s[%d:%d], s[%d:%d], s41''' % (S_T, S_PFP, S_DOFFP, S_PFS, S_DOFFS, S_PFM, S_PFM + 1, S_PFM, S_PFM + 1, S_PFM, S_PFM + 1))

def rs_ops(t):
    return ['v_lshrrev_b32 v%d, 4, v0' % V_RS, 'v_lshrrev_b32 v%d, 1, v%d' % (t, V_RS), 'v_lshlrev_b32 v%d, 4, v%d' % (t, t),
            'v_and_b32 v%d, 1, v%d' % (V_RS, V_RS), 'v_lshl_add_u32 v%d, v%d, 2, v%d' % (t, V_RS, t),
            'v_bfe_u32 v%d, v0, 2, 2' % V_RS, 'v_add_u32 v%d, v%d, v%d' % (t, t, V_RS), 'v_lshlrev_b32 v%d, 5, v%d' % (t, t),
            'v_and_b32 v%d, 3, v0' % V_RS, 'v_lshl_add_u32 v%d, v%d, 3, v%d' % (V_RS, V_RS, t)]

def x_prefetch(a, part=None):
    if part in (None, 0):
        a('''s_and_b32 s40, s%d, 7
s_mul_i32 s40, s40, 294912
s_mul_i32 s41, s%d, 36864
s_add_u32 s%d, s40, s41
s_lshl_b32 s41, s%d, 13
s_add_u32 s41, s41, s%d
v_lshlrev_b32 v%d, 7, v0
buffer_load_dword v%d, v%d, s[%d:%d], s41 offen''' % (S_FJ, S_T, S_XPF, S_WV, S_XPF, 253, 254, 253, S_X, S_X + 3))
    if part in (None, 1):
        a('''s_add_u32 s40, s%d, 32768
s_cmp_eq_u32 s20, 0
s_cselect_b32 s42, 32, 0
v_cmp_gt_u32 vcc, s42, v0
v_mov_b32 v%d, 0x7ffffff0
v_cndmask_b32 v%d, v%d, v%d, vcc
buffer_load_dword v%d, v%d, s[%d:%d], s40 offen''' % (S_XPF, T1, T1, T1, 253, 255, T1, S_X, S_X + 3))

def dma_ops(stage, j):
    slot = stage % 4
    if stage < 8:
        p, h = stage >> 1, stage & 1
        off = (288 * h + 16 * j) * 9216 + 64 * p
        base, vo = S_DOFFP, V_DP
    else:
        off = 32 * j * 9216
        base, vo = S_DOFFS, V_DS
    return ['s_add_u32 s%d, s%d, %d' % (S_TMP, base, off),
            's_add_u32 m0, s%d, %d' % (S_M0B, slot * SLOT + j * 1024),
            ('buffer_load_dwordx4 v%d, s[%d:%d], s%d offen lds' % (vo, S_W, S_W + 3, S_TMP), ('dma', stage))]

NXB = 9

def xblocks():
    return [(rb, kp) for rb in range(4) for kp in range(9)]

def x_dma(b):
    rb, kp = xblocks()[b]
    L = []
    for e in range(2):
        L += ['s_add_u32 s%d, s%d, %d' % (S_TMP, S_XB, (256 * rb + 8 * e) * 1152 + kp * 128),
              's_add_u32 m0, s%d, %d' % (S_XM, (b % NXB) * 2048 + e * 1024),
              ('buffer_load_dwordx4 v%d, s[%d:%d], s%d offen lds' % (V_XD, S_X, S_X + 3, S_TMP), ('xd', b))]
    return L

def x_read(b):
    rb, kp = xblocks()[b]
    o = (b % NXB) * 2048
    return ['ds_read_b128 %s, v%d offset:%d' % (xfrag(rb, 2 * kp), V_XR0, o),
            ('ds_read_b128 %s, v%d offset:%d' % (xfrag(rb, 2 * kp + 1), V_XR1, o), ('xr', b))]

def x_steps():
    steps = []
    steps.append([o for b in range(NXB) for o in x_dma(b)])
    for b in range(36):
        st = [('waitvm', ('xd', b))] + x_read(b)
        if b >= 1 and b - 1 + NXB < 36:
            st += [('waitlg', ('xr', b - 1))] + x_dma(b - 1 + NXB)
        steps.append(st)
    return steps

def x_substeps():
    def piece(b, e, tmp):
        rb, kp = xblocks()[b]
        return (['s_add_u32 s%d, s%d, %d' % (tmp, S_XB, (256 * rb + 8 * e) * 1152 + kp * 128),
                 's_add_u32 m0, s%d, %d' % (S_XM, (b % NXB) * 2048 + e * 1024)],
                ('buffer_load_dwordx4 v%d, s[%d:%d], s%d offen lds' % (V_XD, S_X, S_X + 3, tmp), ('xd', b)))
    first = [o for b in range(NXB) for o in x_dma(b)]
    subs = []
    for b in range(36):
        nb = b - 1 + NXB
        if b >= 1 and nb < 36:
            (sa, la), (sb, lb) = piece(nb, 0, S_TMP), piece(nb, 1, S_TMP)
            subs.append(sa + [('waitvm', ('xd', b))] + x_read(b))
            subs.append([('waitlg', ('xr', b - 1)), la] + sb)
            subs.append([lb])
        else:
            subs.append([('waitvm', ('xd', b))] + x_read(b))
    return first, subs

def put2(a, o):
    if isinstance(o, tuple) and o[0] == 'waitvm': a.wait_vm(o[1])
    elif isinstance(o, tuple) and o[0] == 'waitlg': a.wait_lgkm(o[1])
    else: put(a, o)

class GegluState:
    def __init__(self):
        self.tlast = {}
        self.hlast = {}

def geglu_nodes(gs, setn, bl, rb, dst, tset, war):
    g = acc(setn, bl, 0, rb); u = acc(setn, bl, 1, rb)
    t = GT0 + 4 * tset
    prev = gs.tlast.get(tset, [None] * 4)
    N = []
    fin = []
    rows = [[] for _ in range(8)]
    for r in range(4):
        n0 = Node('a', 'v_mul_f32 v%d, v%d, v%d' % (t + r, g + r, g + r), [prev[r]] if prev[r] else [])
        n1 = Node('a', 'v_fma_f32 v%d, v%d, s%d, v%d' % (t + r, t + r, S_C1, V_C2), [n0])
        n2 = Node('a', 'v_mul_f32 v%d, v%d, v%d' % (t + r, t + r, g + r), [n1])
        n3 = Node('T', 'v_exp_f32 v%d, v%d' % (t + r, t + r), [n2])
        nm = Node('a', 'v_mul_f32 v%d, v%d, v%d' % (u + r, g + r, u + r))
        n4 = Node('a', 'v_add_f32 v%d, 1.0, v%d' % (t + r, t + r), [n3])
        n5 = Node('T', 'v_rcp_f32 v%d, v%d' % (t + r, t + r), [n4])
        n6 = Node('a', 'v_mul_f32 v%d, v%d, v%d' % (u + r, u + r, t + r), [n5, nm])
        for i, n in enumerate((n0, n1, n2, n3, nm, n4, n5, n6)): rows[i].append(n)
        fin.append(n6)
    for row in rows: N += row
    c0 = Node('a', 'v_cvt_pk_bf16_f32 v%d, v%d, v%d' % (dst, u, u + 1), fin[:2] + war)
    c1 = Node('a', 'v_cvt_pk_bf16_f32 v%d, v%d, v%d' % (dst + 1, u + 2, u + 3), fin[2:] + war)
    gs.tlast[tset] = fin
    return N + [c0, c1], [c0, c1]

def geglu_pair(gs, p, stflags):
    L = []
    for rb in range(4):
        hs = rb & 1
        hp = HP0 + 4 * hs
        war = [gs.hlast[hs]] if hs in gs.hlast else []
        cv = []
        for bl in range(2):
            n, c = geglu_nodes(gs, p & 1, bl, rb, hp + 2 * bl, bl, war)
            L += n; cv += c
        if stflags == 'none': continue
        sa = Node('S', 's_add_u32 s%d, s%d, %d' % (S_ST + hs, S_HP, rb * 144 * 1024 + p * 1024), war)
        st = Node('X', ('buffer_store_dwordx4 v[%d:%d], v%d, s[%d:%d], s%d offen %s' % (hp, hp + 3, V_LANE16, S_WS, S_WS + 3, S_ST + hs, stflags), ('hst', p)), cv + [sa])
        L += [sa, st]; gs.hlast[hs] = st
    return L

def geglu_single(gs, stflags):
    L = []
    for rb in range(4):
        hs = rb & 1
        hp = HP0 + 4 * hs
        war = [gs.hlast[hs]] if hs in gs.hlast else []
        n, cv = geglu_nodes(gs, 0, 0, rb, hp, rb & 1, war)
        L += n
        if stflags == 'none': continue
        sa = Node('S', 's_add_u32 s%d, s%d, %d' % (S_ST + hs, S_HSG, rb * 16 * 1024), war)
        st = Node('X', ('buffer_store_dwordx2 v[%d:%d], v%d, s[%d:%d], s%d offen %s' % (hp, hp + 1, LANE8[0], S_WS, S_WS + 3, S_ST + hs, stflags), ('hst', 4)), cv + [sa])
        L += [sa, st]; gs.hlast[hs] = st
    return L

def put(a, item):
    if isinstance(item, tuple): a(item[0], tag=item[1])
    else: a(item)

def stage_frags(stage):
    C = []
    for ci in range(4):
        if stage < 8:
            p, h = stage >> 1, stage & 1
            bl, mx = ci >> 1, ci & 1
            ks0 = 9 * h
            C.append(dict(addr=(V_RA0, V_RA1)[bl], off=lambda k, mx=mx: mx * 18432 + k * 2048, setn=p & 1, bl=bl, mx=mx, ks0=ks0))
        else:
            mx, hh = ci & 1, ci >> 1
            C.append(dict(addr=V_RS, off=lambda k, mx=mx, hh=hh: mx * 18432 + (9 * hh + k) * 1024, setn=0, bl=0, mx=mx, ks0=9 * hh))
    return C

def read_ops(stage, ci, k, F):
    c = stage_frags(stage)[ci]
    r = AF0 + 4 * (F % NSL)
    o = c['off'](k)
    return ['ds_read_b64_tr_b16 v[%d:%d], v%d offset:%d' % (r, r + 1, c['addr'], o),
            ('ds_read_b64_tr_b16 v[%d:%d], v%d offset:%d' % (r + 2, r + 3, c['addr'], o + 256), ('fr', F))]

def addr_bump(stage_next):
    d = SLOT if stage_next % 4 else -3 * SLOT
    regs = (V_RA0, V_RA1) if FUSED[0] else (V_RA0, V_RA1, V_RS)
    if d > 0: return ['v_add_u32 v%d, %d, v%d' % (r, d, r) for r in regs]
    return ['v_subrev_u32 v%d, %d, v%d' % (r, -d, r) for r in regs]

LEAD = 12

def emit_phase1(a, stflags='sc1', nstage=9, extra_dma=None, stamp=None, skip=(), bp=110, w1pos=27, prologue=True, hook=None, tail=True, dist=3):
    if prologue:
        if stamp: stamp(a, 10)
        if 'xpf' not in skip: x_prefetch(a)
        xs = x_steps()
        for o in xs[0]: put2(a, o)
        for j in range(9):
            for o in dma_ops(0, j): put(a, o)
        if stamp: stamp(a, 11)
        for i, st in enumerate(xs[1:]):
            for o in st: put2(a, o)
            if w1pos == i:
                for j in range(9):
                    for o in dma_ops(1, j): put(a, o)
        a.wait_lgkm(('xr', 35))
        a('s_barrier')
        for j in range(9):
            for o in dma_ops(2, j): put(a, o)
        a.wait_vm(('dma', 0))
        if stamp: stamp(a, 12)
        a('s_barrier')
    if stamp: stamp(a, 0)
    F = 0
    for k in range(9):
        for o in read_ops(0, 0, k, k): put(a, o)
    pk = Packer(a, put2)
    gs = GegluState()
    for st in range(nstage):
        C = stage_frags(st)
        nv = [[] for _ in range(144)]
        BP = bp
        for ci in range(1, 5):
            s2, c2 = (st, ci) if ci < 4 else (st + 1, 0)
            if s2 >= nstage: continue
            for k in range(9):
                Fi = (st * 4 + ci) * 9 + k
                ro = read_ops(s2, c2, k, Fi) if 'reads' not in skip else []
                base = 36 * (ci - 1)
                if ci < 4: pos = (base + 4 * k, base + 4 * k + 2)
                else:
                    span = 143 - (BP + 1)
                    pos = (BP + 1 + (span * (2 * k)) // 18, BP + 1 + (span * (2 * k + 1)) // 18)
                    if k >= 7: pos = (max(pos[0], base + 28 + (k - 7)), max(pos[1], base + 29 + (k - 7)))
                for e, o in enumerate(ro): nv[pos[e]].append(('D', o))
        for ci in range(4):
            for k in (0, 3, 6):
                Fi = (st * 4 + ci) * 9 + k + 2
                pos = 36 * ci + k - 1
                if pos >= 0: nv[pos].append(('W', ('waitlg', ('fr', Fi))))
        if st + 1 < nstage:
            nv[143].append(('W', ('waitlg', ('fr', ((st + 1) * 4) * 9 + 2))))
            for i, o in enumerate(addr_bump(st + 1)): nv[BP - 3 + i].append(('a', o))
            nv[BP] += [('W', ('waitlg', ('fr', (st * 4 + 3) * 9 + 8))), ('W', ('waitvm', ('dma', st + 1)))]
            if 'barrier' not in skip: nv[BP].append(('B', 's_barrier'))
        dl = []
        tgt = st + dist
        if 'dma' in skip: pass
        elif dist == 3 and tgt in (8, 9, 10) and nstage > 8: dl = [dma_ops(8, j) for j in range(*SPLIT8[0][tgt - 8])]
        elif dist == 2 and tgt == 8: dl = [dma_ops(8, j) for j in range(3, 9)]
        elif tgt < 9 and tgt < nstage: dl = [dma_ops(tgt, j) for j in range(9)]
        lo, hi = ((90, 138) if st == 0 else (2, 40) if st == 7 else (2, 134)) if dist == 3 else ((40, 96) if st == 0 else (2, 92))
        groups = [(lo + (i * (hi - lo)) // max(len(dl), 1), [('S', d[0]), ('S', d[1]), ('M', d[2])]) for i, d in enumerate(dl)]
        if dist == 2 and st == 5:
            for j in range(3):
                d = dma_ops(8, j); groups.append((100 + 12 * j, [('S', d[0]), ('S', d[1]), ('M', d[2])]))
        if extra_dma: groups += extra_dma(st, nv)
        place_groups(nv, groups)
        if hook: hook(st, nv, pk)
        for n in range(144):
            ci, rb, k = n // 36, (n % 36) // 9, n % 9
            c = C[ci]
            ks = c['ks0'] + k
            d = acc(c['setn'], c['bl'], c['mx'], rb)
            fr = AF0 + 4 * (((st * 4 + ci) * 9 + k) % NSL)
            srcc = '0' if ks == 0 else 'v[%d:%d]' % (d, d + 3)
            if ks == 0:
                for nd_ in pk.q:
                    o_ = Op(nd_.item[0] if isinstance(nd_.item, tuple) else nd_.item)
                    assert not ((o_.reads | o_.writes) & {('v', d + i) for i in range(4)}), 'GEGLU backlog overlaps new accumulation'
            a('v_mfma_f32_16x16x32_bf16 v[%d:%d], v[%d:%d], %s, %s' % (d, d + 3, fr, fr + 3, xfrag(rb, ks), srcc))
            fixed = sorted(nv[n], key=lambda f: {'D': 0, 'S': 1, 'M': 1, 'L': 1, 'X': 1, 'W': 2, 'B': 3, 'Z': 3, 'a': 4, 'T': 4}[f[0]])
            pk.fill(fixed)
        if stamp: stamp(a, st + 1)
        if 'geglu' in skip: continue
        if st < 8 and (st & 1): pk.push(geglu_pair(gs, st >> 1, stflags))
        if st == 8: pk.push(geglu_single(gs, stflags))
    if tail: pk.drain()
    return pk
```

```python
COST = {'D': 8, 'M': 12, 'L': 8, 'X': 12, 'S': 4, 'W': 4, 'B': 4, 'Z': 4, 'a': 4, 'T': 8, 'w': 12}

class Node:
    def __init__(self, cls, item, deps=()):
        self.cls, self.item, self.deps, self.done = cls, item, list(deps), None

class Packer:
    def __init__(self, a, put):
        self.a, self.put = a, put
        self.q = []
        self.gap = 0
        self.aa_prev = False
        self.chain = False
    def push(self, nodes): self.q += nodes
    def ready(self, n):
        return all(d.done is not None and (d.done < self.gap or (self.chain and d.cls == 'a' and n.cls == 'a')) for d in n.deps)
    def fill(self, fixed, window=14, allow=True):
        a = self.a
        nonv = [f for f in fixed if f[0] not in 'aT']
        vfix = [f for f in fixed if f[0] in 'aT']
        used = sum(COST[c] for c, _ in nonv)
        extra = []
        if allow:
            for n in self.q[:window]:
                if n.cls in 'SX' and self.ready(n):
                    if n.cls == 'S' and used + 4 <= 8: extra.append(n); used += 4
                    elif n.cls == 'X' and used == 0 and not vfix: extra.append(n); used += 12
                    break
        for c, it in nonv: self.put(a, it)
        for n in extra:
            self.put(a, n.item); n.done = self.gap; self.q.remove(n)
        vbud = min(8, 12 - used) - sum(COST[c] for c, _ in vfix)
        for c, it in vfix: self.put(a, it)
        nv = len(vfix)
        if allow:
            while vbud >= 4:
                pick = None
                cands = [n for n in self.q[:window] if n.cls in 'aT' and self.ready(n)]
                if vbud >= 8 and nv == 0:
                    pick = next((n for n in cands if n.cls == 'T'), None)
                if pick is None:
                    pick = next((n for n in cands if n.cls == 'a'), None)
                if pick is None: break
                if nv == 1 and self.aa_prev and len(self.q) < 60 and False: break
                self.put(a, pick.item); pick.done = self.gap; self.q.remove(pick)
                vbud -= COST[pick.cls]; nv += 1
        self.aa_prev = nv >= 2
        self.gap += 1
    def drain(self, rider=None):
        i = 0
        while self.q:
            prog = False
            best = None
            for n in self.q[:16]:
                if all(d.done is not None for d in n.deps):
                    age = min([self.gap - d.done for d in n.deps], default=99)
                    if best is None or (age >= 2 and best[0] < 2): best = (age, n)
                    if age >= 2: break
            assert best is not None
            n = best[1]
            self.put(self.a, n.item); n.done = self.gap; self.q.remove(n); self.gap += 1
            if rider: rider(i)
            i += 1


def gap_cost(items):
    return sum(COST[c] for c, _ in items if c not in 'aT')

def place_groups(nv, groups, last=None):
    n_max = len(nv) if last is None else last
    ptr = 0
    for want, items in sorted(groups, key=lambda g: g[0]):
        ptr = max(ptr, want)
        for cls, it in items:
            while True:
                assert ptr < n_max, 'no room for ' + str(it)
                busy = gap_cost(nv[ptr])
                hasv = any(c in 'aT' for c, _ in nv[ptr])
                blocked = any(c in 'MBXZ' for c, _ in nv[ptr])
                if cls in 'MX': ok = busy == 0 and not hasv
                else: ok = (not blocked) and busy + COST[cls] <= 12 - (4 if hasv else 0)
                if ok: break
                ptr += 1
            nv[ptr].append((cls, it)); ptr += 1


def nodes_from_ops(ops):
    last_w, readers, N = {}, {}, []
    for o in ops:
        if o.kind in ('label', 'dir', 'pseudo'): raise ValueError('unsupported in a filler stream: ' + o.text)
        cls = {'valu': 'a', 'trans': 'T', 'salu': 'S', 'ds': 'X', 'vmem': 'X'}[o.kind]
        rd = set(o.reads); wr = set(o.writes)
        if o.kind == 'salu' and not o.mn.startswith(('s_cselect', 's_addc', 's_cbranch')): wr.discard(('x', 'scc'))
        rd.discard(('x', 'exec')); rd.discard(('x', 'm0'))
        deps = set()
        for r in rd | wr:
            if r in last_w: deps.add(last_w[r])
        for r in wr:
            for x in readers.get(r, []): deps.add(x)
        n = Node(cls, (o.text, o.tag) if o.tag is not None else o.text, list(deps))
        for r in wr: last_w[r] = n; readers[r] = []
        for r in rd: readers.setdefault(r, []).append(n)
        N.append(n)
    return N
```

```python
import sys, re; sys.path.insert(0, 'gen')
from asmlib import *; from common import *
import phase1 as P1, phase2 as P2, abranch as AB
from sched import Node, nodes_from_ops

HEADER = open('cdna_kernels/' + KN + '.s.ref').read().split('; Override launch geometry')[0]
LDS_BYTES = 163840
RAW = 4 * SLOT
FU = FLAG_BASE
FH1 = FU + 4096
FH2 = FH1 + 4096
FH3 = FH2 + 4096
FV = FH3 + 4096
FP = FV + 4096
EPOCH = FP + 4096
S_NONCE, S_SPIN = 60, 61
S_FHP, S_FHC, S_UO, S_FPP, S_FPC = 31, 32, 33, 34, 35
S_HPF = 76
S_KS2S, S_NT = 88, 89
S_OWN = 3
SPIN = 300000

def put(a, item):
    if callable(item): item(a)
    elif isinstance(item, list):
        for x in item: put(a, x)
    elif isinstance(item, tuple) and item[0] == 'waitvm': a.wait_vm(item[1])
    elif isinstance(item, tuple) and item[0] == 'waitlg': a.wait_lgkm(item[1])
    elif isinstance(item, tuple): a(item[0], tag=item[1])
    else: a(item)
P1.put2 = put; P1.put = put; P2.put = put

class Fused:
    def __init__(self, stamps=False, opt=None):
        self.a = Asm(); self.cold = Asm(); self.nlab = 0; self.stamps = stamps; self.marks = []; self.opt = opt or {}
    def mark(self, name):
        if not self.stamps: return
        i = len(self.marks); self.marks.append(name)
        assert i < 60
        self.a('s_memtime s[98:99]')
        self.a('s_waitcnt lgkmcnt(0)')
        self.a('v_mov_b32 v%d, s98' % self.stamp_tmp)
        self.a('s_mov_b64 exec, 1')
        self.a('buffer_store_dword v%d, v1, s[12:15], s96 offen offset:%d' % (self.stamp_tmp, 4 * i))
        self.a('s_mov_b64 exec, -1')
    def publish(self, soff, vtmp, add=0, base2=False):
        if base2: return ['s_add_u32 s43, s%d, 4096' % soff] + self.publish(43, vtmp)
        return ['v_mov_b32 v%d, s%d' % (vtmp, S_NONCE), 's_mov_b64 exec, 1',
                'buffer_store_dword v%d, v1, s[12:15], s%d offen offset:%d sc1' % (vtmp, soff, add), 's_mov_b64 exec, -1']
    def flags(self, kind, r, soff, vaddr, tag, add=0):
        self.nlab += 1
        L, R = 'L_poll%d' % self.nlab, 'L_back%d' % self.nlab
        if kind == 'one': test = ['v_cmp_eq_u32 vcc, s%d, v%d' % (S_NONCE, r)]
        else:
            test = ['v_xor_b32 v%d, s%d, v%d' % (r + i, S_NONCE, r + i) for i in range(4)] + \
                   ['v_or3_b32 v%d, v%d, v%d, v%d' % (r, r, r + 1, r + 2), 'v_or_b32 v%d, v%d, v%d' % (r, r, r + 3), 'v_cmp_eq_u32 vcc, 0, v%d' % r]
        ld = ('buffer_load_dword v%d' % r if kind == 'one' else 'buffer_load_dwordx4 v[%d:%d]' % (r, r + 3)) + \
             ', v%d, s[12:15], s%d offen offset:%d sc1' % (vaddr, soff, add)
        c = self.cold
        c(L + ':'); c('s_mov_b32 s%d, %d' % (S_SPIN, SPIN))
        c(L + '_loop:'); c(ld); c('s_waitcnt vmcnt(0)')
        for o in test: c(o)
        c('s_nop 1\ns_cmp_eq_u64 vcc, exec\ns_cbranch_scc1 %s\ns_sleep 2\ns_sub_u32 s%d, s%d, 1\ns_cmp_lg_u32 s%d, 0\ns_cbranch_scc1 %s_loop\ns_branch %s' % (R, S_SPIN, S_SPIN, S_SPIN, L, R))
        return (ld, tag), [('waitvm', tag)] + test + ['s_cmp_eq_u64 vcc, exec', 's_cbranch_scc0 ' + L, R + ':']

    @staticmethod
    def const_cut(cs, at):
        i = min(at, len(cs.ops))
        while i < len(cs.ops):
            o = cs.ops[i]; p = cs.ops[i - 1] if i else None
            if p is not None and p.mn.startswith('v_cvt_pk') and o.mn.startswith(('v_add_f32', 'v_mul_f32', 'v_lshrrev')): return i
            i += 1
        return len(cs.ops)
    def build(self):
        a, opt = self.a, self.opt
        self.stamp_tmp = 83
        a('''s_load_dwordx16 s[64:79], s[0:1], 0
s_load_dwordx2 s[80:81], s[0:1], %d
s_load_dwordx2 s[82:83], s[0:1], %d''' % (KA_OUT, KA_WS))
        if self.stamps: a('s_memrealtime s[90:91]\ns_memtime s[92:93]')
        P1.roles(a)
        a('''s_waitcnt lgkmcnt(0)
s_mov_b32 s8, s64
s_mov_b32 s9, s65
s_mov_b32 s10, %d
s_mov_b32 s11, 0x20000
s_mov_b32 s12, s82
s_mov_b32 s13, s83
s_mov_b32 s14, %d
s_mov_b32 s15, 0x20000
s_cmp_ge_u32 s20, 2
s_cselect_b32 s84, s68, s66
s_cselect_b32 s85, s69, s67
s_mov_b32 s86, %d
s_mov_b32 s87, 0x20000
s_cselect_b32 s4, s74, s72
s_cselect_b32 s5, s75, s73
s_mov_b32 s6, %d
s_mov_b32 s7, 0x20000
s_mov_b32 s16, s76
s_mov_b32 s17, s77
s_mov_b32 s18, %d
s_mov_b32 s19, 0x20000
s_mov_b32 s64, s78
s_mov_b32 s65, s79
s_mov_b32 s66, 1152
s_mov_b32 s67, 0x20000
v_lshlrev_b32 v1, 4, v0''' % (NB_X, WS_BYTES, NB_WRI, NB_W, NB_W))
        if self.stamps:
            a('s_lshl_b32 s96, s2, 2\ns_add_u32 s96, s96, s20\ns_lshl_b32 s96, s96, 8\ns_add_u32 s96, s96, %d' % (STAMP_BASE + 65536))
        a('s_lshl_b32 s%d, s21, 5\ns_add_u32 s%d, s%d, s22' % (S_OWN, S_OWN, S_OWN))
        P1.FUSED[0] = True
        P1.x_prefetch(a, 0)
        A1 = AB.A1(16, 96, SLOT, S_OWN, None, s_ax=8, s_gw=64, s_wt=84, wl=None)
        A2 = AB.A2(128, 16, 0, 2, wbase=240, tbase=160)
        pre = Asm()
        P1.setup_rest(pre)
        P1.setup_pf(pre)
        P1.setup_x(pre)
        P2.setup2_scalar(pre)
        pre('''s_lshl_b32 s44, s21, 2
s_lshr_b32 s45, s22, 3
s_add_u32 s44, s44, s45
s_lshl_b32 s44, s44, 7
s_and_b32 s45, s22, 7
s_lshl_b32 s45, s45, 2
s_add_u32 s44, s44, s45
s_add_u32 s%d, s44, %d
s_lshr_b32 s44, s%d, 1
s_lshl_b32 s44, s44, 2
s_add_u32 s44, s44, s%d
s_lshl_b32 s44, s44, 7
s_add_u32 s%d, s44, %d
s_lshl_b32 s44, s%d, 7
s_lshl_b32 s45, s%d, 4
s_add_u32 s44, s44, s45
s_lshl_b32 s45, s%d, 2
s_add_u32 s44, s44, s45
s_add_u32 s%d, s44, %d
s_lshr_b32 s44, s3, 4
s_lshl_b32 s44, s44, 7
s_add_u32 s%d, s44, %d''' % (S_FHP, FH1, P2.S2_T, P2.S2_KS, S_FHC, FH1, P2.S2_T, P2.S2_NT, P2.S2_KS, S_FPP, FP, S_FPC, FP))
        pre('''s_mov_b32 s%d, s%d
s_mov_b32 s%d, s%d
s_lshr_b32 s44, s%d, 1
s_mul_i32 s44, s44, 9
s_and_b32 s45, s%d, 1
s_mul_i32 s45, s45, 5
s_add_u32 s44, s44, s45
s_lshl_b32 s44, s44, 10
s_add_u32 s%d, s44, s%d''' % (S_KS2S, P2.S2_KS, S_NT, P2.S2_NT, P2.S2_NT, P2.S2_NT, S_HPF, P2.S2_H))
        for j in range(8):
            for o in P2.dm_calc(j, 83): pre(o)
        mid = Asm()
        P1.x_prefetch(mid, 1)
        mid('s_mov_b32 s46, %d\nv_mov_b32 v95, 0' % EPOCH)
        mid('buffer_load_dword v94, v95, s[12:15], s46 offen sc1', tag='epoch')
        if opt.get('codepf', True):
            mid('''s_getpc_b64 s[44:45]
L_pc:
s_lshr_b32 s46, s2, 3
s_lshl_b32 s46, s46, 2
s_add_u32 s46, s46, s20
s_lshl_b32 s46, s46, 2
v_and_b32 v248, 3, v0
v_add_u32 v248, s46, v248
v_lshlrev_b32 v248, 7, v248
v_min_u32 v248, L_done - L_pc, v248
v_mov_b32 v249, s45
v_add_co_u32 v248, vcc, s44, v248
v_addc_co_u32 v249, vcc, 0, v249, vcc
global_load_dword v247, v[248:249], off''')
        for op in mid.ops: a.add(op)
        for op in pre.ops: a.add(op)
        if opt.get('pf0_first', False):
            for s_ in range(opt.get('pf0_first')):
                for g in P1.w_prefetch(s_):
                    for c_, o in g: put(a, o)
        self.mark('issued')
        cs = Asm(); A1.consts(cs)
        first, subs = P1.x_substeps()
        cut = self.const_cut(cs, opt.get('xwin_at', 260))
        for op in cs.ops[:cut]: a.add(op)
        for o in first: put(a, o)
        for op in cs.ops[cut:]: a.add(op)
        self.mark('consts')
        A3 = AB.A3(16, 0, S_OWN, 60000, vreg=240, abase=177, tbase=None)
        PKG = {'fre': 0, 'fim': 1, 'tc': 2, 'ts': 3, 'r8': 4, 'cs0': 5, 'cs1': 6, 'sn0': 7, 'sn1': 8, 'twc0': 9, 'twc1': 10, 'tws0': 11, 'tws1': 12, 'ab0': 13, 'ab1': 14}
        pc = Asm()
        pc('v_lshlrev_b32 v172, 4, v0\nv_add_u32 v172, %d, v172' % RAW)
        wr = lambda r, n: pc('ds_write_b128 v172, v[%d:%d] offset:%d' % (r, r + 3, 1024 * PKG[n]))
        A2.float_consts(pc, 104, 128, 132, 136, 140)
        for r, n in ((128, 'fre'), (132, 'fim'), (136, 'tc'), (140, 'ts')): wr(r, n)
        def done(a_, n):
            if n == 'r8': wr(144, 'r8')
            elif n.startswith('cs'): wr(148, n); wr(152, 'sn' + n[2])
            elif n.startswith('tw'): wr(156, 'twc' + n[2]); wr(160, 'tws' + n[2])
            else: wr(164, n)
        A3.wide = False
        A3.float_consts(pc, 168, 104, 144, 148, 152, 156, 160, 164, done=done)
        pq = list(pc.ops)
        ld = Asm(); A1.loads(ld); A1.loads_w(ld)
        nsub = len(subs)
        tail_r = [[o for o in ld.ops]]
        if opt.get('w0_mode', 'bulk') == 'bulk':
            w0_all = [P1.dma_ops(0, j) for j in range(9)]
            tail_r += [w0_all[0] + w0_all[1]] + w0_all[2:]
            subs[nsub - 1] = subs[nsub - 1]
        else:
            for s_ in (0, 1):
                for g in P1.w_prefetch(s_): tail_r.append([o for c_, o in g])
        for i, r_ in enumerate(tail_r): subs[nsub - 9 + i] = subs[nsub - 9 + i] + r_
        if opt.get('w0_mode', 'bulk') == 'bulk' and opt.get('pf1', True) and opt.get('pf0_first', 0) < 2:
            subs[nsub - 1] = subs[nsub - 1] + [o for g in P1.w_prefetch(1) for c_, o in g]
        per = -(-len(pq) // (nsub - 10))
        for i_, st_ in enumerate(subs):
            if i_ == nsub - 9:
                for o in pq: a.add(o)
                pq = []
            for o in st_:
                if isinstance(o, Op): a.add(o)
                else: put(a, o)
            for o in pq[:per]: a.add(o)
            pq = pq[per:]
        self.mark('xdone')
        a.wait_vm('epoch')
        a('v_readfirstlane_b32 s%d, v94' % S_NONCE)
        a('s_nop 0\ns_mul_i32 s%d, s%d, 0x19660d\ns_add_u32 s%d, s%d, 0x3c6ef35f' % ((S_NONCE,) * 4))
        b = Asm()
        def gate_to(a_, t):
            a_('''s_lshl_b32 s46, s3, 5
s_lshl_b32 s47, s20, 3
s_add_u32 s46, s46, s47
s_add_u32 s46, s46, %d
s_mov_b64 exec, 1
buffer_store_dwordx2 v[%d:%d], v1, s[12:15], s46 offen
s_mov_b64 exec, -1''' % (G_BASE, t, t + 1))
        A1.s_rl = 40
        A1.compute(b, gate_to=gate_to, stflags=opt.get('ust', 'sc1'))
        if opt.get('ust_none'): b.ops = [o for o in b.ops if o.tag != 'ust']
        w0 = [P1.dma_ops(0, j) for j in range(9)] if opt.get('w0_mode', 'bulk') != 'bulk' else []
        w0at = opt.get('w0_at', 120); w0step = opt.get('w0_step', 12)
        inexec = False
        for i_, op in enumerate(b.ops):
            a.add(op)
            if op.text.startswith('s_mov_b64 exec, 1'): inexec = True
            if op.text.startswith('s_mov_b64 exec, -1'): inexec = False
            if i_ >= w0at and w0 and not inexec and (i_ - w0at) % w0step == 0:
                for o in w0.pop(0): put(a, o)
        for d_ in w0:
            for o in d_: put(a, o)
        self.mark('a1done')
        a.wait_lgkm(('xr', 35))
        a('s_barrier')
        if opt.get('dma1_pro', True):
            for j in range(9):
                for o in P1.dma_ops(1, j): put(a, o)
        for s_ in ((2, 3) if opt.get('pf3_pro', False) else (2,)):
            for g in P1.w_prefetch(s_):
                for c_, o in g: put(a, o)
        a.wait_vm(('dma', 0))
        a('s_barrier')
        self.mark('p1start')
        P1.LANE8[0] = 4
        fu_ld, fu_chk = self.flags('four', 128, 42, 1, 'fu')
        fh_ld, fh_chk = self.flags('one', 224, S_FHC, 225, 'fh1')
        SA = lambda L: [('S' if x.startswith('s_') else 'a', x) for x in L]
        def hpf_addr(d, t):
            return ['v_bfe_u32 v%d, v0, 3, 1' % d, 'v_mul_u32_u24 v%d, %d, v%d' % (d, 144 * 1024, d), 'v_and_b32 v%d, 7, v0' % t,
                    'v_lshl_add_u32 v%d, v%d, 7, v%d' % (d, t, d), 'v_bfe_u32 v%d, v0, 4, 1' % t, 'v_mul_u32_u24 v%d, %d, v%d' % (t, 18 * 1024, t),
                    'v_add_u32 v%d, v%d, v%d' % (d, d, t), 'v_lshrrev_b32 v%d, 5, v0' % t, 'v_lshl_add_u32 v%d, v%d, 10, v%d' % (d, t, d)]
        WDPF = opt.get('wdpf', [4, 5, 6])
        P1.SPLIT8[0] = opt.get('split8', [(0, 5), (5, 9), (9, 9)])
        D2AT = opt.get('d2at', {0: 7, 1: 8, 2: 9})
        def extra(st, nv):
            g = []
            dist = opt.get('dist', 3)
            lead = opt.get('wpf_lead', 2)
            if lead and st + dist + lead <= 8 and st >= opt.get('wpf_from', 1):
                for i, grp in enumerate(P1.w_prefetch(st + dist + lead)): g.append((opt.get('wpf_pos', 6) + opt.get('wpf_step', 40) * i, grp))
            if lead == 2 and st == 0:
                for i, grp in enumerate(P1.w_prefetch(4)): g.append((20 + 40 * i, grp))
            if st == 0:
                if not opt.get('dma1_pro', True):
                    for j in range(9):
                        d = P1.dma_ops(1, j); g.append((1 + 4 * j, [('S', d[0]), ('S', d[1]), ('M', d[2])]))
                if dist == 3:
                    for j in range(9):
                        d = P1.dma_ops(2, j); g.append((opt.get('d2pos', 20) + 7 * j, [('S', d[0]), ('S', d[1]), ('M', d[2])]))
            P8 = opt.get('pf8', [])
            if st in P8: g.append((100, P1.w_prefetch(8)[P8.index(st)]))
            if st in WDPF:
                e = WDPF.index(st)
                pre = ['s_lshr_b32 s44, s2, 3', 's_lshl_b32 s44, s44, 2', 's_add_u32 s44, s44, s20', 's_mul_i32 s44, s44, 3', 's_add_u32 s44, s44, %d' % e,
                       's_mul_i32 s45, s44, 911', 's_lshr_b32 s45, s45, 16', 's_mul_i32 s43, s45, 72', 's_sub_u32 s44, s44, s43',
                       's_lshl_b32 s44, s44, 7', 's_mul_i32 s45, s45, %d' % (32 * 9216), 's_add_u32 s44, s44, s45',
                       's_mul_i32 s45, s%d, %d' % (S_KS2S, 1152 * 1152), 's_add_u32 s44, s44, s45']
                g.append((opt.get('wdpf_pos', 60) if st < 7 else 4, SA(pre) + [('L', ('buffer_load_dword v8, v5, s[16:19], s44 offen', 'pf'))]))
            for s_, at in D2AT.items():
                if at == st:
                    lo_, hi_ = {6: (64, 134), 7: (90, 136), 8: (30, 90)}[st]
                    for j in range(8):
                        o = P2.dma2_ops(s_, j, 1 + s_)
                        g.append((lo_ + (j * (hi_ - lo_)) // 8, [('S', x) for x in o[:-1]] + [('M', o[-1])]))
            if st == 7:
                g.append((60, [('W', ('waitvm', 'pf'))] + SA(P1.rs_ops(4)) + SA(['v_lshlrev_b32 v4, 3, v0'])))
            if st == 8:
                g.append((0, SA(['s_mov_b32 s42, %d' % FU]) + [('L', fu_ld)]))
                g.append((10, SA(A2.u_base_ops(S_UO))))
                g.append((opt.get('fu_pos', 136), [('Z', fu_chk)]))
            return g
        def touches(pk, lo, hi):
            for n in pk.q:
                o = Op(n.item[0] if isinstance(n.item, tuple) else n.item)
                if (o.reads | o.writes) & {('v', i) for i in range(lo, hi)}: return True
            return False
        def stores_done(pk, p):
            def f(a_):
                if opt.get('hst') == 'none': return
                assert not any(isinstance(n.item, tuple) and n.item[1] == ('hst', p) for n in pk.q), 'stores of pair %d not yet issued' % p
                a_.wait_vm(('hst', p))
            return f
        SP = [84, 85, 86, 87, 94, 95, 97, 100]
        IM = opt.get('intra')
        def hook(st, nv, pk):
            if self.stamps and IM and st == IM[0]:
                for i_, pos in enumerate(IM[1]):
                    nv[pos].append(('Z', ['s_memtime s[98:99]', 's_waitcnt lgkmcnt(0)', 's_mov_b32 s%d, s98' % SP[i_]]))
            if st == 8:
                assert not touches(pk, 128, 160), 'GEGLU of pair 2 still pending in stage 8'
                nv[124] += [('W', stores_done(pk, 2)), ('B', 's_barrier')]
                nv[125].append(('Z', self.publish(S_FHP + 0, 158, 0, base2=True)))
            if st == opt.get('fu_st', 1):
                nv[110].insert(0, ('W', ('waitvm', 'ust')))
                nv[111].append(('Z', ['s_lshl_b32 s43, s3, 2', 's_add_u32 s43, s43, %d' % FU] + self.publish(43, 83)))
            if st == 6:
                nv[110].insert(0, ('W', stores_done(pk, 1)))
                nv[111].append(('Z', self.publish(S_FHP, 4)))
        SPI = opt.get('p1marks', [1, 2, 3, 4, 5, 6, 7, 8]) if not opt.get('intra') else []
        def st1(a_, i):
            if i in SPI: a_('s_memtime s[98:99]\ns_waitcnt lgkmcnt(0)\ns_mov_b32 s%d, s98' % SP[SPI.index(i)])
        pk = P1.emit_phase1(a, stflags=opt.get('hst', 'sc1'), extra_dma=extra, prologue=False, hook=hook, tail=False, dist=opt.get('dist', 3), stamp=(st1 if self.stamps else None), skip=opt.get('skip1', ()))
        if self.stamps:
            a('s_waitcnt lgkmcnt(0)')
            names = ['s%d' % x for x in SPI] if not IM else ['i%d_%d' % (IM[0], x) for x in IM[1]]
            for i in range(len(names)):
                j = len(self.marks); self.marks.append(names[i])
                a('v_mov_b32 v255, s%d\ns_mov_b64 exec, 1\nbuffer_store_dword v255, v1, s[12:15], s96 offen offset:%d\ns_mov_b64 exec, -1' % (SP[i], 4 * j))
        self.stamp_tmp = 255
        self.mark('p1end')
        P2.setup2_vec(a)
        for o in P2.dm_calc(8, 16): a(o)
        for s_ in range(3):
            o = P2.dma2_ops(s_, 0, 1 + s_)[0:1] + P2.dma2_ops(s_, 8, 1 + s_)
            for x in o: put(a, x)
        a('v_and_b32 v225, 7, v0\nv_lshlrev_b32 v225, 2, v225')
        put(a, fh_ld)
        for o in hpf_addr(226, 227): a(o)
        riders = A2.u_load_ops(S_UO)
        for s_, at in D2AT.items():
            if at == 9: riders += [P2.dma2_ops(s_, j, 1 + s_) for j in range(8)]
        hr = [[x for c_, x in P2.h_ops(s_, i, rb, opt.get('hld', 'sc1'))] for s_ in range(2) for i in range(4) for rb in range(2)]
        seq = list(riders)
        nq = len(pk.q); step = max(1, nq // (len(seq) + 1))
        pk.drain(rider=lambda i: put(a, seq.pop(0)) if (seq and i % step == step - 1) else None)
        for x in seq: put(a, x)
        self.mark('geglu')
        put(a, fh_chk)
        put(a, ('buffer_load_dword v228, v226, s[12:15], s%d offen' % S_HPF, 'pf'))
        a('s_cmp_ge_u32 s2, 200\ns_cbranch_scc1 L_noa2')
        a('s_barrier')
        b2 = Asm()
        if opt.get('park', True):
            b2('v_lshlrev_b32 v%d, 4, v0\nv_add_u32 v%d, %d, v%d' % (A2.t, A2.t, RAW, A2.t))
            for r, n in ((A2.fre, 'fre'), (A2.fim, 'fim'), (A2.tc, 'tc'), (A2.ts, 'ts')):
                b2('ds_read_b128 v[%d:%d], v%d offset:%d' % (r, r + 3, A2.t, 1024 * PKG[n]))
            A2.scaled_twiddles(b2); A2.addresses(b2)
        else: A2.consts(b2)
        A2.stage_in(b2)
        A2.compute(b2, before_bar=lambda a_: (a_.wait_vm(('hst', 4)) if opt.get('hst') != 'none' else None), after_bar=lambda a_: put(a_, ['s_add_u32 s43, s%d, 8192' % S_FHP] + self.publish(43, 252)))
        A2.stage_out(b2)
        n0 = next(i for i, o in enumerate(b2.ops) if o.text == 's_barrier') + 1
        hq = list(hr); inexec = False
        stepn = max(1, (len(b2.ops) - n0 - 60) // (len(hq) + 1))
        for i, op in enumerate(b2.ops):
            a.add(op)
            if op.text.startswith('s_mov_b64 exec, 1'): inexec = True
            if op.text.startswith('s_mov_b64 exec, -1'): inexec = False
            if i >= n0 and hq and not inexec and (i - n0) % stepn == 0: put(a, hq.pop(0))
        for x in hq: put(a, x)
        a('L_a2done:')
        c = self.cold
        c('L_noa2:')
        for x in hr: put(c, x)
        c('s_waitcnt vmcnt(0)\ns_barrier')
        put(c, ['s_add_u32 s43, s%d, 8192' % S_FHP] + self.publish(43, 252)); c('s_waitcnt vmcnt(0)\ns_branch L_a2done')
        self.mark('a2')
        h2_ld, h2_chk = self.flags('one', 80, 42, 81, 'fh2')
        h3_ld, h3_chk = self.flags('one', 80, 42, 81, 'fh3')
        fv_ld, fv_chk = self.flags('four', 84, 42, 82, 'fv')
        epi = P2.epi_ops(88)
        A3.tt, A3.xx = 212, 224
        ad = Asm(); A3.v_lds_addr(ad); A3.item_addr(ad); A3.addresses(ad)
        adq = [o.text for o in ad.ops]
        def pre2(st, nv, groups):
            if st == 0:
                for i, o in enumerate(['v_and_b32 v81, 7, v0', 'v_lshlrev_b32 v81, 2, v81'] + hpf_addr(92, 93) +
                                      ['v_bfe_u32 v93, v0, 3, 1', 'v_lshlrev_b32 v93, 14, v93', 'v_and_b32 v94, 7, v0', 'v_lshl_add_u32 v93, v94, 7, v93']):
                    nv[i].append(('a', o))
                groups.append((4, [('S', 's_add_u32 s42, s%d, 4096' % S_FHC), ('L', h2_ld)]))
            if st == 1:
                nv[0].append(('Z', h2_chk + ['s_add_u32 s43, s%d, 2048' % S_HPF, 's_mov_b32 exec_hi, 0',
                                             ('buffer_load_dword v95, v92, s[12:15], s43 offen', 'pf'), 's_mov_b64 exec, -1']))
                nv[61].insert(0, ('W', ('waitvm', 'vst')))
                nv[62].append(('Z', ['s_lshl_b32 s43, s2, 2', 's_add_u32 s43, s43, %d' % FV] + self.publish(43, 83)))
            if st == 2:
                groups.append((4, [('S', 's_add_u32 s42, s%d, 8192' % S_FHC), ('L', h3_ld)]))
            if st == 3:
                nv[0].append(('Z', h3_chk + ['s_add_u32 s43, s%d, 3072' % S_HPF, 's_mov_b32 exec_hi, 0',
                                             ('buffer_load_dword v95, v92, s[12:15], s43 offen', 'pf'),
                                             's_lshl_b32 s43, s%d, 10' % S_NT, 's_add_u32 s43, s43, s%d' % P2.S2_HS, 's_mov_b64 exec, 0xffff',
                                             ('buffer_load_dword v95, v93, s[12:15], s43 offen', 'pf'), 's_mov_b64 exec, -1']))
            if st == 0: pass
            if st == 6:
                for i, o in enumerate(epi): nv[2 + (i * 69) // len(epi)].append(('a', o))
            if st in (1, 2, 3, 4, 5):
                n_ = (len(adq) + (5 - st)) // (6 - st) if st < 5 else len(adq)
                for i in range(n_): nv[2 + (i * 68) // max(n_, 1)].append(('a', adq.pop(0)))
            if st == 6:
                nv[0].append(('a', 'v_min_u32 v82, 49, v0')); nv[1].append(('a', 'v_lshlrev_b32 v82, 4, v82'))
                groups.append((4, [('S', 's_mov_b32 s42, %d' % FV), ('L', fv_ld)]))
            if st == 7:
                va = A3.v_addr_ops(88)
                nv[0].append(('Z', fv_chk))
                for i, o in enumerate(va): nv[1 + i].append(('a', o))
                groups.append((len(va) + 3, [('L', x) for x in A3.v_load_ops(88)]))
        def st2(a_, i): self.mark('t%d' % i)
        P2.emit_phase2(a, slot0=1, ldflags=opt.get('hld', 'sc1'), skip=opt.get('skip2', ()), pre_stage=pre2, stamp=(st2 if self.stamps and opt.get('stage_marks') else None))
        self.mark('p2end')
        P2.epilogue2(a)
        a('s_lshl_b32 s46, s3, 5\ns_add_u32 s46, s46, %d\nv_lshlrev_b32 v4, 2, v0' % G_BASE)
        a('buffer_load_dword v5, v4, s[12:15], s46 offen', tag='g')
        a('s_mov_b32 s64, s80\ns_mov_b32 s65, s81\ns_mov_b32 s66, %d\ns_mov_b32 s67, 0x20000' % NB_X)
        assert not adq
        a('v_lshlrev_b32 v6, 4, v0\nv_add_u32 v6, %d, v6' % RAW)
        for r, n in ((A3.r8, 'r8'), (A3.cs, 'cs0'), (A3.cs + 4, 'cs1'), (A3.sn, 'sn0'), (A3.sn + 4, 'sn1'), (A3.twc, 'twc0'), (A3.twc + 4, 'twc1'),
                     (A3.tws, 'tws0'), (A3.tws + 4, 'tws1'), (A3.ab, 'ab0'), (A3.ab + 4, 'ab1')):
            a('ds_read_b128 v[%d:%d], v6 offset:%d' % (r, r + 3, 1024 * PKG[n]))
        A3.negsin(a)
        a('s_barrier')
        self.mark('a3consts')
        a('v_add_u32 v4, %d, v4' % A3.gl)
        a.wait_vm('g')
        a('s_mov_b64 exec, 0xff\nds_write_b32 v4, v5\ns_mov_b64 exec, -1')
        A3.spectral(a, mid_before=lambda a_: a_.wait_vm('pst'), mid_after=lambda a_: put(a_, self.publish(S_FPP, 252)))
        self.mark('spectral')
        fp_ld, fp_chk = self.flags('one', 4, S_FPC, 5, 'fp')
        a('v_and_b32 v5, 15, v0\nv_lshlrev_b32 v5, 2, v5')
        put(a, fp_ld); put(a, fp_chk)
        self.mark('pflags')
        A3.p_loads(a)
        A3.mix(a)
        a('s_cmp_lg_u32 s2, 0\ns_cbranch_scc1 L_fin')
        a('s_mov_b32 s46, %d' % EPOCH)
        put(a, self.publish(46, 252))
        a('L_fin:')
        self.mark('end')
        a('s_waitcnt vmcnt(0)')
        if self.stamps:
            a('''s_memrealtime s[94:95]
s_memtime s[98:99]
s_waitcnt lgkmcnt(0)
v_mov_b32 v10, s90
v_mov_b32 v11, s92
v_mov_b32 v12, s94
v_mov_b32 v13, s98
s_lshl_b32 s40, s2, 2
s_add_u32 s40, s40, s20
s_lshl_b32 s40, s40, 4
s_add_u32 s40, s40, %d
s_mov_b64 exec, 1
buffer_store_dwordx4 v[10:13], v1, s[12:15], s40 offen
s_waitcnt vmcnt(0)''' % STAMP_BASE)
        a('s_endpgm')
        body = a.finalize(); cold = self.cold.finalize()
        Kn = KN + '_kernel'
        src = HEADER + '; @launch grid=(256,1,1) block=(256,1,1) lds=%d\n' % LDS_BYTES
        src += '.amdgcn_target "amdgcn-amd-amdhsa--gfx950"\n.text\n.globl %s\n.p2align 8\n.type %s,@function\n%s:\n s_cmp_ge_u32 s2, 256\n s_cbranch_scc1 L_done\n' % (Kn, Kn, Kn)
        src += body + '\n' + cold + '\nL_done:\n s_endpgm\n.section .rodata,"a"\n' + kernel_desc(Kn) + '\n'
        return src

def variant(name, **opt):
    import json
    opt.setdefault('stage_marks', True)
    f = Fused(stamps=True, opt=opt); src = f.build(); open('work/%s.s' % name, 'w').write(src)
    json.dump(f.marks, open('work/%s.json' % name, 'w'))

if __name__ == '__main__':
    out = sys.argv[1] if len(sys.argv) > 1 else 'fused.s'
    f = Fused(); src = f.build(); open(out, 'w').write(src); print(out, f.a.stats, len(src))
    f = Fused(stamps=True, opt={'stage_marks': True}); src = f.build(); open(out.replace('.s', '_st.s'), 'w').write(src)
    import json; json.dump(f.marks, open(out.replace('.s', '_st.json'), 'w')); print(len(f.marks), 'marks')
```

```python
from asmlib import *
from common import *
import math

S_WV = 20
S_WS = 12
MF = 'v_mfma_f32_16x16x32_bf16'

def lit(x): return '0x%08x' % f32bits(x)

class Regs:
    def __init__(self, base): self.n = base
    def get(self, k=1, align=1):
        self.n = (self.n + align - 1) // align * align
        r = self.n; self.n += k
        return r

def lane_floats(a, vn, vq, fn, fq):
    a('v_and_b32 v%d, 15, v0\nv_lshrrev_b32 v%d, 4, v0\nv_cvt_f32_u32 v%d, v%d\nv_cvt_f32_u32 v%d, v%d' % (vn, vq, fn, vn, fq, vq))

def cos_pairs(a, dst, revs):
    for r in revs: a('v_cos_f32 v%d, v%d' % (r, r))
    for k in range(len(revs) // 2): a('v_cvt_pk_bf16_f32 v%d, v%d, v%d' % (dst + k, revs[2 * k], revs[2 * k + 1]))

class A1:
    def __init__(self, base, base2, lds, sw, gl_lds, s_ax=64, s_gw=68, s_wt=84, wl=None):
        self.S_AX, self.S_GW = s_ax, s_gw
        self.S_WT, self.WL = s_wt, wl
        self.s_rl = 72
        R = Regs(base)
        self.lds, self.sw, self.gl = lds, sw, gl_lds
        self.RP = 1600
        self.XR, self.XL = lds, lds + 8 * self.RP
        if wl is None: self.WL = self.XL + 10240
        self.b1c, self.b1s = R.get(4, 4), R.get(4, 4)
        self.twc, self.tws = R.get(8), R.get(8)
        self.a2r, self.a2i = R.get(12, 4), R.get(12, 4)
        self.r8 = R.get(4, 4)
        self.xa, self.xlw, self.msk, self.xlr = R.get(), R.get(6), R.get(2), R.get()
        self.end1 = R.n
        R = Regs(base2)
        self.dv, self.gx, self.gw = R.get(2), R.get(), R.get(5)
        self.af = R.get(16, 4)
        self.d2 = R.get(24, 4)
        self.d1 = R.get(32, 4)
        self.b2 = R.get(16, 4)
        self.t = R.get(12, 4)
        self.wa = R.get(); self.uo = R.get(5)
        self.wx = [self.d1 + 20 + i for i in range(12)] + [self.t + i for i in range(8)]
        self.end = R.n
    def loads(self, a, t=None):
        t = self.t if t is None else t
        a('''v_lshlrev_b32 v%d, 4, v0
v_add_u32 v%d, 1024, v%d
v_mov_b32 v%d, 0x7ffffff0
v_cmp_gt_u32 vcc, 8, v0
v_cndmask_b32 v%d, v%d, v%d, vcc
s_lshl_b32 s46, s%d, 9
s_add_u32 s46, s46, s%d
s_mul_i32 s46, s46, 1152
s_mul_i32 s47, s%d, %d
s_add_u32 s47, s47, %d''' % (self.dv, self.dv + 1, self.dv, t, self.dv + 1, t, self.dv + 1, S_WV, self.sw, S_WV, 2 * self.RP, self.XR))
        for e in range(2):
            for h in range(2):
                a('s_add_u32 s45, s46, %d\ns_add_u32 m0, s47, %d' % (e * 256 * 1152, e * self.RP + h * 1024))
                if h: a('s_mov_b32 exec_hi, 0xf')
                a('buffer_load_dwordx4 v%d, s[%d:%d], s45 offen lds' % (self.dv + h, self.S_AX, self.S_AX + 3), tag='a1x')
                if h: a('s_mov_b64 exec, -1')
        a('v_lshlrev_b32 v%d, 2, v0' % t)
        for i in range(5):
            a('buffer_load_dword v%d, v%d, s[%d:%d], 0 offen offset:%d' % (self.gw + i, t, self.S_GW, self.S_GW + 3, 256 * i), tag='a1g')
    def loads_w(self, a):
        a('''s_mul_i32 s46, s%d, 4624
s_and_b32 s47, s%d, 1
s_mul_i32 s47, s47, 3072
s_add_u32 s46, s46, s47
s_mul_i32 s47, s%d, 3072
s_add_u32 s47, s47, %d''' % (self.sw, S_WV, S_WV, self.WL))
        for i in range(3):
            a('s_add_u32 s45, s46, %d\ns_add_u32 m0, s47, %d' % (1024 * i, 1024 * i))
            a('buffer_load_dwordx4 v%d, s[%d:%d], s45 offen lds' % (self.dv, self.S_WT, self.S_WT + 3), tag='a1w')
    def consts(self, a):
        t = self.t
        vn, vq, fn, fq = t, t + 1, t + 2, t + 3
        x = self.d1
        lane_floats(a, vn, vq, fn, fq)
        a('v_mul_f32 v%d, %s, v%d' % (x + 16, lit(-1 / 24.), fn))
        a('v_mul_f32 v%d, %s, v%d' % (x + 17, lit(8.0), fq))
        a('v_mul_f32 v%d, v%d, v%d' % (x, x + 16, x + 17))
        for i in range(1, 8): a('v_add_f32 v%d, v%d, v%d' % (x + i, x + i - 1, x + 16))
        for i in range(8): a('v_sin_f32 v%d, v%d' % (x + 8 + i, x + i))
        for i in range(8): a('v_cos_f32 v%d, v%d' % (x + i, x + i))
        a('v_cmp_eq_u32 vcc, 3, v%d' % vq)
        for k in range(4):
            a('v_cvt_pk_bf16_f32 v%d, v%d, v%d' % (self.b1c + k, x + 2 * k, x + 2 * k + 1))
            a('v_cvt_pk_bf16_f32 v%d, v%d, v%d' % (self.b1s + k, x + 8 + 2 * k, x + 9 + 2 * k))
        for k in range(4):
            a('v_cndmask_b32_e64 v%d, v%d, 0, vcc' % (self.b1c + k, self.b1c + k))
            a('v_cndmask_b32_e64 v%d, v%d, 0, vcc' % (self.b1s + k, self.b1s + k))
        a('v_mul_f32 v%d, %s, v%d' % (x + 16, lit(-1 / 576.), fn))
        a('v_mul_f32 v%d, 4.0, v%d' % (x + 17, fq))
        a('v_mul_f32 v%d, v%d, v%d' % (x, x + 16, x + 17))
        for r in range(1, 4): a('v_add_f32 v%d, v%d, v%d' % (x + r, x + r - 1, x + 16))
        a('v_mul_f32 v%d, %s, v%d' % (x + 17, lit(16.0), x + 16))
        for r in range(4): a('v_add_f32 v%d, v%d, v%d' % (x + 4 + r, x + r, x + 17))
        for i in range(8): a('v_sin_f32 v%d, v%d' % (self.tws + i, x + i))
        for i in range(8): a('v_cos_f32 v%d, v%d' % (self.twc + i, x + i))
        a('''v_lshrrev_b32 v%d, 1, v%d
v_cvt_f32_u32 v%d, v%d
v_and_b32 v%d, 1, v%d
v_cvt_f32_u32 v%d, v%d''' % (x + 16, vn, x + 16, x + 16, x + 17, vn, x + 17, x + 17))
        a('v_mul_f32 v%d, %s, v%d' % (x + 17, lit(0.25), x + 17))
        a('v_mul_f32 v%d, 4.0, v%d' % (x + 18, fq))
        a('v_cmp_lt_u32 vcc, 1, v%d' % vq)
        for blk in range(3):
            a('v_add_f32 v%d, %s, v%d' % (x + 19, lit(8.0 * blk), x + 16))
            a('v_mul_f32 v%d, %s, v%d' % (x + 19, lit(1 / 24.), x + 19))
            a('v_fma_f32 v%d, v%d, v%d, v%d' % (x, x + 19, x + 18, x + 17))
            for i in range(1, 4): a('v_add_f32 v%d, v%d, v%d' % (x + i, x + i - 1, x + 19))
            a('v_mul_f32 v%d, %s, v%d' % (x + 20, lit(16.0), x + 19))
            for i in range(4): a('v_add_f32 v%d, v%d, v%d' % (x + 4 + i, x + i, x + 20))
            for i in range(8): a('v_add_f32 v%d, %s, v%d' % (x + 8 + i, lit(-0.25), x + i))
            cos_pairs(a, self.a2r + 4 * blk, [x + i for i in range(8)])
            cos_pairs(a, self.a2i + 4 * blk, [x + 8 + i for i in range(8)])
            for k in (2, 3):
                a('v_cndmask_b32_e64 v%d, v%d, 0, vcc' % (self.a2r + 4 * blk + k, self.a2r + 4 * blk + k))
                a('v_cndmask_b32_e64 v%d, v%d, 0, vcc' % (self.a2i + 4 * blk + k, self.a2i + 4 * blk + k))
        self.r8_consts(a, self.r8, +1, x, vn, vq, fq)
        self.addresses(a, vn, vq)
    def r8_consts(self, a, dst, sgn, x, vn, vq, fq):
        a('''v_lshrrev_b32 v%d, 1, v%d
v_cvt_f32_u32 v%d, v%d
v_and_b32 v%d, 1, v%d
v_cvt_f32_u32 v%d, v%d
v_cvt_f32_u32 v%d, s%d''' % (x + 16, vn, x + 16, x + 16, x + 17, vn, x + 17, x + 17, x + 18, self.sw))
        a('v_mul_f32 v%d, %s, v%d' % (x + 17, lit(0.25 * sgn), x + 17))
        if sgn > 0:
            a('v_mul_f32 v%d, %s, v%d' % (x + 18, lit(1 / 256.), x + 18))
            a('v_fma_f32 v%d, %s, v%d, v%d' % (x + 18, '4.0', fq, x + 18))
            a('v_mul_f32 v%d, %s, v%d' % (x + 19, lit(0.125), x + 16))
            a('v_fma_f32 v%d, v%d, v%d, v%d' % (x, x + 18, x + 19, x + 17))
            for jj in range(1, 4): a('v_add_f32 v%d, v%d, v%d' % (x + 2 * jj, x + 2 * jj - 2, x + 19))
        else:
            a('v_mul_f32 v%d, %s, v%d' % (x + 18, lit(1 / 256.), x + 18))
            a('v_add_f32 v%d, v%d, v%d' % (x + 18, x + 18, x + 16))
            a('v_mul_f32 v%d, %s, v%d' % (x + 19, lit(0.125), x + 18))
            a('v_mul_f32 v%d, 4.0, v%d' % (x + 18, fq))
            a('v_fma_f32 v%d, v%d, v%d, v%d' % (x, x + 18, x + 19, x + 17))
            for jj in range(1, 4): a('v_add_f32 v%d, v%d, v%d' % (x + 2 * jj, x + 2 * jj - 2, x + 19))
        for jj in range(4): a('v_add_f32 v%d, %s, v%d' % (x + 2 * jj + 1, lit(-0.25 * sgn), x + 2 * jj))
        cos_pairs(a, dst, [x + i for i in range(8)])
        a('v_cmp_lt_u32 vcc, 1, v%d' % vq)
        for k in range(4): a('v_cndmask_b32_e64 v%d, v%d, 0, vcc' % (dst + k, dst + k))
    def addresses(self, a, vn, vq):
        x = self.d1
        a('''v_lshrrev_b32 v%d, 2, v%d
v_lshl_add_u32 v%d, v%d, 3, v%d
v_mul_u32_u24 v%d, 48, v%d
v_and_b32 v%d, 3, v0
v_lshl_add_u32 v%d, v%d, 3, v%d
s_mul_i32 s46, s%d, %d
s_add_u32 s46, s46, %d
v_add_u32 v%d, s46, v%d''' % (x, vn, x, vq, x, x, x, x + 1, x, x + 1, x, S_WV, 2 * self.RP, self.XR, self.xa, x))
        a('s_lshl_b32 s46, s%d, 3\ns_add_u32 s46, s46, %d' % (S_WV, self.XL))
        for blk in range(3):
            for rr in range(2):
                d = self.xlw + 2 * blk + rr
                a('''v_lshl_add_u32 v%d, v%d, 1, %d
v_mul_u32_u24 v%d, 24, v%d
v_add_u32 v%d, v%d, v%d
v_sub_u32 v%d, 576, v%d
v_cmp_lt_u32 vcc, 288, v%d
v_cndmask_b32 v%d, v%d, v%d, vcc''' % (x, vq, 8 * blk + rr, x, x, x, x, vn, x + 1, x, x, x + 2, x, x + 1))
                if blk == 1:
                    a('v_mov_b32 v%d, 0x80000000\nv_cndmask_b32_e64 v%d, 0, v%d, vcc' % (x + 3, self.msk + rr, x + 3))
                a('''v_cmp_lt_u32 s[46:47], 12, v%d
v_add_u32 v%d, -1, v%d
v_cmp_lt_u32 s[48:49], 10, v%d
s_and_b64 s[48:49], s[48:49], vcc
s_or_b64 s[48:49], s[48:49], s[46:47]
v_mov_b32 v%d, 300
v_cndmask_b32_e64 v%d, v%d, v%d, s[48:49]
s_lshl_b32 s46, s%d, 3
s_add_u32 s46, s46, %d
v_lshlrev_b32 v%d, 5, v%d
v_add_u32 v%d, s46, v%d''' % (vn, x + 3, vn, x + 3, x + 3, x + 2, x + 2, x + 3, S_WV, self.XL, x + 2, x + 2, d, x + 2))
        a('''s_lshl_b32 s46, s%d, 9
s_add_u32 s46, s46, %d
v_and_b32 v%d, 1, v%d
v_lshlrev_b32 v%d, 4, v%d
v_lshl_add_u32 v%d, v%d, 5, v%d
v_add_u32 v%d, s46, v%d
v_lshlrev_b32 v%d, 2, v0
s_mul_i32 s46, s%d, %d
s_add_u32 s46, s46, %d
v_add_u32 v%d, s46, v%d''' % (S_WV, self.XL, x, vq, x, x, x, vn, x, self.xlr, x, x, S_WV, 2 * self.RP, self.XR, self.gx, x))
        a('v_mul_u32_u24 v%d, %d, v%d' % (x + 3, 2 * 25 * 128, vq))
        for i in range(5):
            a('s_lshl_b32 s46, s%d, 4\ns_add_u32 s46, s46, %d\nv_add_u32 v%d, s46, v%d' % (S_WV, 64 * i, x, vn))
            a('v_mul_u32_u24 v%d, 5462, v%d\nv_lshrrev_b32 v%d, 16, v%d' % (x + 1, x, x + 1, x + 1))
            a('v_mul_u32_u24 v%d, 12, v%d\nv_sub_u32 v%d, v%d, v%d' % (x + 2, x + 1, x + 2, x, x + 2))
            a('v_lshlrev_b32 v%d, 7, v%d\nv_lshl_add_u32 v%d, v%d, 3, v%d' % (x + 1, x + 1, x + 2, x + 2, x + 1))
            a('v_add_u32 v%d, v%d, v%d\nv_add_u32 v%d, %d, v%d' % (x + 2, x + 2, x + 3, self.uo + i, self.lds, x + 2))
            if i == 4:
                a('v_mov_b32 v%d, %d\nv_cmp_gt_u32 vcc, 300, v%d\nv_cndmask_b32 v%d, v%d, v%d, vcc' % (x + 1, self.lds + 200 * 128, x, self.uo + i, x + 1, self.uo + i))
        a('''v_mul_u32_u24 v%d, 1156, v%d
v_lshl_add_u32 v%d, v%d, 1, v%d
s_lshl_b32 s46, s%d, 5
s_add_u32 s46, s46, %d
v_add_u32 v%d, s46, v%d''' % (x, vq, x, vn, x, S_WV, self.WL, self.wa, x))
    def compute(self, a, stflags='sc1', gate_to=None):
        t = self.t
        a.wait_vm('a1x')
        for e in range(2):
            for i in range(5): a('ds_read_b32 v%d, v%d offset:%d' % (self.d2 + 5 * e + i, self.gx, e * self.RP + 256 * i))
        for e in range(2):
            for mb in range(2):
                r = self.af + 8 * e + 4 * mb
                a('ds_read_b64_tr_b16 v[%d:%d], v%d offset:%d' % (r, r + 1, self.xa, e * self.RP + 32 * mb))
                a('ds_read_b64_tr_b16 v[%d:%d], v%d offset:%d' % (r + 2, r + 3, self.xa, e * self.RP + 32 * mb + 192))
        for e in range(2):
            for mb in range(2):
                r = self.af + 8 * e + 4 * mb
                for c, B in enumerate((self.b1c, self.b1s)):
                    d = self.d1 + 16 * e + 8 * c + 4 * mb
                    a('%s v[%d:%d], v[%d:%d], v[%d:%d], 0' % (MF, d, d + 3, r, r + 3, B, B + 3))
        for e in range(2):
            a('v_mov_b32 v%d, 0' % (t + e))
            for i in range(5): a('v_dot2_f32_bf16 v%d, v%d, v%d, v%d' % (t + e, self.d2 + 5 * e + i, self.gw + i, t + e))
        for e in range(2):
            for mb in range(2):
                for r in range(4):
                    re = self.d1 + 16 * e + 4 * mb + r; im = re + 8
                    c, s = self.twc + 4 * mb + r, self.tws + 4 * mb + r
                    a('v_mul_f32 v%d, v%d, v%d' % (t + 2, im, s))
                    a('v_mul_f32 v%d, v%d, v%d' % (im, im, c))
                    a('v_fma_f32 v%d, v%d, v%d, v%d' % (im, re, s, im))
                    a('v_fma_f32 v%d, v%d, v%d, -v%d' % (re, re, c, t + 2))
            for c in range(2):
                for k in range(4):
                    src = self.d1 + 16 * e + 8 * c + 2 * k
                    a('v_cvt_pk_bf16_f32 v%d, v%d, v%d' % (self.b2 + 8 * e + 4 * c + k, src, src + 1))
        for e in range(2):
            for blk in range(3):
                d = self.d1 + 16 * e + 4 * blk
                br, bi = self.b2 + 8 * e, self.b2 + 8 * e + 4
                a('%s v[%d:%d], v[%d:%d], v[%d:%d], 0' % (MF, d, d + 3, self.a2r + 4 * blk, self.a2r + 4 * blk + 3, br, br + 3))
                a('%s v[%d:%d], v[%d:%d], v[%d:%d], v[%d:%d]' % (MF, d, d + 3, self.a2i + 4 * blk, self.a2i + 4 * blk + 3, bi, bi + 3, d, d + 3))
        for sh in (8, 4, 2, 1):
            for e in range(2): a('v_add_f32_dpp v%d, v%d, v%d row_ror:%d row_mask:0xf bank_mask:0xf' % (t + e, t + e, t + e, sh))
        for e in range(2):
            for k in range(4): a('v_readlane_b32 s%d, v%d, %d' % (self.s_rl + 4 * e + k, t + e, 16 * k))
        for e in range(2):
            a('v_mov_b32 v%d, s%d' % (t + e, self.s_rl + 4 * e))
            for k in range(1, 4): a('v_add_f32 v%d, s%d, v%d' % (t + e, self.s_rl + 4 * e + k, t + e))
            a('v_cvt_pk_bf16_f32 v%d, v%d, v%d' % (t + e, t + e, t + e))
            a('v_lshlrev_b32 v%d, 16, v%d' % (t + e, t + e))
            a('v_mul_f32 v%d, %s, v%d' % (t + e, lit(-math.log2(math.e)), t + e))
            a('v_exp_f32 v%d, v%d' % (t + e, t + e))
            a('v_add_f32 v%d, 1.0, v%d' % (t + e, t + e))
            a('v_rcp_f32 v%d, v%d' % (t + e, t + e))
            a('v_cvt_pk_bf16_f32 v%d, v%d, v%d' % (t + e, t + e, t + e))
            a('v_lshlrev_b32 v%d, 16, v%d' % (t + e, t + e))
        gate_to(a, t)
        for e in range(2):
            for blk in range(3):
                for rr in range(2):
                    src = self.d1 + 16 * e + 4 * blk + 2 * rr
                    p = self.b2 + (blk * 2 + rr)
                    a('v_cvt_pk_bf16_f32 v%d, v%d, v%d' % (p, src, src + 1))
                    if blk == 1: a('v_xor_b32 v%d, v%d, v%d' % (p, self.msk + rr, p))
                    if blk == 2: a('v_xor_b32 v%d, 0x80000000, v%d' % (p, p))
                    a('ds_write_b32 v%d, v%d offset:%d' % (self.xlw + 2 * blk + rr, p, 4 * e), tag='xl')
        a.wait_lgkm('xl')
        a.wait_vm('a1w')
        a('s_barrier')
        for i in range(5):
            a('ds_read_b128 v[%d:%d], v%d offset:%d' % (self.d2 + 4 * i, self.d2 + 4 * i + 3, self.xlr, i * 4 * 512))
        for i in range(5):
            for rr in range(2):
                for k in range(2):
                    a('ds_read_u16 v%d, v%d offset:%d' % (self.wx[4 * i + 2 * rr + k], self.wa, k * 6144 + rr * 578 + i * 128))
        for i in range(5):
            d = self.d1 + 4 * i
            a('%s v[%d:%d], v[%d:%d], v[%d:%d], 0' % (MF, d, d + 3, self.r8, self.r8 + 3, self.d2 + 4 * i, self.d2 + 4 * i + 3))
        for i in range(5):
            d = self.d1 + 4 * i; p = self.af + 4 * (i % 4) if i < 4 else self.b2
            for rr in range(2):
                w0, w1 = self.wx[4 * i + 2 * rr], self.wx[4 * i + 2 * rr + 1]
                a('v_cvt_pk_bf16_f32 v%d, v%d, v%d' % (p + 2 * rr, d + 2 * rr, d + 2 * rr + 1))
                a('v_lshl_or_b32 v%d, v%d, 16, v%d' % (p + 2 * rr + 1, w1, w0))
        a('s_barrier')
        for i in range(5):
            p = self.af + 4 * (i % 4) if i < 4 else self.b2
            for rr in range(2):
                a('ds_write_b64 v%d, v[%d:%d] offset:%d' % (self.uo + i, p + 2 * rr, p + 2 * rr + 1, rr * 25 * 128), tag='usg')
        t = self.t
        a('''v_lshrrev_b32 v%d, 3, v0
v_and_b32 v%d, 7, v0
v_lshlrev_b32 v%d, 4, v%d
v_lshl_add_u32 v%d, v%d, 15, v%d
s_mul_i32 s46, s%d, 7168
s_add_u32 s46, s46, %d
v_lshlrev_b32 v%d, 4, v0
v_add_u32 v%d, s46, v%d
s_and_b32 s46, s%d, 15
s_lshl_b32 s46, s46, 4
s_lshr_b32 s47, s%d, 4
s_add_u32 s46, s46, s47
s_lshl_b32 s46, s46, 7
s_mul_i32 s47, s%d, %d
s_add_u32 s46, s46, s47
s_add_u32 s46, s46, %d''' % (t, t + 1, t + 1, t + 1, t, t, t + 1, S_WV, self.lds, t + 1, t + 1, t + 1, self.sw, self.sw, S_WV, 7 * 8 * U_BLK, U_BASE))
        a.wait_lgkm('usg')
        a('s_barrier')
        for i in range(7):
            a('ds_read_b128 v[%d:%d], v%d offset:%d' % (self.d1 + 4 * i, self.d1 + 4 * i + 3, t + 1, i * 1024))
        for i in range(7):
            a('s_add_u32 s47, s46, %d' % (i * 8 * U_BLK))
            if i >= 4: a('s_cmp_eq_u32 s%d, 3\ns_cselect_b32 s47, 0x7ff00000, s47' % S_WV)
            a('buffer_store_dwordx4 v[%d:%d], v%d, s[%d:%d], s47 offen %s' % (self.d1 + 4 * i, self.d1 + 4 * i + 3, t, S_WS, S_WS + 3, stflags), tag='ust')

class A2:
    S_WR = 64
    S_WI = 68
    def __init__(self, ubase, base, lds, sb, wbase=None, tbase=None):
        self.lds, self.sb = lds, sb
        self.PU = 1040
        self.LU, self.LW, self.LT = lds, lds + 12 * self.PU, lds + 24 * self.PU
        R = Regs(ubase)
        self.u = R.get(32, 4)
        self.wraw = R.get(16, 4) if wbase is None else wbase
        self.uend = R.n
        self.shr = self.wraw + 7
        R = Regs(base)
        self.fre, self.fim = R.get(4, 4), R.get(4, 4)
        self.tc, self.ts, self.tc2, self.ts2 = R.get(4, 4), R.get(4, 4), R.get(4), R.get(4)
        self.rd, self.tw, self.ow, self.wt, self.sh = R.get(), R.get(), R.get(), R.get(), R.get()
        self.ord = R.get(3)
        self.af = R.get(12, 4)
        self.wf = R.get(12, 4)
        self.dr = R.get(12, 4); self.di = R.get(12, 4)
        self.bf = R.get(12, 4)
        self.t = R.get(24, 4) if tbase is None else tbase
        self.end = R.n
    def gather_addr(self, a, t):
        a('''s_lshl_b32 s46, s%d, 2
v_lshrrev_b32 v%d, 4, v0
v_add_u32 v%d, s46, v%d
v_and_b32 v%d, 15, v0
v_lshl_add_u32 v%d, v%d, 4, v%d
s_and_b32 s46, s%d, 7
s_lshr_b32 s47, s%d, 3
v_mul_u32_u24 v%d, %d, v%d
s_mul_i32 s48, s46, %d
s_mul_i32 s49, s47, 48
s_add_u32 s48, s48, s49
s_add_u32 s48, s48, %d
v_lshl_add_u32 v%d, v%d, 3, s46
v_mul_u32_u24 v%d, 289, v%d
s_mul_i32 s49, s47, 12
v_add_u32 v%d, s49, v%d
v_lshlrev_b32 v%d, 1, v%d''' % (S_WV, t + 2, t + 2, t + 2, t + 3, t + 2, t + 3, t + 2,
                                self.sb, self.sb, t, U_W, t + 2, U_R, U_BASE,
                                t + 1, t + 2, t + 1, t + 1, t + 1, t + 1, t + 1, t + 1))
    def w_addr_ops(self, dst, t):
        return ('''s_lshl_b32 s44, s%d, 2
v_lshrrev_b32 v%d, 4, v0
v_add_u32 v%d, s44, v%d
v_and_b32 v%d, 15, v0
v_lshl_add_u32 v%d, v%d, 4, v%d
s_and_b32 s44, s%d, 7
s_lshr_b32 s45, s%d, 3
s_mul_i32 s45, s45, 12
v_lshl_add_u32 v%d, v%d, 3, s44
v_mul_u32_u24 v%d, 289, v%d
v_add_u32 v%d, s45, v%d
v_lshlrev_b32 v%d, 1, v%d''' % (S_WV, t, t, t, t + 1, t, t + 1, t, self.sb, self.sb, t, t, t, t, t, t, dst, t)).split('\n')
    def w_dma_ops(self, addr, raw):
        L = []
        for k, srd in enumerate((self.S_WR, self.S_WI)):
            for h in range(2):
                L.append([('S', 's_lshl_b32 s44, s%d, 10' % S_WV),
                          ('S', 's_add_u32 m0, s44, %d' % (raw + (2 * k + h) * 4096 - 16 * h)),
                          ('M', ('buffer_load_dwordx4 v%d, s[%d:%d], 0 offen offset:%d lds' % (addr, srd, srd + 3, 16 * h), 'a2w'))])
        return L
    def w_from_lds(self, a, raw, byteoff):
        t = self.t
        a('s_lshl_b32 s46, s%d, 10\ns_add_u32 s46, s46, %d\nv_lshlrev_b32 v%d, 4, v0\nv_add_u32 v%d, s46, v%d' % (S_WV, raw, t, t, t))
        for k in range(2):
            for h in range(2):
                r = self.wraw + 8 * k + 4 * h
                a('ds_read_b128 v[%d:%d], v%d offset:%d' % (r, r + 3, t, (2 * k + h) * 4096))
        a('v_and_b32 v%d, 2, v%d\nv_lshlrev_b32 v%d, 3, v%d' % (self.shr, byteoff, self.shr, self.shr))
    def u_base_ops(self, s_off):
        return ['s_and_b32 s44, s%d, 7' % self.sb, 's_mul_i32 s44, s44, 25', 's_lshr_b32 s45, s%d, 3' % self.sb, 's_min_u32 s45, s45, 24', 's_add_u32 s44, s44, s45',
                's_mul_i32 s44, s44, %d' % U_BLK, 's_lshl_b32 s45, s%d, 13' % S_WV, 's_add_u32 s44, s44, s45', 's_add_u32 s%d, s44, %d' % (s_off, U_BASE)]
    def u_load_ops(self, s_off, ldflags='sc1'):
        L = []
        for k in range(8):
            L.append(['s_add_u32 s45, s%d, %d' % (s_off, 1024 * k),
                      ('buffer_load_dwordx4 v[%d:%d], v1, s[%d:%d], s45 offen %s' % (self.u + 4 * k, self.u + 4 * k + 3, S_WS, S_WS + 3, ldflags), 'a2u')])
        return L
    def loads_w(self, a, t):
        a('v_and_b32 v%d, -4, v%d' % (t + 2, t + 1))
        for k, srd in enumerate((self.S_WR, self.S_WI)):
            r = self.wraw + 8 * k
            a('buffer_load_dwordx4 v[%d:%d], v%d, s[%d:%d], 0 offen' % (r, r + 3, t + 2, srd, srd + 3), tag='a2w')
            a('buffer_load_dwordx3 v[%d:%d], v%d, s[%d:%d], 0 offen offset:16' % (r + 4, r + 6, t + 2, srd, srd + 3), tag='a2w')
        a('v_and_b32 v%d, 2, v%d\nv_lshlrev_b32 v%d, 3, v%d' % (self.wraw + 7, t + 1, self.wraw + 7, self.wraw + 7))
    def loads_u(self, a, t, ldflags='sc1'):
        for k in range(3):
            a('buffer_load_dwordx4 v[%d:%d], v%d, s[%d:%d], s48 offen offset:%d %s' % (self.u + 4 * k, self.u + 4 * k + 3, t, S_WS, S_WS + 3, 16 * k, ldflags), tag='a2u')
    def float_consts(self, a, t, fre, fim, tc, ts):
        vn, vq, fn, fq = t, t + 1, t + 2, t + 3
        x = t + 4
        lane_floats(a, vn, vq, fn, fq)
        a('v_mul_f32 v%d, %s, v%d' % (x + 16, lit(1 / 16.), fn))
        a('v_mul_f32 v%d, 4.0, v%d' % (x + 17, fq))
        a('v_mul_f32 v%d, v%d, v%d' % (x, x + 16, x + 17))
        for j in range(1, 4): a('v_add_f32 v%d, v%d, v%d' % (x + j, x + j - 1, x + 16))
        for j in range(4): a('v_sin_f32 v%d, v%d' % (x + 4 + j, x + j))
        for j in range(4): a('v_cos_f32 v%d, v%d' % (x + j, x + j))
        for j in range(4):
            a('v_cvt_pk_bf16_f32 v%d, v%d, v%d' % (fre + j, x + j, x + 4 + j))
            a('v_cvt_pk_bf16_f32 v%d, -v%d, v%d' % (fim + j, x + 4 + j, x + j))
        a('v_mul_f32 v%d, %s, v%d' % (x + 16, lit(-1 / 256.), fn))
        a('v_mul_f32 v%d, v%d, v%d' % (x + 8, x + 16, x + 17))
        for j in range(1, 4): a('v_add_f32 v%d, v%d, v%d' % (x + 8 + j, x + 8 + j - 1, x + 16))
        for j in range(4): a('v_sin_f32 v%d, v%d' % (ts + j, x + 8 + j))
        for j in range(4): a('v_cos_f32 v%d, v%d' % (tc + j, x + 8 + j))
    def scaled_twiddles(self, a):
        sc = 1.0 / (2048.0 * 576.0)
        for j in range(4):
            a('v_mul_f32 v%d, %s, v%d' % (self.ts2 + j, lit(sc), self.ts + j))
            a('v_mul_f32 v%d, %s, v%d' % (self.tc2 + j, lit(sc), self.tc + j))
    def consts(self, a):
        self.float_consts(a, self.t, self.fre, self.fim, self.tc, self.ts)
        self.scaled_twiddles(a)
        self.addresses(a)
    def addresses(self, a):
        t = self.t
        vn, vq = t, t + 1
        x = t + 4
        a('v_and_b32 v%d, 15, v0\nv_lshrrev_b32 v%d, 4, v0' % (vn, vq))
        PU = self.PU
        a('''v_lshlrev_b32 v%d, 6, v%d
v_lshl_add_u32 v%d, v%d, 4, v%d
s_mul_i32 s46, s%d, %d
s_add_u32 s47, s46, %d
v_add_u32 v%d, s47, v%d
s_lshl_b32 s45, s%d, 10
s_add_u32 s45, s45, %d
v_add_u32 v%d, s45, v%d
v_lshlrev_b32 v%d, 8, v%d
v_lshl_add_u32 v%d, v%d, 2, v%d
v_add_u32 v%d, s45, v%d
v_add_u32 v%d, s47, v%d''' % (x, vn, x, vq, x, S_WV, PU, self.LU, self.rd, x, S_WV, self.LT, self.sh, x,
                              x + 1, vq, x + 1, vn, x + 1, self.tw, x + 1, self.ow, x + 1))
        a('''v_and_b32 v%d, 7, v0
v_mul_u32_u24 v%d, %d, v%d
v_lshrrev_b32 v%d, 3, v0
v_lshl_add_u32 v%d, v%d, 2, v%d
s_lshl_b32 s46, s%d, 8
s_add_u32 s46, s46, %d
v_add_u32 v%d, s46, v%d''' % (x, x, 2 * PU, x, x + 1, x, x + 1, x, S_WV, self.LU, self.wt, x))
        for i in range(3):
            a('''s_mul_i32 s46, s%d, 192
s_add_u32 s46, s46, %d
v_add_u32 v%d, s46, v0
v_mul_u32_u24 v%d, 21846, v%d
v_lshrrev_b32 v%d, 16, v%d
v_mul_u32_u24 v%d, 3, v%d
v_sub_u32 v%d, v%d, v%d
v_mul_u32_u24 v%d, %d, v%d
v_lshl_add_u32 v%d, v%d, 2, v%d
v_add_u32 v%d, %d, v%d''' % (S_WV, 64 * i, x, x + 1, x, x + 1, x + 1, x + 2, x + 1, x + 2, x, x + 2, x + 2, 4 * PU, x + 2,
                             x + 2, x + 1, x + 2, self.ord + i, self.LU, x + 2))
    def stage_in(self, a):
        PU = self.PU
        a('s_mov_b32 s46, 0x3f3f3f3f\ns_mov_b32 s47, 0x3f3f3f3f')
        a.wait_vm('a2u')
        a('s_mov_b64 exec, s[46:47]')
        for k in range(8):
            r = self.u + 4 * k
            for e in range(4):
                a('ds_write_b32 v%d, v%d offset:%d' % (self.wt, r + e, 32 * k + (e >> 1) * PU + (e & 1) * 12 * PU), tag='a2s')
        a('s_mov_b64 exec, -1')
        a.wait_lgkm('a2s')
        a('s_barrier')
    def cmul(self, a, re, im, c, s, tmp):
        a('v_mul_f32 v%d, v%d, v%d' % (tmp, im, s))
        a('v_mul_f32 v%d, v%d, v%d' % (im, im, c))
        a('v_fma_f32 v%d, v%d, v%d, v%d' % (im, re, s, im))
        a('v_fma_f32 v%d, v%d, v%d, -v%d' % (re, re, c, tmp))
    def compute(self, a, before_bar=None, after_bar=None):
        t = self.t
        U3 = range(3)
        off = lambda i: i * 4 * self.PU
        for i in U3:
            a('ds_read_b128 v[%d:%d], v%d offset:%d' % (self.af + 4 * i, self.af + 4 * i + 3, self.rd, off(i)))
        for i in U3:
            a('ds_read_b128 v[%d:%d], v%d offset:%d' % (self.wf + 4 * i, self.wf + 4 * i + 3, self.rd, 12 * self.PU + off(i)))
        def mm(dst, A, B): a('%s v[%d:%d], v[%d:%d], v[%d:%d], 0' % (MF, dst, dst + 3, A, A + 3, B, B + 3))
        for i in U3:
            mm(self.dr + 4 * i, self.af + 4 * i, self.fre); mm(self.di + 4 * i, self.af + 4 * i, self.fim)
        for i in U3:
            for r in range(4):
                self.cmul(a, self.dr + 4 * i + r, self.di + 4 * i + r, self.tc + r, self.ts + r, t + r)
            for r in range(4): a('v_cvt_pk_bf16_f32 v%d, v%d, v%d' % (self.bf + 4 * i + r, self.dr + 4 * i + r, self.di + 4 * i + r))
        for i in U3:
            mm(self.dr + 4 * i, self.fre, self.bf + 4 * i); mm(self.di + 4 * i, self.fim, self.bf + 4 * i)
        for i in U3:
            for r in range(4):
                w = self.wf + 4 * i + r; xr, xi = self.dr + 4 * i + r, self.di + 4 * i + r
                wr, wi = t + 2 * r, t + 2 * r + 1
                a('v_lshlrev_b32 v%d, 16, v%d\nv_and_b32 v%d, 0xffff0000, v%d' % (wr, w, wi, w))
                self.cmul(a, xr, xi, wr, wi, t + 8 + r)
            for r in range(4): a('v_cvt_pk_bf16_f32 v%d, v%d, -v%d' % (self.bf + 4 * i + r, self.dr + 4 * i + r, self.di + 4 * i + r))
        for i in U3:
            mm(self.dr + 4 * i, self.fre, self.bf + 4 * i); mm(self.di + 4 * i, self.fim, self.bf + 4 * i)
        for i in U3:
            for r in range(4):
                self.cmul(a, self.dr + 4 * i + r, self.di + 4 * i + r, self.tc2 + r, self.ts2 + r, t + r)
            for r in range(4):
                a('v_cvt_pk_bf16_f32 v%d, v%d, v%d' % (self.bf + 4 * i + r, self.dr + 4 * i + r, self.di + 4 * i + r))
                a('ds_write_b32 v%d, v%d offset:%d' % (self.tw, self.bf + 4 * i + r, r * 64), tag=('a2t', i))
            a.wait_lgkm(('a2t', i))
            a('ds_read_b128 v[%d:%d], v%d offset:%d' % (self.af + 4 * i, self.af + 4 * i + 3, self.rdT(a), 0), tag=('a2r', i))
            a.wait_lgkm(('a2r', i))
        for i in U3:
            mm(self.dr + 4 * i, self.af + 4 * i, self.fre); mm(self.di + 4 * i, self.af + 4 * i, self.fim)
        for i in U3:
            for r in range(4):
                a('v_cvt_pk_bf16_f32 v%d, v%d, -v%d' % (self.bf + 4 * i + r, self.dr + 4 * i + r, self.di + 4 * i + r))
                a('ds_write_b32 v%d, v%d offset:%d' % (self.ow, self.bf + 4 * i + r, off(i) + r * 64), tag='a2o')
        a.wait_lgkm('a2o')
        if before_bar: before_bar(a)
        a('s_barrier')
        if after_bar: after_bar(a)
    def rdT(self, a):
        return self.sh
    def addr_T(self, a):
        pass
    def stage_out(self, a, stflags='sc1', vlane16=None):
        t = self.t
        a('''s_and_b32 s46, s%d, 7
s_mul_i32 s46, s46, 25
s_lshr_b32 s47, s%d, 3
s_add_u32 s46, s46, s47
s_mul_i32 s46, s46, %d
s_mul_i32 s47, s%d, 3072
s_add_u32 s46, s46, s47
s_add_u32 s46, s46, %d
s_cmp_lt_u32 s%d, 200
s_cselect_b32 s46, s46, 0x7ff00000''' % (self.sb, self.sb, V_BLK, S_WV, V_BASE, self.sb))
        if vlane16 is None:
            vlane16 = t + 12
            a('v_lshlrev_b32 v%d, 4, v0' % vlane16)
        for i in range(3):
            for e in range(4): a('ds_read_b32 v%d, v%d offset:%d' % (t + 4 * i + e, self.ord + i, e * self.PU))
        for i in range(3):
            a('buffer_store_dwordx4 v[%d:%d], v%d, s[%d:%d], s46 offen offset:%d %s' % (t + 4 * i, t + 4 * i + 3, vlane16, S_WS, S_WS + 3, i * 1024, stflags), tag='vst')

class A3:
    S_OUT = 64
    PITCH = 1536
    def __init__(self, base, lds, sw, gate_lds, vreg=None, abase=None, tbase=None):
        self.lds, self.sw, self.gl = lds, sw, gate_lds
        self.VL = lds
        self.YR = lds + 10240
        self.YI = self.YR + 8 * self.PITCH
        self.AO = self.YI + 8 * self.PITCH
        R = Regs(base)
        self.v = R.get(12, 4) if vreg is None else vreg
        self.p = R.get(48, 4)
        self.r8 = R.get(4, 4)
        self.cs, self.sn, self.ns = R.get(8, 4), R.get(8, 4), R.get(8, 4)
        self.twc, self.tws = R.get(8, 4), R.get(8, 4)
        self.ab = R.get(8, 4)
        self.d = R.get(32, 4)
        self.f = R.get(16, 4)
        if abase is not None: self.end0 = R.n; R = Regs(abase)
        self.vw, self.vr, self.yd, self.ym, self.imk, self.ya = R.get(), R.get(), R.get(5), R.get(5), R.get(5), R.get()
        self.aow = R.get(4)
        self.item = R.get(3); self.oaddr = R.get(3); self.aor = R.get(3); self.gad = R.get(3)
        self.t = R.get(24, 4) if tbase is None else tbase
        self.end = R.n
        self.tt = self.t
        self.xx = self.d
    def v_addr_ops(self, t):
        return ('''s_lshl_b32 s44, s%d, 6
v_add_u32 v%d, s44, v0
v_and_b32 v%d, 7, v%d
v_lshrrev_b32 v%d, 3, v%d
v_mul_u32_u24 v%d, 25, v%d
v_add_u32 v%d, v%d, v%d
v_mul_u32_u24 v%d, %d, v%d
s_and_b32 s45, s%d, 15
s_lshl_b32 s45, s45, 4
s_lshr_b32 s44, s%d, 4
s_add_u32 s45, s45, s44
s_mul_i32 s45, s45, 48
s_add_u32 s45, s45, %d
v_cmp_gt_u32 vcc, 200, v%d
v_mov_b32 v%d, 0x7ffffff0
v_cndmask_b32 v%d, v%d, v%d, vcc''' % (S_WV, t, t + 1, t, t + 2, t, t + 3, t + 1, t + 3, t + 3, t + 2, t + 3, V_BLK, t + 3,
                                      self.sw, self.sw, V_BASE, t, t + 4, t + 3, t + 4, t + 3)).split('\n')
    def v_load_ops(self, t, ldflags='sc1'):
        return [('buffer_load_dwordx4 v[%d:%d], v%d, s[%d:%d], s45 offen offset:%d %s' % (self.v + 4 * k, self.v + 4 * k + 3, t + 3, S_WS, S_WS + 3, 16 * k, ldflags), 'a3v') for k in range(3)]
    def v_lds_addr(self, a):
        t = self.tt
        a('''s_lshl_b32 s46, s%d, 6
v_add_u32 v%d, s46, v0
v_and_b32 v%d, 7, v%d
v_lshrrev_b32 v%d, 3, v%d
v_mul_u32_u24 v%d, 384, v%d
v_lshl_add_u32 v%d, v%d, 2, v%d
v_add_u32 v%d, %d, v%d
v_mov_b32 v%d, %d
v_cmp_gt_u32 vcc, 200, v%d
v_cndmask_b32 v%d, v%d, v%d, vcc''' % (S_WV, t, t + 1, t, t + 2, t, t + 4, t + 2, t + 4, t + 1, t + 4, t + 4, self.VL, t + 4, t + 5, self.VL + 304 * 32, t, self.vw, t + 5, t + 4))
    def v_loads(self, a, ldflags='sc1'):
        t = self.t
        for o in self.v_addr_ops(t): a(o)
        for o, tg in self.v_load_ops(t, ldflags): a(o, tag=tg)
        self.v_lds_addr(a)
    def item_addr(self, a):
        t = self.tt
        for i in range(3):
            a('''s_lshl_b32 s46, s%d, 6
s_add_u32 s46, s46, %d
v_add_u32 v%d, s46, v0''' % (S_WV, 256 * i, t))
            a('v_mul_u32_u24 v%d, 911, v%d\nv_lshrrev_b32 v%d, 16, v%d' % (t + 1, t, t + 1, t + 1))
            a('v_mul_u32_u24 v%d, 72, v%d\nv_sub_u32 v%d, v%d, v%d' % (t + 2, t + 1, t + 2, t, t + 2))
            a('v_mul_u32_u24 v%d, 3641, v%d\nv_lshrrev_b32 v%d, 16, v%d' % (t + 3, t + 2, t + 3, t + 3))
            a('v_mul_u32_u24 v%d, 18, v%d\nv_sub_u32 v%d, v%d, v%d' % (t + 4, t + 3, t + 4, t + 2, t + 4))
            a('v_lshlrev_b32 v%d, 8, v%d\nv_add_u32 v%d, s%d, v%d' % (t + 5, t + 1, t + 5, self.sw, t + 5))
            a('s_lshr_b32 s47, s%d, 4\ns_lshl_b32 s47, s47, 7\ns_and_b32 s48, s%d, 15\ns_add_u32 s47, s47, s48' % (self.sw, self.sw))
            a('v_lshlrev_b32 v%d, 4, v%d\nv_add_u32 v%d, s47, v%d' % (t + 6, t + 1, t + 6, t + 6))
            a('v_mul_u32_u24 v%d, 288, v%d\nv_lshl_add_u32 v%d, v%d, 4, v%d' % (t + 6, t + 6, t + 6, t + 4, t + 6))
            a('s_mov_b32 s47, %d\nv_mul_lo_u32 v%d, s47, v%d\nv_add_u32 v%d, v%d, v%d' % (P_TILE, t + 7, t + 3, t + 6, t + 6, t + 7))
            a('v_mul_u32_u24 v%d, 1152, v%d\nv_lshl_add_u32 v%d, v%d, 4, v%d' % (t + 7, t + 5, t + 7, t + 2, t + 7))
            a('v_mul_u32_u24 v%d, 2304, v%d\nv_lshl_add_u32 v%d, v%d, 5, v%d\nv_add_u32 v%d, %d, v%d' % (t + 8, t + 1, t + 8, t + 2, t + 8, self.aor + i, self.AO, t + 8))
            a('v_lshlrev_b32 v%d, 2, v%d\nv_add_u32 v%d, %d, v%d' % (t + 8, t + 1, self.gad + i, self.gl, t + 8))
            if i == 2:
                a('''v_cmp_gt_u32 vcc, 576, v%d
v_mov_b32 v%d, 0x7ffffff0
v_cndmask_b32 v%d, v%d, v%d, vcc
v_cndmask_b32 v%d, v%d, v%d, vcc
v_mov_b32 v%d, %d
v_cndmask_b32 v%d, v%d, v%d, vcc
v_mov_b32 v%d, %d
v_cndmask_b32 v%d, v%d, v%d, vcc''' % (t, t + 8, t + 6, t + 8, t + 6, t + 7, t + 8, t + 7,
                                       t + 8, self.AO, self.aor + i, t + 8, self.aor + i, t + 8, self.gl, self.gad + i, t + 8, self.gad + i))
            a('v_mov_b32 v%d, v%d\nv_mov_b32 v%d, v%d' % (self.item + i, t + 6, self.oaddr + i, t + 7))
    def p_loads(self, a, ldflags='sc1'):
        for i in range(3):
            for ks in range(4):
                r = self.p + 16 * i + 4 * ks
                a('s_mov_b32 s46, %d' % (P_BASE + ks * 4 * P_TILE))
                a('buffer_load_dwordx4 v[%d:%d], v%d, s[%d:%d], s46 offen %s' % (r, r + 3, self.item + i, S_WS, S_WS + 3, ldflags), tag='a3p')
    def consts(self, a):
        self.float_consts(a, self.t, self.d, self.r8, self.cs, self.sn, self.twc, self.tws, self.ab)
        self.negsin(a)
        self.addresses(a)
    def negsin(self, a):
        for k in range(8): a('v_xor_b32 v%d, 0x80008000, v%d' % (self.ns + k, self.sn + k))
    def float_consts(self, a, t, x, r8, cs, sn, twc, tws, ab, done=None, skip0=False):
        vn, vq, fn, fq = t, t + 1, t + 2, t + 3
        done = done or (lambda a_, n: None)
        lane_floats(a, vn, vq, fn, fq)
        helper = A1.__new__(A1); helper.sw = self.sw
        helper.r8_consts(a, r8, -1, x, vn, vq, fq)
        done(a, 'r8')
        wide = done is None or getattr(self, 'wide', True)
        a('v_mul_f32 v%d, %s, v%d' % (x + 17, lit(8.0), fq))
        for nb in range(1 if skip0 else 0, 2):
            a('v_add_f32 v%d, %s, v%d' % (x + 16, lit(16.0 * nb), fn))
            a('v_mul_f32 v%d, %s, v%d' % (x + 16, lit(1 / 24.), x + 16))
            a('v_mul_f32 v%d, v%d, v%d' % (x, x + 16, x + 17))
            for i in range(1, 8): a('v_add_f32 v%d, v%d, v%d' % (x + i, x + i - 1, x + 16))
            for i in range(8): a('v_sin_f32 v%d, v%d' % (x + 8 + i, x + i))
            for i in range(8): a('v_cos_f32 v%d, v%d' % (x + i, x + i))
            a('v_cmp_eq_u32 vcc, 3, v%d' % vq)
            for k in range(4):
                a('v_cvt_pk_bf16_f32 v%d, v%d, v%d' % (cs + (4 * nb if wide else 0) + k, x + 2 * k, x + 2 * k + 1))
                a('v_cvt_pk_bf16_f32 v%d, v%d, v%d' % (sn + (4 * nb if wide else 0) + k, x + 8 + 2 * k, x + 9 + 2 * k))
            for k in range(4):
                a('v_cndmask_b32_e64 v%d, v%d, 0, vcc' % (cs + (4 * nb if wide else 0) + k, cs + (4 * nb if wide else 0) + k))
                a('v_cndmask_b32_e64 v%d, v%d, 0, vcc' % (sn + (4 * nb if wide else 0) + k, sn + (4 * nb if wide else 0) + k))
            done(a, 'cs%d' % nb)
        a('v_mul_f32 v%d, 4.0, v%d' % (x + 17, fq))
        for r in range(4):
            a('''v_lshl_add_u32 v%d, v%d, 2, %d
v_mov_b32 v%d, 2.0
v_cmp_eq_u32 vcc, 0, v%d
v_cndmask_b32_e64 v%d, v%d, 1.0, vcc
v_cmp_eq_u32 vcc, 12, v%d
v_cndmask_b32_e64 v%d, v%d, 1.0, vcc
v_cmp_lt_u32 vcc, 12, v%d
v_cndmask_b32_e64 v%d, v%d, 0, vcc''' % (x + 18, vq, r, x + 20 + r, x + 18, x + 20 + r, x + 20 + r, x + 18, x + 20 + r, x + 20 + r, x + 18, x + 20 + r, x + 20 + r))
        for nb in range(2):
            a('v_add_f32 v%d, %s, v%d' % (x + 16, lit(16.0 * nb), fn))
            a('v_mul_f32 v%d, %s, v%d' % (x + 16, lit(1 / 576.), x + 16))
            a('v_mul_f32 v%d, v%d, v%d' % (x, x + 16, x + 17))
            for r in range(1, 4): a('v_add_f32 v%d, v%d, v%d' % (x + r, x + r - 1, x + 16))
            for r in range(4): a('v_sin_f32 v%d, v%d' % (x + 4 + r, x + r))
            for r in range(4): a('v_cos_f32 v%d, v%d' % (x + r, x + r))
            for r in range(4):
                a('v_mul_f32 v%d, v%d, v%d' % (twc + (4 * nb if wide else 0) + r, x + r, x + 20 + r))
                a('v_mul_f32 v%d, v%d, v%d' % (tws + (4 * nb if wide else 0) + r, x + 4 + r, x + 20 + r))
            done(a, 'tw%d' % nb)
        for mb in range(2):
            a('v_add_f32 v%d, %s, v%d' % (x + 16, lit(16.0 * mb), fn))
            a('v_mul_f32 v%d, %s, v%d' % (x + 16, lit(1 / 24.), x + 16))
            a('v_mul_f32 v%d, v%d, v%d' % (x, x + 16, x + 17))
            for i in range(1, 4): a('v_add_f32 v%d, v%d, v%d' % (x + i, x + i - 1, x + 16))
            for i in range(4): a('v_add_f32 v%d, %s, v%d' % (x + 4 + i, lit(0.25), x + i))
            cos_pairs(a, ab + (4 * mb if wide else 0), [x + i for i in range(8)])
            done(a, 'ab%d' % mb)
    def addresses(self, a):
        t = self.tt; x = self.xx
        vn, vq = t, t + 1
        a('v_and_b32 v%d, 15, v0\nv_lshrrev_b32 v%d, 4, v0' % (vn, vq))
        a('''s_lshl_b32 s46, s%d, 9
s_add_u32 s46, s46, %d
v_and_b32 v%d, 1, v%d
v_lshlrev_b32 v%d, 4, v%d
v_lshl_add_u32 v%d, v%d, 5, v%d
v_add_u32 v%d, s46, v%d''' % (S_WV, self.VL, x, vq, x, x, x, vn, x, self.vr, x))
        a('s_mov_b32 s50, 0xffff')
        for i in range(5):
            k, dm, di, mi, tmp, row = x, x + 1, x + 2, x + 3, x + 4, x + 5
            a('s_lshl_b32 s46, s%d, 4\ns_add_u32 s46, s46, %d\nv_add_u32 v%d, s46, v%d' % (S_WV, 64 * i, k, vn))
            a('v_mov_b32 v%d, 700' % dm)
            a('v_cmp_ge_u32 vcc, 288, v%d\nv_cndmask_b32 v%d, v%d, v%d, vcc' % (k, di, dm, k))
            a('v_sub_u32 v%d, 576, v%d\nv_add_u32 v%d, -1, v%d' % (mi, k, tmp, k))
            a('v_cmp_gt_u32 vcc, 287, v%d\nv_cndmask_b32 v%d, v%d, v%d, vcc' % (tmp, mi, dm, mi))
            a('v_mul_u32_u24 v%d, %d, v%d' % (row, 2 * self.PITCH, vq))
            a('v_lshl_add_u32 v%d, v%d, 1, v%d\nv_add_u32 v%d, %d, v%d' % (di, di, row, self.yd + i, self.YR, di))
            a('v_lshl_add_u32 v%d, v%d, 1, v%d\nv_add_u32 v%d, %d, v%d' % (mi, mi, row, self.ym + i, self.YR, mi))
            a('v_mov_b32 v%d, -1' % (self.imk + i))
            a('v_mov_b32 v%d, s50' % tmp)
            a('v_cmp_eq_u32 vcc, 0, v%d\nv_cndmask_b32 v%d, v%d, v%d, vcc' % (k, self.imk + i, self.imk + i, tmp))
            a('v_cmp_eq_u32 vcc, 288, v%d\nv_cndmask_b32 v%d, v%d, v%d, vcc' % (k, self.imk + i, self.imk + i, tmp))
        a('''v_min_u32 v%d, 2, v%d
v_lshrrev_b32 v%d, 2, v%d
v_lshl_add_u32 v%d, v%d, 3, v%d
v_mul_u32_u24 v%d, 48, v%d
v_and_b32 v%d, 3, v0
v_lshl_add_u32 v%d, v%d, 3, v%d
s_mul_i32 s46, s%d, %d
s_add_u32 s46, s46, %d
v_add_u32 v%d, s46, v%d''' % (x, vq, x + 1, vn, x, x, x + 1, x, x, x + 1, x, x + 1, x, S_WV, 2 * self.PITCH, self.YR, self.ya, x))
        for mb in range(2):
            for nb in range(2):
                d = self.aow + 2 * mb + nb
                a('''v_lshl_add_u32 v%d, v%d, 2, %d
v_mul_u32_u24 v%d, 24, v%d
v_add_u32 v%d, %d, v%d
v_add_u32 v%d, v%d, v%d
v_lshlrev_b32 v%d, 2, v%d
s_mul_i32 s46, s%d, 4608
s_add_u32 s46, s46, %d
v_add_u32 v%d, s46, v%d''' % (x, vq, 16 * mb, x + 1, x, x + 1, 16 * nb, x + 1, x + 1, x + 1, vn, x + 1, x + 1, S_WV, self.AO, d, x + 1))
                if mb or nb:
                    a('v_mov_b32 v%d, %d' % (x + 2, self.AO + 8 * 2304))
                    if mb: a('v_cmp_lt_u32 vcc, 1, v%d\nv_cndmask_b32 v%d, v%d, v%d, vcc' % (vq, d, d, x + 2))
                    if nb: a('v_cmp_lt_u32 vcc, 7, v%d\nv_cndmask_b32 v%d, v%d, v%d, vcc' % (vn, d, d, x + 2))
    def spectral(self, a, mid_before=None, mid_after=None):
        t = self.t
        for u in range(12): a('ds_write_b32 v%d, v%d offset:%d' % (self.vw, self.v + u, u * 32), tag='vl')
        a.wait_lgkm('vl')
        a('s_barrier')
        for i in range(5):
            a('ds_read_b128 v[%d:%d], v%d offset:%d' % (self.f + 4 * (i % 4), self.f + 4 * (i % 4) + 3, self.vr, i * 2048))
            d = self.d + 4 * i
            a('%s v[%d:%d], v[%d:%d], v[%d:%d], 0' % (MF, d, d + 3, self.r8, self.r8 + 3, self.f + 4 * (i % 4), self.f + 4 * (i % 4) + 3))
        yi = self.YI - self.YR
        for i in range(5):
            d = self.d + 4 * i
            for e in range(2):
                p = t + 2 * e
                a('v_cvt_pk_bf16_f32 v%d, v%d, v%d' % (p, d + 2 * e, d + 2 * e + 1))
                a('v_and_b32 v%d, v%d, v%d' % (p, self.imk + i, p))
                a('v_xor_b32 v%d, 0x80000000, v%d' % (p + 1, p))
                o = e * self.PITCH
                a('ds_write_b16 v%d, v%d offset:%d' % (self.yd + i, p, o), tag='yl')
                a('ds_write_b16_d16_hi v%d, v%d offset:%d' % (self.yd + i, p, o + yi), tag='yl')
                a('ds_write_b16 v%d, v%d offset:%d' % (self.ym + i, p, o), tag='yl')
                a('ds_write_b16_d16_hi v%d, v%d offset:%d' % (self.ym + i, p + 1, o + yi), tag='yl')
        a.wait_lgkm('yl')
        if mid_before: mid_before(a)
        a('s_barrier')
        if mid_after: mid_after(a)
        for e in range(2):
            o = e * self.PITCH
            fr, fi = self.f + 8 * e, self.f + 8 * e + 4
            a('ds_read_b64_tr_b16 v[%d:%d], v%d offset:%d' % (fr, fr + 1, self.ya, o))
            a('ds_read_b64_tr_b16 v[%d:%d], v%d offset:%d' % (fr + 2, fr + 3, self.ya, o + 192))
            a('ds_read_b64_tr_b16 v[%d:%d], v%d offset:%d' % (fi, fi + 1, self.ya, o + yi))
            a('ds_read_b64_tr_b16 v[%d:%d], v%d offset:%d' % (fi + 2, fi + 3, self.ya, o + yi + 192))
        def mm(dst, A, B, C=None):
            a('%s v[%d:%d], v[%d:%d], v[%d:%d], %s' % (MF, dst, dst + 3, A, A + 3, B, B + 3, '0' if C is None else 'v[%d:%d]' % (C, C + 3)))
        for e in range(2):
            fr, fi = self.f + 8 * e, self.f + 8 * e + 4
            for nb in range(2):
                sr, si = self.d + 16 * e + 8 * nb, self.d + 16 * e + 8 * nb + 4
                mm(sr, fr, self.cs + 4 * nb); mm(si, fr, self.sn + 4 * nb)
                mm(sr, fi, self.ns + 4 * nb, sr); mm(si, fi, self.cs + 4 * nb, si)
        for e in range(2):
            for nb in range(2):
                sr, si = self.d + 16 * e + 8 * nb, self.d + 16 * e + 8 * nb + 4
                for r in range(4):
                    c, s = self.twc + 4 * nb + r, self.tws + 4 * nb + r
                    a('v_mul_f32 v%d, v%d, v%d' % (t + r, si + r, s))
                    a('v_mul_f32 v%d, v%d, v%d' % (si + r, si + r, c))
                    a('v_fma_f32 v%d, v%d, v%d, v%d' % (si + r, sr + r, s, si + r))
                    a('v_fma_f32 v%d, v%d, v%d, -v%d' % (sr + r, sr + r, c, t + r))
                b = self.f + 8 * e + 4 * nb
                a('v_cvt_pk_bf16_f32 v%d, v%d, v%d\nv_cvt_pk_bf16_f32 v%d, v%d, v%d' % (b, sr, sr + 1, b + 1, sr + 2, sr + 3))
                a('v_cvt_pk_bf16_f32 v%d, v%d, v%d\nv_cvt_pk_bf16_f32 v%d, v%d, v%d' % (b + 2, si, si + 1, b + 3, si + 2, si + 3))
        for e in range(2):
            for nb in range(2):
                for mb in range(2):
                    mm(self.d + 16 * e + 8 * nb + 4 * mb, self.ab + 4 * mb, self.f + 8 * e + 4 * nb)
        for e in range(2):
            for nb in range(2):
                for mb in range(2):
                    d = self.d + 16 * e + 8 * nb + 4 * mb
                    for r in range(4):
                        a('ds_write_b32 v%d, v%d offset:%d' % (self.aow + 2 * mb + nb, d + r, e * 2304 + 96 * r), tag='ao')
        a.wait_lgkm('ao')
        a('s_barrier')
    def mix_pre(self, a):
        for i in range(3):
            a('ds_read_b128 v[%d:%d], v%d' % (self.d + 8 * i, self.d + 8 * i + 3, self.aor + i))
            a('ds_read_b128 v[%d:%d], v%d offset:16' % (self.d + 8 * i + 4, self.d + 8 * i + 7, self.aor + i))
            a('ds_read_b32 v%d, v%d' % (self.f + 2 * i, self.gad + i))
        for i in range(3):
            g, og = self.f + 2 * i, self.f + 8 + 2 * i
            a('v_sub_f32 v%d, 1.0, v%d' % (og, g))
            a('v_cvt_pk_bf16_f32 v%d, v%d, v%d\nv_lshlrev_b32 v%d, 16, v%d\nv_mov_b32 v%d, v%d' % (og, og, og, og, og, og + 1, og))
            for x in range(8): a('v_mul_f32 v%d, v%d, v%d' % (self.d + 8 * i + x, self.d + 8 * i + x, g))
    def mix_post(self, a, stflags=''):
        t = self.t
        for i in range(3):
            p = self.p + 16 * i
            og = self.f + 8 + 2 * i
            for dw in range(4):
                acc, tmp = t + 2 * dw, t + 8 + 2 * (dw & 1)
                a('v_lshlrev_b32 v%d, 16, v%d\nv_and_b32 v%d, 0xffff0000, v%d' % (acc, p + dw, acc + 1, p + dw))
                for ks in range(1, 4):
                    a('v_lshlrev_b32 v%d, 16, v%d\nv_and_b32 v%d, 0xffff0000, v%d' % (tmp, p + 4 * ks + dw, tmp + 1, p + 4 * ks + dw))
                    a('v_pk_add_f32 v[%d:%d], v[%d:%d], v[%d:%d]' % (acc, acc + 1, acc, acc + 1, tmp, tmp + 1))
            for dw in range(4):
                acc = t + 2 * dw; ga = self.d + 8 * i + 2 * dw
                a('v_pk_fma_f32 v[%d:%d], v[%d:%d], v[%d:%d], v[%d:%d]' % (acc, acc + 1, acc, acc + 1, og, og + 1, ga, ga + 1))
            o = t + 12 + 4 * (i & 1)
            for dw in range(4): a('v_cvt_pk_bf16_f32 v%d, v%d, v%d' % (o + dw, t + 2 * dw, t + 2 * dw + 1))
            a('buffer_store_dwordx4 v[%d:%d], v%d, s[%d:%d], 0 offen %s' % (o, o + 3, self.oaddr + i, self.S_OUT, self.S_OUT + 3, stflags))
    def mix(self, a, stflags=''):
        self.mix_pre(a); self.mix_post(a, stflags)
```

```python
from asmlib import *
from common import *
from sched import Node, Packer, place_groups

V_LANE16 = 1
V_LANE8 = 2
V_XOFF = 3
V_DP = 4
V_DS = 5
V_RA0 = 6
V_RA1 = 7
V_RS = 8
V_C2 = 9
V_T = 10
V_XD = 80
V_XR0 = 81
V_XR1 = 82
NSL = 16
AF0 = 16
GT0 = 80
HP0 = 88
ACC0 = 96
XV0 = 224

S_W = 4
S_X = 8
S_WS = 12
S_WV, S_T, S_FJ = 20, 21, 22
S_DOFFP, S_DOFFS = 23, 24
S_M0B = 25
S_HP, S_HSG = 26, 27
S_TMP, S_TMP2 = 28, 29
S_C1 = 30
S_RB = 32
S_ST = 36
S_XB = 38
S_XM = 39

FL = [False]
S_WG, S_WU = 68, 72
S_DFL = 23
S_M0S = 82
S_PSH = 59
DS_SLOTS = {0: (0, 2), 1: (3, 1)}
FUSED = [False]
SPLIT8 = [[(0, 5), (5, 9), (9, 9)]]
S_PFP, S_PFS = 62, 63
S_PF2 = 58
S_XPF = 77
S_PFM = 78
V_DUMMY = 8
LANE8 = [V_LANE8]

def xfrag(rb, ks):
    fi = ks * 4 + rb
    if fi < 64: return 'a[%d:%d]' % (4 * fi, 4 * fi + 3)
    b = XV0 + 4 * (fi - 64)
    return 'v[%d:%d]' % (b, b + 3)

def acc(setn, bl, mx, rb):
    return ACC0 + 64 * setn + (bl * 2 + mx) * 16 + rb * 4

def roles(a):
    a('''v_lshrrev_b32 v10, 6, v0
v_and_b32 v0, 63, v0
s_nop 0
v_readfirstlane_b32 s%d, v10
s_and_b32 s%d, s2, 7
s_lshr_b32 s%d, s2, 3
s_and_b32 s%d, s%d, 3
s_lshr_b32 s%d, s%d, 2
s_lshl_b32 s%d, s%d, 2
s_and_b32 s46, s%d, 3
s_add_u32 s%d, s%d, s46
s_lshl_b32 s%d, s%d, 3
s_lshr_b32 s46, s%d, 2
s_add_u32 s%d, s%d, s46''' % (S_WV, S_TMP, S_TMP2,
        S_FJ, S_TMP,
        S_T, S_TMP,
        S_T, S_T,
        S_TMP2,
        S_T, S_T,
        S_FJ, S_FJ,
        S_TMP2,
        S_FJ, S_FJ))

T0, T1, T2, T3, T4, T5 = 83, 84, 85, 86, 87, 88

def setup_x(a):
    a('''s_lshl_b32 s40, s%d, 5
s_lshr_b32 s41, s%d, 1
s_lshl_b32 s41, s41, 4
s_add_u32 s40, s40, s41
s_and_b32 s41, s%d, 1
s_lshl_b32 s41, s41, 10
s_add_u32 s40, s40, s41
s_mul_i32 s%d, s40, 1152
s_mul_i32 s%d, s%d, 18432
s_add_u32 s%d, s%d, %d
v_lshrrev_b32 v%d, 3, v0
v_and_b32 v%d, 7, v0
v_xor_b32 v%d, v%d, v%d
v_mul_u32_u24 v%d, 1152, v%d
v_lshl_add_u32 v%d, v%d, 4, v%d
v_and_b32 v%d, 15, v0
v_lshrrev_b32 v%d, 4, v0
v_and_b32 v%d, 7, v%d
v_xor_b32 v%d, v%d, v%d
v_lshlrev_b32 v%d, 4, v%d
v_lshl_add_u32 v%d, v%d, 7, v%d
v_add_u32 v%d, s%d, v%d
v_xor_b32 v%d, 64, v%d''' % (S_T, S_WV, S_WV, S_XB, S_XM, S_WV, S_XM, S_XM, 2 * SLOT,
        T0, T1, T1, T1, T0, T0, T0, V_XD, T1, T0,
        T0, T1, T2, T0, T2, T2, T1, T2, T2, T2, T0, T2, V_XR0, S_XM, T2, V_XR1, V_XR0))

def setup_rest(a):
    a('''v_and_b32 v10, 15, v0
v_lshrrev_b32 v11, 4, v0''')
    a('''v_lshrrev_b32 v12, 2, v0
v_mul_u32_u24 v12, 9216, v12
v_lshrrev_b32 v13, 5, v0
v_lshlrev_b32 v13, 1, v13
v_and_b32 v14, 3, v0
v_xor_b32 v13, v13, v14
v_lshl_add_u32 v%d, v13, 4, v12
v_lshrrev_b32 v12, 1, v0
v_and_b32 v13, 0x13, v12
v_and_b32 v14, 4, v12
v_lshl_or_b32 v13, v14, 1, v13
v_and_b32 v14, 8, v12
v_lshrrev_b32 v14, 1, v14
v_or_b32 v13, v13, v14
v_mul_u32_u24 v13, 9216, v13
v_and_b32 v14, 1, v0
v_lshl_add_u32 v%d, v14, 4, v13''' % (V_DP, V_DS))
    a('''v_lshrrev_b32 v12, 2, v10
v_and_b32 v13, 3, v0
v_lshl_add_u32 v14, v11, 3, v12
v_lshlrev_b32 v14, 6, v14
v_lshl_add_u32 v14, v13, 3, v14
v_and_b32 v15, 1, v11
v_lshl_add_u32 v%d, v15, 5, v14
v_xor_b32 v%d, 32, v%d
v_lshrrev_b32 v14, 1, v11
v_lshlrev_b32 v14, 4, v14
v_lshl_add_u32 v14, v15, 2, v14
v_add_u32 v14, v14, v12
v_lshlrev_b32 v14, 5, v14
v_lshl_add_u32 v%d, v13, 3, v14
v_mov_b32 v%d, 0x%08x
s_mov_b32 s%d, 0x%08x''' % (V_RA0, V_RA1, V_RA0, V_RS, V_C2, f32bits(GC2), S_C1, f32bits(GC1)))
    a('''s_and_b32 s40, s%d, 1
s_and_b32 s41, s%d, 1
s_mul_i32 s42, s%d, 288
s_lshl_b32 s43, s41, 5
s_add_u32 s%d, s42, s43
s_mul_i32 s43, s40, %d
s_add_u32 s%d, s%d, s43
s_xor_b32 s43, s41, 1
s_lshl_b32 s43, s43, 8
s_add_u32 s%d, s42, s43
s_mul_i32 s43, s40, %d
s_add_u32 s%d, s%d, s43
s_mul_i32 s%d, s%d, 9216''' % (S_WV, S_FJ, S_FJ,
        S_DOFFP, 144 * 9216, S_DOFFP, S_DOFFP,
        S_DOFFS, 288 * 9216, S_DOFFS, S_DOFFS,
        S_M0B, S_WV))
    a('''s_lshl_b32 s42, s%d, 4
s_lshl_b32 s43, s%d, 2
s_add_u32 s42, s42, s43
s_lshr_b32 s43, s%d, 1
s_mul_i32 s44, s43, 9
s_mul_i32 s45, s41, 5
s_add_u32 s44, s44, s45
s_mul_i32 s45, s42, 144
s_add_u32 s44, s44, s45
s_lshl_b32 s%d, s44, 10
s_add_u32 s%d, s%d, %d
s_lshl_b32 s44, s42, 4
s_add_u32 s44, s44, s43
s_lshl_b32 s44, s44, 1
s_add_u32 s44, s44, s41
s_lshl_b32 s%d, s44, 9
s_add_u32 s%d, s%d, %d''' % (S_T, S_WV, S_FJ, S_HP, S_HP, S_HP, HF_BASE, S_HSG, S_HSG, S_HSG, HS_BASE))


def setup_rest_fl(a):
    a('''v_and_b32 v10, 15, v0
v_lshrrev_b32 v11, 4, v0''')
    a('''v_lshrrev_b32 v12, 3, v0
v_bfe_u32 v13, v0, 4, 1
s_and_b32 s40, s%d, 1
s_lshl_b32 s40, s40, 1
v_or_b32 v13, s40, v13
v_bfe_u32 v14, v0, 1, 2
v_xor_b32 v13, v13, v14
v_mul_u32_u24 v12, 9216, v12
v_lshl_add_u32 v12, v13, 5, v12
v_and_b32 v14, 1, v0
v_lshl_add_u32 v%d, v14, 4, v12
v_lshrrev_b32 v12, 1, v0
v_and_b32 v13, 0x13, v12
v_and_b32 v14, 4, v12
v_lshl_or_b32 v13, v14, 1, v13
v_and_b32 v14, 8, v12
v_lshrrev_b32 v14, 1, v14
v_or_b32 v13, v13, v14
v_mul_u32_u24 v13, 9216, v13
v_and_b32 v14, 1, v0
v_lshl_add_u32 v%d, v14, 4, v13''' % (S_WV, V_DP, V_DS))
    a('''v_lshrrev_b32 v12, 2, v10
v_and_b32 v13, 3, v0
v_lshl_add_u32 v14, v11, 3, v12
v_lshlrev_b32 v14, 7, v14
v_lshl_add_u32 v14, v13, 3, v14
v_lshrrev_b32 v15, 1, v12
v_and_b32 v13, 1, v11
v_lshl_or_b32 v15, v13, 1, v15
v_lshl_add_u32 v%d, v15, 5, v14
v_xor_b32 v%d, 32, v%d
v_mov_b32 v%d, 0x%08x
s_mov_b32 s%d, 0x%08x''' % (V_RA0, V_RA1, V_RA0, V_C2, f32bits(GC2), S_C1, f32bits(GC1)))
    a('''s_lshr_b32 s40, s%d, 3
s_and_b32 s41, s%d, 7
s_lshr_b32 s42, s41, 2
s_lshl_b32 s43, s41, 1
s_add_u32 s43, s43, s42
s_mul_i32 s44, s40, 2304
s_lshl_b32 s45, s43, 7
s_add_u32 s45, s45, s44
s_mul_i32 s46, s%d, %d
s_add_u32 s%d, s45, s46
s_and_b32 s46, s%d, 3
s_lshl_b32 s46, s46, 1
s_and_b32 s47, s%d, 1
s_add_u32 s46, s46, s47
s_lshl_b32 s%d, s46, 3
s_mul_i32 s46, s46, %d
s_add_u32 s%d, s45, s46
s_add_u32 s%d, s45, %d
s_mul_i32 s45, s42, 9
s_add_u32 s45, s45, 8
s_lshl_b32 s45, s45, 7
s_add_u32 s45, s45, s44
s_and_b32 s46, s41, 3
s_lshl_b32 s46, s46, 5
s_add_u32 s45, s45, s46
s_mul_i32 s46, s47, %d
s_add_u32 s%d, s45, s46
s_mul_i32 s%d, s%d, 9216
s_lshr_b32 s46, s%d, 1
s_mul_i32 s46, s46, 18432
s_lshl_b32 s47, s47, 10
s_add_u32 s%d, s46, s47''' % (S_FJ, S_FJ, S_WV, 72 * 9216, S_DFL, S_T, S_WV, S_PSH, 32 * 9216, S_PFP, S_PF2, 256 * 9216,
                                 32 * 9216, S_DOFFS, S_M0B, S_WV, S_WV, S_M0S))
    a('''s_lshl_b32 s46, s%d, 4
s_lshl_b32 s47, s%d, 2
s_add_u32 s46, s46, s47
s_mul_i32 s44, s40, 36
s_lshl_b32 s45, s43, 1
s_add_u32 s44, s44, s45
s_mul_i32 s45, s46, 144
s_add_u32 s44, s44, s45
s_lshl_b32 s%d, s44, 10
s_add_u32 s%d, s%d, %d
s_lshr_b32 s43, s%d, 1
s_lshl_b32 s44, s46, 4
s_add_u32 s44, s44, s43
s_lshl_b32 s44, s44, 1
s_and_b32 s45, s%d, 1
s_add_u32 s44, s44, s45
s_lshl_b32 s%d, s44, 9
s_add_u32 s%d, s%d, %d''' % (S_T, S_WV, S_HP, S_HP, S_HP, HF_BASE, S_FJ, S_FJ, S_HSG, S_HSG, S_HSG, HS_BASE))
    a('''s_and_b32 s40, s%d, 3
s_mul_i32 s41, s40, 589824
s_add_u32 s%d, s%d, s41
s_lshl_b32 s41, s40, 4
s_mov_b64 s[%d:%d], 0xffff
s_lshl_b64 s[%d:%d], s[%d:%d], s41''' % (S_T, S_PFS, S_DOFFS, S_PFM, S_PFM + 1, S_PFM, S_PFM + 1, S_PFM, S_PFM + 1))

def ds_dma(ds, mx):
    Q, h = ds >> 1, ds & 1
    slot = DS_SLOTS[h][mx]; srd = (S_WG, S_WU)[mx]
    G = []
    for par in range(2):
        for j in range(par, 9, 2):
            g = []
            if par == 1 and j == 1: g.append(('a', 'v_xor_b32 v%d, 64, v%d' % (V_DP, V_DP)))
            g += [('S', 's_add_u32 s%d, s%d, %d' % (S_TMP, S_DFL, Q * 128 + (288 * h + 8 * j) * 9216)),
                  ('S', 's_add_u32 m0, s%d, %d' % (S_M0B, slot * SLOT + j * 1024)),
                  ('M', ('buffer_load_dwordx4 v%d, s[%d:%d], s%d offen lds' % (V_DP, srd, srd + 3, S_TMP), ('ds', ds)))]
            if j == 7: g.append(('a', 'v_xor_b32 v%d, 64, v%d' % (V_DP, V_DP)))
            G.append(g)
    return G

def ds_prefetch(ds):
    Q, h = ds >> 1, ds & 1
    off = Q * 128 + 288 * h * 9216
    ld = lambda: ('buffer_load_dword v%d, v%d, s[%d:%d], s%d offen' % (V_DUMMY, V_DS, S_W, S_W + 3, S_TMP2), 'pf')
    return [[('S', 's_add_u32 s%d, s%d, %d' % (S_TMP2, S_PFP, off)), ('L', ld())],
            [('S', 's_add_u32 s%d, s%d, %d' % (S_TMP2, S_PF2, off)),
             ('Z', ['s_mov_b64 s[46:47], 0xff', 's_lshl_b64 s[46:47], s[46:47], s%d' % S_PSH, 's_mov_b64 exec, s[46:47]', ld(), 's_mov_b64 exec, -1'])]]

def fl_state(stage):
    return DS_SLOTS[stage & 1] + ((stage >> 1) & 1,)

def fl_move(reg, a_, b_):
    L = []
    d = (b_[0] - a_[0]) * SLOT
    if d > 0: L.append('v_add_u32 v%d, %d, v%d' % (reg, d, reg))
    elif d < 0: L.append('v_subrev_u32 v%d, %d, v%d' % (reg, -d, reg))
    if a_[1] != b_[1]: L.append('v_xor_b32 v%d, 64, v%d' % (reg, reg))
    return L

def setup(a):
    a('''s_load_dwordx2 s[8:9], s[0:1], %d
s_load_dwordx4 s[40:43], s[0:1], %d
s_load_dwordx2 s[12:13], s[0:1], %d''' % (KA_AX, KA_WG, KA_WS))
    roles(a)
    a('''s_waitcnt lgkmcnt(0)
s_mov_b32 s10, %d
s_mov_b32 s11, 0x20000
s_mov_b32 s14, %d
s_mov_b32 s15, 0x20000
s_cmp_ge_u32 s%d, 2
s_cselect_b32 s4, s42, s40
s_cselect_b32 s5, s43, s41
s_mov_b32 s6, %d
s_mov_b32 s7, 0x20000''' % (NB_X, WS_BYTES, S_WV, NB_W))
    a('v_lshlrev_b32 v%d, 4, v0\nv_lshlrev_b32 v%d, 3, v0' % (V_LANE16, V_LANE8))
    setup_x(a)
    setup_rest(a)

def w_prefetch(stage):
    G = []
    if stage < 8:
        p, h = stage >> 1, stage & 1
        offs = [(S_PFP, (288 * h) * 9216 + 64 * p), (S_PFP, (288 * h + 64) * 9216 + 64 * p), (S_DOFFP, (288 * h + 128) * 9216 + 64 * p)]
        vo = V_DP
    elif FL[0]:
        offs = [(S_PFS, 0), (S_PFS, 256 * 9216), (S_DOFFS, 512 * 9216)]
        vo = V_DS
    else:
        offs = [(S_PFS, 0), (S_PFS, 128 * 9216), (S_DOFFS, 256 * 9216)]
        vo = V_DS
    for i, (base, off) in enumerate(offs):
        ld = ('buffer_load_dword v%d, v%d, s[%d:%d], s%d offen' % (V_DUMMY, vo, S_W, S_W + 3, S_TMP2), 'pf')
        if i < 2: G.append([('S', 's_add_u32 s%d, s%d, %d' % (S_TMP2, base, off)), ('L', ld)])
        else:
            G.append([('S', 's_add_u32 s%d, s%d, %d' % (S_TMP2, base, off)),
                      ('Z', ['s_mov_b64 exec, s[%d:%d]' % (S_PFM, S_PFM + 1), ld, 's_mov_b64 exec, -1'])])
    return G

def wd_prefetch(e, s_base, s_srd):
    return [('S', 's_add_u32 s%d, s%d, %d' % (S_TMP2, s_base, 0)), ]

def setup_pf(a):
    a('''s_and_b32 s40, s%d, 3
s_mul_i32 s41, s40, 147456
s_add_u32 s%d, s%d, s41
s_mul_i32 s41, s40, 294912
s_add_u32 s%d, s%d, s41
s_lshl_b32 s41, s40, 4
s_mov_b64 s[%d:%d], 0xffff
s_lshl_b64 s[%d:%d], s[%d:%d], s41''' % (S_T, S_PFP, S_DOFFP, S_PFS, S_DOFFS, S_PFM, S_PFM + 1, S_PFM, S_PFM + 1, S_PFM, S_PFM + 1))

def rs_ops(t):
    return ['v_lshrrev_b32 v%d, 4, v0' % V_RS, 'v_lshrrev_b32 v%d, 1, v%d' % (t, V_RS), 'v_lshlrev_b32 v%d, 4, v%d' % (t, t),
            'v_and_b32 v%d, 1, v%d' % (V_RS, V_RS), 'v_lshl_add_u32 v%d, v%d, 2, v%d' % (t, V_RS, t),
            'v_bfe_u32 v%d, v0, 2, 2' % V_RS, 'v_add_u32 v%d, v%d, v%d' % (t, t, V_RS), 'v_lshlrev_b32 v%d, 5, v%d' % (t, t),
            'v_and_b32 v%d, 3, v0' % V_RS, 'v_lshl_add_u32 v%d, v%d, 3, v%d' % (V_RS, V_RS, t)]

def x_prefetch(a, part=None):
    if part in (None, 0):
        a('''s_and_b32 s40, s%d, 7
s_mul_i32 s40, s40, 294912
s_mul_i32 s41, s%d, 36864
s_add_u32 s%d, s40, s41
s_lshl_b32 s41, s%d, 13
s_add_u32 s41, s41, s%d
v_lshlrev_b32 v%d, 7, v0
buffer_load_dword v%d, v%d, s[%d:%d], s41 offen''' % (S_FJ, S_T, S_XPF, S_WV, S_XPF, 253, 254, 253, S_X, S_X + 3))
    if part in (None, 1):
        a('''s_add_u32 s40, s%d, 32768
s_cmp_eq_u32 s20, 0
s_cselect_b32 s42, 32, 0
v_cmp_gt_u32 vcc, s42, v0
v_mov_b32 v%d, 0x7ffffff0
v_cndmask_b32 v%d, v%d, v%d, vcc
buffer_load_dword v%d, v%d, s[%d:%d], s40 offen''' % (S_XPF, T1, T1, T1, 253, 255, T1, S_X, S_X + 3))

def dma_ops(stage, j):
    slot = slot_of(stage) if not FL[0] else 0
    if stage < 8:
        p, h = stage >> 1, stage & 1
        off = (288 * h + 16 * j) * 9216 + 64 * p
        base, vo = S_DOFFP, V_DP
    elif FL[0]:
        return ['s_add_u32 s%d, s%d, %d' % (S_TMP, S_DOFFS, 64 * j * 9216),
                's_add_u32 m0, s%d, %d' % (S_M0S, j * 2048),
                ('buffer_load_dwordx4 v%d, s[%d:%d], s%d offen lds' % (V_DS, S_W, S_W + 3, S_TMP), ('dma', 8) if j > 4 else ('dma', 'h0'))]
    else:
        off = 32 * j * 9216
        base, vo = S_DOFFS, V_DS
    return ['s_add_u32 s%d, s%d, %d' % (S_TMP, base, off),
            's_add_u32 m0, s%d, %d' % (S_M0B, slot * SLOT + j * 1024),
            ('buffer_load_dwordx4 v%d, s[%d:%d], s%d offen lds' % (vo, S_W, S_W + 3, S_TMP), ('dma', stage))]

NXB = 9

def xblocks():
    return [(rb, kp) for rb in range(4) for kp in range(9)]

def x_dma(b):
    rb, kp = xblocks()[b]
    L = []
    for e in range(2):
        L += ['s_add_u32 s%d, s%d, %d' % (S_TMP, S_XB, (256 * rb + 8 * e) * 1152 + kp * 128),
              's_add_u32 m0, s%d, %d' % (S_XM, (b % NXB) * 2048 + e * 1024),
              ('buffer_load_dwordx4 v%d, s[%d:%d], s%d offen lds' % (V_XD, S_X, S_X + 3, S_TMP), ('xd', b))]
    return L

def x_read(b):
    rb, kp = xblocks()[b]
    o = (b % NXB) * 2048
    return ['ds_read_b128 %s, v%d offset:%d' % (xfrag(rb, 2 * kp), V_XR0, o),
            ('ds_read_b128 %s, v%d offset:%d' % (xfrag(rb, 2 * kp + 1), V_XR1, o), ('xr', b))]

def x_steps():
    steps = []
    steps.append([o for b in range(NXB) for o in x_dma(b)])
    for b in range(36):
        st = [('waitvm', ('xd', b))] + x_read(b)
        if b >= 1 and b - 1 + NXB < 36:
            st += [('waitlg', ('xr', b - 1))] + x_dma(b - 1 + NXB)
        steps.append(st)
    return steps

def x_substeps():
    def piece(b, e, tmp):
        rb, kp = xblocks()[b]
        return (['s_add_u32 s%d, s%d, %d' % (tmp, S_XB, (256 * rb + 8 * e) * 1152 + kp * 128),
                 's_add_u32 m0, s%d, %d' % (S_XM, (b % NXB) * 2048 + e * 1024)],
                ('buffer_load_dwordx4 v%d, s[%d:%d], s%d offen lds' % (V_XD, S_X, S_X + 3, tmp), ('xd', b)))
    first = [o for b in range(NXB) for o in x_dma(b)]
    subs = []
    for b in range(36):
        nb = b - 1 + NXB
        if b >= 1 and nb < 36:
            (sa, la), (sb, lb) = piece(nb, 0, S_TMP), piece(nb, 1, S_TMP)
            subs.append(sa + [('waitvm', ('xd', b))] + x_read(b))
            subs.append([('waitlg', ('xr', b - 1)), la] + sb)
            subs.append([lb])
        else:
            subs.append([('waitvm', ('xd', b))] + x_read(b))
    return first, subs

def put2(a, o):
    if isinstance(o, tuple) and o[0] == 'waitvm': a.wait_vm(o[1])
    elif isinstance(o, tuple) and o[0] == 'waitlg': a.wait_lgkm(o[1])
    else: put(a, o)

class GegluState:
    def __init__(self):
        self.tlast = {}
        self.hlast = {}

def geglu_nodes(gs, setn, bl, rb, dst, tset, war):
    g = acc(setn, bl, 0, rb); u = acc(setn, bl, 1, rb)
    t = GT0 + 4 * tset
    prev = gs.tlast.get(tset, [None] * 4)
    N = []
    fin = []
    rows = [[] for _ in range(8)]
    for r in range(4):
        n0 = Node('a', 'v_mul_f32 v%d, v%d, v%d' % (t + r, g + r, g + r), [prev[r]] if prev[r] else [])
        n1 = Node('a', 'v_fma_f32 v%d, v%d, s%d, v%d' % (t + r, t + r, S_C1, V_C2), [n0])
        n2 = Node('a', 'v_mul_f32 v%d, v%d, v%d' % (t + r, t + r, g + r), [n1])
        n3 = Node('T', 'v_exp_f32 v%d, v%d' % (t + r, t + r), [n2])
        nm = Node('a', 'v_mul_f32 v%d, v%d, v%d' % (u + r, g + r, u + r))
        n4 = Node('a', 'v_add_f32 v%d, 1.0, v%d' % (t + r, t + r), [n3])
        n5 = Node('T', 'v_rcp_f32 v%d, v%d' % (t + r, t + r), [n4])
        n6 = Node('a', 'v_mul_f32 v%d, v%d, v%d' % (u + r, u + r, t + r), [n5, nm])
        for i, n in enumerate((n0, n1, n2, n3, nm, n4, n5, n6)): rows[i].append(n)
        fin.append(n6)
    for row in rows: N += row
    c0 = Node('a', 'v_cvt_pk_bf16_f32 v%d, v%d, v%d' % (dst, u, u + 1), fin[:2] + war)
    c1 = Node('a', 'v_cvt_pk_bf16_f32 v%d, v%d, v%d' % (dst + 1, u + 2, u + 3), fin[2:] + war)
    gs.tlast[tset] = fin
    return N + [c0, c1], [c0, c1]

def geglu_pair(gs, p, stflags):
    L = []
    for rb in range(4):
        hs = rb & 1
        hp = HP0 + 4 * hs
        war = [gs.hlast[hs]] if hs in gs.hlast else []
        cv = []
        for bl in range(2):
            n, c = geglu_nodes(gs, p & 1, bl, rb, hp + 2 * bl, bl, war)
            L += n; cv += c
        if stflags == 'none': continue
        sa = Node('S', 's_add_u32 s%d, s%d, %d' % (S_ST + hs, S_HP, rb * 144 * 1024 + p * 1024), war)
        st = Node('X', ('buffer_store_dwordx4 v[%d:%d], v%d, s[%d:%d], s%d offen %s' % (hp, hp + 3, V_LANE16, S_WS, S_WS + 3, S_ST + hs, stflags), ('hst', p)), cv + [sa])
        L += [sa, st]; gs.hlast[hs] = st
    return L

def geglu_single(gs, stflags):
    L = []
    for rb in range(4):
        hs = rb & 1
        hp = HP0 + 4 * hs
        war = [gs.hlast[hs]] if hs in gs.hlast else []
        n, cv = geglu_nodes(gs, 0, 0, rb, hp, rb & 1, war)
        L += n
        if stflags == 'none': continue
        sa = Node('S', 's_add_u32 s%d, s%d, %d' % (S_ST + hs, S_HSG, rb * 16 * 1024), war)
        st = Node('X', ('buffer_store_dwordx2 v[%d:%d], v%d, s[%d:%d], s%d offen %s' % (hp, hp + 1, LANE8[0], S_WS, S_WS + 3, S_ST + hs, stflags), ('hst', 4)), cv + [sa])
        L += [sa, st]; gs.hlast[hs] = st
    return L

def put(a, item):
    if isinstance(item, tuple): a(item[0], tag=item[1])
    else: a(item)

def stage_frags(stage):
    C = []
    for ci in range(4):
        if stage < 8:
            p, h = stage >> 1, stage & 1
            bl, mx = ci >> 1, ci & 1
            ks0 = 9 * h
            if FL[0]: C.append(dict(addr=(V_RA0, V_RA1)[bl], off=lambda k: k * 4096, e2=512, setn=p & 1, bl=bl, mx=mx, ks0=ks0))
            else: C.append(dict(addr=(V_RA0, V_RA1)[bl], off=lambda k, mx=mx: mx * 18432 + k * 2048, setn=p & 1, bl=bl, mx=mx, ks0=ks0))
        else:
            mx, hh = ci & 1, ci >> 1
            C.append(dict(addr=V_RS, off=lambda k, mx=mx, hh=hh: mx * 18432 + (9 * hh + k) * 1024, setn=0, bl=0, mx=mx, ks0=9 * hh))
    return C

def read_ops(stage, ci, k, F):
    c = stage_frags(stage)[ci]
    r = AF0 + 4 * (F % NSL)
    o = c['off'](k)
    return ['ds_read_b64_tr_b16 v[%d:%d], v%d offset:%d' % (r, r + 1, c['addr'], o),
            ('ds_read_b64_tr_b16 v[%d:%d], v%d offset:%d' % (r + 2, r + 3, c['addr'], o + c.get('e2', 256)), ('fr', F))]

def addr_bump(stage_next):
    d = (slot_of(stage_next) - slot_of(stage_next - 1)) * SLOT
    regs = (V_RA0, V_RA1) if FUSED[0] else (V_RA0, V_RA1, V_RS)
    if d > 0: return ['v_add_u32 v%d, %d, v%d' % (r, d, r) for r in regs]
    return ['v_subrev_u32 v%d, %d, v%d' % (r, -d, r) for r in regs]

LEAD = 12
FL_BARS = {0, 1, 2, 3, 4, 6, 7}
FL_HEAD = 5
FL_SPAN = 58

def emit_phase1(a, stflags='sc1', nstage=9, extra_dma=None, stamp=None, skip=(), bp=110, w1pos=27, prologue=True, hook=None, tail=True, dist=3):
    if prologue:
        if stamp: stamp(a, 10)
        if 'xpf' not in skip: x_prefetch(a)
        xs = x_steps()
        for o in xs[0]: put2(a, o)
        for j in range(9):
            for o in dma_ops(0, j): put(a, o)
        if stamp: stamp(a, 11)
        for i, st in enumerate(xs[1:]):
            for o in st: put2(a, o)
            if w1pos == i:
                for j in range(9):
                    for o in dma_ops(1, j): put(a, o)
        a.wait_lgkm(('xr', 35))
        a('s_barrier')
        for j in range(9):
            for o in dma_ops(2, j): put(a, o)
        a.wait_vm(('dma', 0))
        if stamp: stamp(a, 12)
        a('s_barrier')
    if stamp: stamp(a, 0)
    F = 0
    for k in range(9):
        for o in read_ops(0, 0, k, k): put(a, o)
    if FL[0]:
        g_, u_, pp = fl_state(0)
        for o in fl_move(V_RA0, (g_, pp), (u_, pp)): a(o)
    pk = Packer(a, put2)
    gs = GegluState()
    for st in range(nstage):
        C = stage_frags(st)
        nv = [[] for _ in range(144)]
        BP = bp
        for ci in range(1, 5):
            s2, c2 = (st, ci) if ci < 4 else (st + 1, 0)
            if s2 >= nstage: continue
            for k in range(9):
                Fi = (st * 4 + ci) * 9 + k
                ro = read_ops(s2, c2, k, Fi) if 'reads' not in skip else []
                base = 36 * (ci - 1)
                if ci < 4: pos = (base + 4 * k, base + 4 * k + 2)
                else:
                    span = 143 - (BP + 1)
                    pos = (BP + 1 + (span * (2 * k)) // 18, BP + 1 + (span * (2 * k + 1)) // 18)
                    if k >= 7: pos = (max(pos[0], base + 28 + (k - 7)), max(pos[1], base + 29 + (k - 7)))
                for e, o in enumerate(ro): nv[pos[e]].append(('D', o))
        for ci in range(4):
            for k in (0, 3, 6):
                Fi = (st * 4 + ci) * 9 + k + 2
                pos = 36 * ci + k - 1
                if pos >= 0: nv[pos].append(('W', ('waitlg', ('fr', Fi))))
        if st + 1 < nstage:
            nv[143].append(('W', ('waitlg', ('fr', ((st + 1) * 4) * 9 + 2))))
            if not FL[0]:
                for i, o in enumerate(addr_bump(st + 1)): nv[BP - 3 + i].append(('a', o))
                nv[BP] += [('W', ('waitlg', ('fr', (st * 4 + 3) * 9 + 8))), ('W', ('waitvm', ('dma', st + 1)))]
                if 'barrier' not in skip: nv[BP].append(('B', 's_barrier'))
            else:
                need = {0: ('ds', 1), 3: ('ds', 2), 4: ('ds', 3), 7: ('dma', 'h0')}.get(st)
                if st in FL_BARS:
                    nv[BP].append(('W', ('waitlg', ('fr', (st * 4 + 3) * 9 + 8))))
                    if need: nv[BP].append(('W', ('waitvm', need)))
                    nv[BP].append(('B', 's_barrier'))
        if FL[0] and st < 8:
            g_, u_, pp = fl_state(st)
            mv = []
            mv += [(71, o) for o in fl_move(V_RA1, (g_, pp), (u_, pp))]
            if st < 7:
                g2, u2, pp2 = fl_state(st + 1)
                mv += [(40 + i, o) for i, o in enumerate(fl_move(V_RA0, (u_, pp), (g2, pp2)))]
                mv += [(107 + i, o) for i, o in enumerate(fl_move(V_RA1, (u_, pp), (g2, pp2)))]
                mv += [(143, o) for o in fl_move(V_RA0, (g2, pp2), (u2, pp2))]
            for pos_, o in mv: nv[pos_].append(('a', o))
        dl = []
        tgt = st + dist
        if 'dma' in skip or FL[0]: pass
        elif dist == 3 and tgt in (8, 9, 10) and nstage > 8: dl = [dma_ops(8, j) for j in range(*SPLIT8[0][tgt - 8])]
        elif dist == 2 and tgt == 8: dl = [dma_ops(8, j) for j in range(3, 9)]
        elif tgt < 9 and tgt < nstage: dl = [dma_ops(tgt, j) for j in range(9)]
        lo, hi = ((90, 138) if st == 0 else (2, 40) if st == 7 else (2, 134)) if dist == 3 else ((40, 96) if st == 0 else (2, 92))
        groups = [(lo + (i * (hi - lo)) // max(len(dl), 1), [('S', d[0]), ('S', d[1]), ('M', d[2])]) for i, d in enumerate(dl)]
        if dist == 2 and st == 5:
            for j in range(3):
                d = dma_ops(8, j); groups.append((100 + 12 * j, [('S', d[0]), ('S', d[1]), ('M', d[2])]))
        if FL[0]:
            plan = {2: (2, 0), 3: (3, 0)}
            seq = []
            if st in (2, 3): seq = ('head', (ds_dma(st, 0) + ds_dma(st, 1)))
            if st in (3, 4):
                tail_ = ds_dma(st - 1, 0) + ds_dma(st - 1, 1)
                for i, g_ in enumerate(tail_[FL_HEAD:]): groups.append((1 + (i * FL_SPAN) // (18 - FL_HEAD), g_))
            if st in (2, 3):
                for i, g_ in enumerate(seq[1][:FL_HEAD]): groups.append((BP + 2 + 5 * i, g_))
            if st == 6:
                for j in range(2):
                    d = dma_ops(8, j); groups.append((BP + 2 + 12 * j, [('S', d[0]), ('S', d[1]), ('M', d[2])]))
            if st == 7:
                for j in range(2, 5):
                    d = dma_ops(8, j); groups.append((1 + 16 * (j - 2), [('S', d[0]), ('S', d[1]), ('M', d[2])]))
                for j in range(5, 9):
                    d = dma_ops(8, j); groups.append((56 + 20 * (j - 5), [('S', d[0]), ('S', d[1]), ('M', d[2])]))
            if st == 8:
                nv[34] += [('W', ('waitvm', ('dma', 8))), ('B', 's_barrier')]
        if extra_dma: groups += extra_dma(st, nv)
        place_groups(nv, groups)
        if hook: hook(st, nv, pk)
        for n in range(144):
            ci, rb, k = n // 36, (n % 36) // 9, n % 9
            c = C[ci]
            ks = c['ks0'] + k
            d = acc(c['setn'], c['bl'], c['mx'], rb)
            fr = AF0 + 4 * (((st * 4 + ci) * 9 + k) % NSL)
            srcc = '0' if ks == 0 else 'v[%d:%d]' % (d, d + 3)
            if ks == 0:
                for nd_ in pk.q:
                    o_ = Op(nd_.item[0] if isinstance(nd_.item, tuple) else nd_.item)
                    assert not ((o_.reads | o_.writes) & {('v', d + i) for i in range(4)}), 'GEGLU backlog overlaps new accumulation'
            a('v_mfma_f32_16x16x32_bf16 v[%d:%d], v[%d:%d], %s, %s' % (d, d + 3, fr, fr + 3, xfrag(rb, ks), srcc))
            fixed = sorted(nv[n], key=lambda f: {'D': 0, 'S': 1, 'M': 1, 'L': 1, 'X': 1, 'W': 2, 'B': 3, 'Z': 3, 'a': 4, 'T': 4}[f[0]])
            pk.fill(fixed)
        if stamp: stamp(a, st + 1)
        if 'geglu' in skip: continue
        if st < 8 and (st & 1): pk.push(geglu_pair(gs, st >> 1, stflags))
        if st == 8: pk.push(geglu_single(gs, stflags))
    if tail: pk.drain()
    return pk
```

```python
from asmlib import *
from common import *
from sched import Node, Packer, place_groups

V_LANE16 = 1
V_LANE8 = 8
DM = [2, 3, 10, 11, 12, 13, 14, 15, 5]
V2_RA = 6
V2_EW = 7
V2_T = 16
AF2 = 32
NSL2 = 12
ACC2 = 96
V2_ER = 168
HB0 = 0
EPI_LDS = 2 * SLOT

S_WD = 16
S_WS = 12
S_WV = 20
S2_T, S2_NT, S2_KS = 48, 49, 50
S2_DA, S2_DB = 51, 52
S2_M0 = 53
S2_H, S2_HS = 54, 55
S2_P = 56
S2_T1, S2_T2, S2_T3 = 57, 58, 59

def roles2(a):
    a('''s_and_b32 s46, s2, 7
s_lshr_b32 s47, s2, 3
s_and_b32 s%d, s46, 3
s_lshr_b32 s46, s46, 2
s_lshl_b32 s46, s46, 3
s_and_b32 s%d, s47, 7
s_add_u32 s%d, s%d, s46
s_lshr_b32 s%d, s47, 3''' % (S2_KS, S2_T, S2_T, S2_T, S2_NT))

EPI = [(2 * SLOT, 2 * SLOT + 2 * 9728)]
def epi_base(sr):
    return ['s_and_b32 s%d, s%d, 1' % (sr, S_WV), 's_mul_i32 s%d, s%d, 9728' % (sr, sr), 's_cmp_ge_u32 s%d, 2' % S_WV,
            's_cselect_b32 s59, %d, 0' % ((EPI[0][1] - EPI[0][0]) & 0xffffffff), 's_add_u32 s%d, s%d, s59' % (sr, sr), 's_add_u32 s%d, s%d, %d' % (sr, sr, EPI[0][0])]

def dm_calc(j, t, er=False):
    L = ['v_add_u32 v%d, %d, v0' % (t, 64 * j), 'v_mul_u32_u24 v%d, 3641, v%d' % (t + 1, t), 'v_lshrrev_b32 v%d, 16, v%d' % (t + 1, t + 1),
         'v_mul_u32_u24 v%d, 18, v%d' % (t + 2, t + 1), 'v_sub_u32 v%d, v%d, v%d' % (t + 2, t, t + 2)]
    if not er: L += ['v_mul_u32_u24 v%d, 1152, v%d' % (t + 3, t + 1), 'v_lshl_add_u32 v%d, v%d, 4, v%d' % (DM[j], t + 2, t + 3)]
    else: L += ['v_mul_u32_u24 v%d, 304, v%d' % (t + 3, t + 1), 'v_lshl_add_u32 v%d, v%d, 4, v%d' % (V2_ER + j, t + 2, t + 3)]
    return L

def setup2_vec(a):
    a('''v_and_b32 v16, 15, v0
v_lshrrev_b32 v17, 4, v0
v_lshrrev_b32 v18, 2, v16
v_lshl_add_u32 v18, v17, 2, v18
v_mul_u32_u24 v18, 288, v18
v_and_b32 v19, 3, v0
v_lshl_add_u32 v%d, v19, 3, v18
v_mul_u32_u24 v18, 304, v16
v_lshl_add_u32 v18, v17, 3, v18
%s
v_add_u32 v%d, s46, v18
v_lshlrev_b32 v%d, 3, v0''' % (V2_RA, '\n'.join(epi_base(46)), V2_EW, V_LANE8))

def epi_ops(t):
    L = []
    for j in range(9): L += dm_calc(j, t, er=True)
    L += epi_base(43)
    L += ['v_add_u32 v%d, s43, v%d' % (V2_ER + j, V2_ER + j) for j in range(9)]
    return L

def setup2_epi(a):
    for o in epi_ops(16): a(o)

def setup2(a):
    for j in range(9):
        for o in dm_calc(j, 16): a(o)
    setup2_vec(a); setup2_epi(a); setup2_scalar(a)

def setup2_scalar(a):
    roles2(a)
    if FLMAP[0]:
        a('''s_lshl_b32 s46, s%d, 2
s_mul_i32 s47, s%d, 36
s_add_u32 s46, s46, s47
s_mul_i32 s46, s46, 36864
s_mul_i32 s%d, s%d, 288
s_add_u32 s%d, s46, s%d
s_lshr_b32 s46, s%d, 1
s_mul_i32 s46, s46, 18
s_add_u32 s46, s46, 16
s_add_u32 s46, s46, s47
s_and_b32 s47, s%d, 1
s_add_u32 s46, s46, s47
s_mul_i32 s46, s46, 36864
s_add_u32 s%d, s46, s%d
s_mul_i32 s%d, s%d, 9216''' % (S_WV, S2_KS, S2_T1, S2_NT, S2_DA, S2_T1, S_WV, S_WV, S2_DB, S2_T1, S2_M0, S_WV))
    else: a('''s_lshr_b32 s46, s%d, 1
s_mul_i32 s46, s46, 9
s_and_b32 s47, s%d, 1
s_mul_i32 s47, s47, 5
s_add_u32 s46, s46, s47
s_mul_i32 s47, s%d, 36
s_add_u32 s46, s46, s47
s_mul_i32 s46, s46, 36864
s_mul_i32 s%d, s%d, 288
s_add_u32 s%d, s46, s%d
s_mul_i32 s46, s%d, 9
s_add_u32 s46, s46, 4
s_add_u32 s46, s46, s47
s_mul_i32 s46, s46, 36864
s_add_u32 s%d, s46, s%d
s_mul_i32 s%d, s%d, 9216''' % (S_WV, S_WV, S2_KS, S2_T1, S2_NT, S2_DA, S2_T1, S_WV, S2_DB, S2_T1, S2_M0, S_WV))
    a('''s_lshl_b32 s46, s%d, 3
s_lshl_b32 s47, s%d, 1
s_add_u32 s46, s46, s47
s_mul_i32 s47, s46, 144
s_mul_i32 s%d, s%d, 36
s_add_u32 s47, s47, s%d
s_lshl_b32 s%d, s47, 10
s_add_u32 s%d, s%d, %d
s_lshl_b32 s47, s46, 4
s_lshl_b32 s%d, s%d, 2
s_add_u32 s47, s47, s%d
s_lshl_b32 s%d, s47, 10
s_add_u32 s%d, s%d, %d''' % (S2_T, S_WV, S2_T1, S2_KS, S2_T1, S2_H, S2_H, S2_H, HF_BASE, S2_T1, S2_KS, S2_T1, S2_HS, S2_HS, S2_HS, HS_BASE))
    a('''s_lshl_b32 s46, s%d, 2
s_add_u32 s46, s46, s%d
s_mul_i32 s46, s46, %d
s_lshl_b32 s47, s%d, 7
s_lshl_b32 s%d, s%d, 5
s_add_u32 s47, s47, s%d
s_mul_i32 s47, s47, 288
s_add_u32 s46, s46, s47
s_add_u32 s%d, s46, %d''' % (S2_KS, S2_NT, P_TILE, S2_T, S2_T1, S_WV, S2_T1, S2_P, P_BASE))

FLMAP = [False]
def kkl(st, i):
    if FLMAP[0]: return 18 * (st & 1) + (st >> 1) + 4 * i if st < 8 else 16 + (i & 1) + 18 * (i >> 1)
    if st < 8: return 18 * (st & 1) + (st >> 1) + 9 * (i >> 1) + 5 * (i & 1)
    return 9 * i + 4

def dma2_ops(st, j, slot):
    if st < 8: base, off = S2_DA, (18 * (st & 1) + (st >> 1)) * 36864
    else: base, off = S2_DB, 0
    L = ['s_add_u32 s%d, s%d, %d' % (S2_T1, base, off)] if j == 0 else []
    return L + ['s_add_u32 m0, s%d, %d' % (S2_M0, slot * SLOT + j * 1024),
                ('buffer_load_dwordx4 v%d, s[%d:%d], s%d offen lds' % (DM[j], S_WD, S_WD + 3, S2_T1), ('dma2', st))]

def hfrag(st, i, rb):
    return HB0 + (st % 4) * 32 + (i * 2 + rb) * 4

def h_ops(st, i, rb, ldflags):
    r = hfrag(st, i, rb)
    if st < 8:
        return [('S', 's_add_u32 s%d, s%d, %d' % (S2_T2, S2_H, (rb * 144 + kkl(st, i)) * 1024)),
                ('L', ('buffer_load_dwordx4 a[%d:%d], v%d, s[%d:%d], s%d offen %s' % (r, r + 3, V_LANE16, S_WS, S_WS + 3, S2_T2, ldflags), ('h', st)))]
    return [('S', 's_add_u32 s%d, s%d, %d' % (S2_T2, S2_HS, (rb * 16 + i) * 1024)),
            ('L', ('buffer_load_dwordx2 a[%d:%d], v%d, s[%d:%d], s%d offen %s' % (r, r + 1, V_LANE8, S_WS, S_WS + 3, S2_T2, ldflags), ('h', st))),
            ('L', ('buffer_load_dwordx2 a[%d:%d], v%d, s[%d:%d], s%d offen offset:512 %s' % (r + 2, r + 3, V_LANE8, S_WS, S_WS + 3, S2_T2, ldflags), ('h', st)))]

def acc2(db, rb): return ACC2 + (db * 2 + rb) * 4

def read2_ops(db, i, F):
    r = AF2 + 4 * (F % NSL2)
    o = i * 9216 + db * 32
    return ['ds_read_b64_tr_b16 v[%d:%d], v%d offset:%d' % (r, r + 1, V2_RA, o),
            ('ds_read_b64_tr_b16 v[%d:%d], v%d offset:%d' % (r + 2, r + 3, V2_RA, o + 16 * 288), ('fr2', F))]

def put(a, item):
    if isinstance(item, tuple) and item[0] == 'waitvm': a.wait_vm(item[1])
    elif isinstance(item, tuple) and item[0] == 'waitlg': a.wait_lgkm(item[1])
    elif isinstance(item, tuple): a(item[0], tag=item[1])
    else: a(item)

def bump2(idx_next):
    d = (slot_of(idx_next) - slot_of(idx_next - 1)) * SLOT
    return 'v_add_u32 v%d, %d, v%d' % (V2_RA, d, V2_RA) if d > 0 else 'v_subrev_u32 v%d, %d, v%d' % (V2_RA, -d, V2_RA)

def place2(nv, groups):
    ptr = 0
    for want, items in sorted(groups, key=lambda g: g[0]):
        ptr = max(ptr, want)
        for cls, it in items:
            while any(c in 'MLBZX' for c, _ in nv[ptr]) or sum(1 for c, _ in nv[ptr] if c in 'SW') >= 1 or sum(1 for c, _ in nv[ptr] if c == 'D') > 1:
                ptr += 1
            nv[ptr].append((cls, it)); ptr += 1

def prologue2(a, slot0, ldflags, dma=True):
    if dma:
        for st in range(3):
            for j in range(9):
                for o in dma2_ops(st, j, slot_of(slot0 + st)): put(a, o)
    for st in range(2):
        for i in range(4):
            for rb in range(2):
                for c, o in h_ops(st, i, rb, ldflags): put(a, o)

def emit_phase2(a, slot0=0, ldflags='sc1', stamp=None, skip=(), pre_stage=None, bp=61):
    if slot_of(slot0): a('v_add_u32 v%d, %d, v%d' % (V2_RA, slot_of(slot0) * SLOT, V2_RA))
    a.wait_vm(('dma2', 0))
    a('s_barrier')
    if stamp: stamp(a, 0)
    for g in range(2):
        for i in range(4):
            for o in read2_ops(g, i, g * 4 + i): put(a, o)
    for st in range(9):
        slot = slot0 + st
        nv = [[] for _ in range(72)]
        BP = bp
        for g in range(2, 9):
            for i in range(4):
                F = (st * 9 + g) * 4 + i
                for e, o in enumerate(read2_ops(g, i, F)): nv[8 * (g - 2) + 2 * i + e].append(('D', o))
        if st < 8:
            for g in range(2):
                for i in range(4):
                    F = ((st + 1) * 9 + g) * 4 + i
                    for e, o in enumerate(read2_ops(g, i, F)): nv[BP + 1 + 4 * g + i].append(('D', o))
        for db in range(9):
            F = (st * 9 + db) * 4 + 3
            if db: nv[8 * db - 1].append(('W', ('waitlg', ('fr2', F))))
        if st < 8:
            nv[71].append(('W', ('waitlg', ('fr2', ((st + 1) * 9) * 4 + 3))))
            nv[BP - 1].append(('a', bump2(slot + 1)))
            nv[BP] += [('W', ('waitlg', ('fr2', (st * 9 + 8) * 4 + 3))), ('W', ('waitvm', ('dma2', st + 1))), ('B', 's_barrier')]
        groups = []
        if st + 3 < 9 and 'dma' not in skip:
            for j in range(9):
                o = dma2_ops(st + 3, j, slot_of(slot + 3))
                groups.append((1 + (j * 56) // 9, [('S', x) for x in o[:-1]] + [('L', o[-1])]))
        hw = 0
        if pre_stage: hw = pre_stage(st, nv, groups) or 0
        if st + 2 < 9 and 'h' not in skip:
            for i in range(4):
                for rb in range(2):
                    groups.append((hw + 3 + ((i * 2 + rb) * (56 - hw)) // 8, h_ops(st + 2, i, rb, ldflags)))
        place2(nv, groups)
        for n in range(72):
            db, rb, i = n // 8, (n % 8) // 4, n % 4
            d = acc2(db, rb)
            fr = AF2 + 4 * (((st * 9 + db) * 4 + i) % NSL2)
            h = hfrag(st, i, rb)
            srcc = '0' if (st == 0 and i == 0) else 'v[%d:%d]' % (d, d + 3)
            a('v_mfma_f32_16x16x32_bf16 v[%d:%d], v[%d:%d], a[%d:%d], %s' % (d, d + 3, fr, fr + 3, h, h + 3, srcc))
            for c, o in sorted(nv[n], key=lambda f: {'D': 1, 'S': 0, 'M': 2, 'L': 2, 'X': 2, 'W': 3, 'B': 4, 'Z': 4, 'a': 5, 'T': 5}[f[0]]): put(a, o)
        if stamp: stamp(a, st + 1)

def epilogue2(a, stflags='sc1'):
    for db in range(9):
        for rb in range(2):
            d = acc2(db, rb); t = V2_T + 2 * ((db * 2 + rb) % 8)
            a('v_cvt_pk_bf16_f32 v%d, v%d, v%d\nv_cvt_pk_bf16_f32 v%d, v%d, v%d' % (t, d, d + 1, t + 1, d + 2, d + 3))
            a('ds_write_b64 v%d, v[%d:%d] offset:%d' % (V2_EW, t, t + 1, rb * 16 * 304 + db * 32), tag='pw')
    a.wait_lgkm('pw')
    for j in range(9):
        a('ds_read_b128 v[%d:%d], v%d' % (AF2 + 4 * j, AF2 + 4 * j + 3, V2_ER + j))
    for j in range(9):
        a('s_add_u32 s%d, s%d, %d' % (S2_T1, S2_P, j * 1024))
        a('buffer_store_dwordx4 v[%d:%d], v%d, s[%d:%d], s%d offen %s' % (AF2 + 4 * j, AF2 + 4 * j + 3, V_LANE16, S_WS, S_WS + 3, S2_T1, stflags), tag='pst')
```

```python
COST = {'D': 8, 'M': 12, 'L': 8, 'X': 12, 'S': 4, 'W': 4, 'B': 4, 'Z': 4, 'a': 4, 'T': 8, 'w': 12}

class Node:
    def __init__(self, cls, item, deps=()):
        self.cls, self.item, self.deps, self.done = cls, item, list(deps), None

class Packer:
    def __init__(self, a, put):
        self.a, self.put = a, put
        self.q = []
        self.gap = 0
        self.aa_prev = False
        self.chain = False
    def push(self, nodes): self.q += nodes
    def ready(self, n):
        return all(d.done is not None and (d.done < self.gap or (self.chain and d.cls == 'a' and n.cls == 'a')) for d in n.deps)
    def fill(self, fixed, window=14, allow=True):
        a = self.a
        nonv = [f for f in fixed if f[0] not in 'aT']
        vfix = [f for f in fixed if f[0] in 'aT']
        used = sum(COST[c] for c, _ in nonv)
        extra = []
        if allow:
            for n in self.q[:window]:
                if n.cls in 'SX' and self.ready(n):
                    if n.cls == 'S' and used + 4 <= 8: extra.append(n); used += 4
                    elif n.cls == 'X' and used == 0 and not vfix: extra.append(n); used += 12
                    break
        for c, it in nonv: self.put(a, it)
        for n in extra:
            self.put(a, n.item); n.done = self.gap; self.q.remove(n)
        vbud = min(8, 12 - used) - sum(COST[c] for c, _ in vfix)
        for c, it in vfix: self.put(a, it)
        nv = len(vfix)
        if allow:
            while vbud >= 4:
                pick = None
                cands = [n for n in self.q[:window] if n.cls in 'aT' and self.ready(n)]
                if vbud >= 8 and nv == 0:
                    pick = next((n for n in cands if n.cls == 'T'), None)
                if pick is None:
                    pick = next((n for n in cands if n.cls == 'a'), None)
                if pick is None: break
                if nv == 1 and self.aa_prev and len(self.q) < 60 and False: break
                self.put(a, pick.item); pick.done = self.gap; self.q.remove(pick)
                vbud -= COST[pick.cls]; nv += 1
        self.aa_prev = nv >= 2
        self.gap += 1
    def step(self):
        if not self.q: return False
        best = None
        for n in self.q[:16]:
            if all(d.done is not None for d in n.deps):
                age = min([self.gap - d.done for d in n.deps], default=99)
                if best is None or (age >= 2 and best[0] < 2): best = (age, n)
                if age >= 2: break
        n = best[1]
        self.put(self.a, n.item); n.done = self.gap; self.q.remove(n); self.gap += 1
        return True
    def drain(self, rider=None):
        i = 0
        while self.q:
            prog = False
            best = None
            for n in self.q[:16]:
                if all(d.done is not None for d in n.deps):
                    age = min([self.gap - d.done for d in n.deps], default=99)
                    if best is None or (age >= 2 and best[0] < 2): best = (age, n)
                    if age >= 2: break
            assert best is not None
            n = best[1]
            self.put(self.a, n.item); n.done = self.gap; self.q.remove(n); self.gap += 1
            if rider: rider(i)
            i += 1


def gap_cost(items):
    return sum(COST[c] for c, _ in items if c not in 'aT')

def place_groups(nv, groups, last=None):
    n_max = len(nv) if last is None else last
    ptr = 0
    for want, items in sorted(groups, key=lambda g: g[0]):
        ptr = max(ptr, want)
        for cls, it in items:
            while True:
                assert ptr < n_max, 'no room for ' + str(it)
                busy = gap_cost(nv[ptr])
                hasv = any(c in 'aT' for c, _ in nv[ptr])
                blocked = any(c in 'MBXZ' for c, _ in nv[ptr])
                if cls in 'MX': ok = busy == 0 and not hasv
                else: ok = (not blocked) and busy + COST[cls] <= 12 - (4 if hasv else 0)
                if ok: break
                ptr += 1
            nv[ptr].append((cls, it)); ptr += 1


def nodes_from_ops(ops):
    last_w, readers, N = {}, {}, []
    for o in ops:
        if o.kind in ('label', 'dir', 'pseudo'): raise ValueError('unsupported in a filler stream: ' + o.text)
        cls = {'valu': 'a', 'trans': 'T', 'salu': 'S', 'ds': 'X', 'vmem': 'X'}[o.kind]
        rd = set(o.reads); wr = set(o.writes)
        if o.kind == 'salu' and not o.mn.startswith(('s_cselect', 's_addc', 's_cbranch')): wr.discard(('x', 'scc'))
        rd.discard(('x', 'exec')); rd.discard(('x', 'm0'))
        deps = set()
        for r in rd | wr:
            if r in last_w: deps.add(last_w[r])
        for r in wr:
            for x in readers.get(r, []): deps.add(x)
        n = Node(cls, (o.text, o.tag) if o.tag is not None else o.text, list(deps))
        for r in wr: last_w[r] = n; readers[r] = []
        for r in rd: readers.setdefault(r, []).append(n)
        N.append(n)
    return N
```

```python
import sys, re; sys.path.insert(0, 'gen')
from asmlib import *; from common import *
import phase1 as P1, phase2 as P2, abranch as AB
from sched import Node, nodes_from_ops

HEADER = open('cdna_kernels/' + KN + '.s.ref').read().split('; Override launch geometry')[0]
LDS_BYTES = 163840
RAW = 4 * SLOT
FU = FLAG_BASE
FH1 = FU + 4096
FH2 = FH1 + 4096
FH3 = FH2 + 4096
FV = FH3 + 4096
FP = FV + 4096
EPOCH = FP + 32768
S_NONCE, S_SPIN = 60, 61
S_FHP, S_FHC, S_UO, S_FPP, S_FPC = 31, 32, 33, 34, 35
S_HPF = 76
S_KS2S, S_NT = 88, 89
S_PUB = 77
S_OWN = 3
SPIN = 300000

def put(a, item):
    if callable(item): item(a)
    elif isinstance(item, list):
        for x in item: put(a, x)
    elif isinstance(item, tuple) and item[0] == 'waitvm': a.wait_vm(item[1])
    elif isinstance(item, tuple) and item[0] == 'waitlg': a.wait_lgkm(item[1])
    elif isinstance(item, tuple): a(item[0], tag=item[1])
    else: a(item)
P1.put2 = put; P1.put = put; P2.put = put

class Fused:
    def __init__(self, stamps=False, opt=None):
        self.a = Asm(); self.cold = Asm(); self.nlab = 0; self.stamps = stamps; self.marks = []; self.opt = opt or {}
    def mark(self, name):
        if not self.stamps: return
        i = len(self.marks); self.marks.append(name)
        assert i < 60
        self.a('s_memtime s[98:99]')
        self.a('s_waitcnt lgkmcnt(0)')
        self.a('v_mov_b32 v%d, s98' % self.stamp_tmp)
        self.a('s_mov_b64 exec, 1')
        self.a('buffer_store_dword v%d, v1, s[12:15], s96 offen offset:%d' % (self.stamp_tmp, 4 * i))
        self.a('s_mov_b64 exec, -1')
    def publish(self, soff, vtmp, add=0, base2=False):
        if base2: return ['s_add_u32 s43, s%d, 4096' % soff] + self.publish(43, vtmp)
        if self.opt.get('pub_all'):
            return ['v_mov_b32 v%d, s%d' % (vtmp, S_NONCE), 's_mov_b64 exec, 1',
                    'buffer_store_dword v%d, v1, s[12:15], s%d offen offset:%d sc1' % (vtmp, soff, add), 's_mov_b64 exec, -1']
        return ['v_mov_b32 v%d, s%d' % (vtmp, S_NONCE), 's_cmp_eq_u32 s20, 0', 's_cselect_b32 s%d, s%d, 0x7ff00000' % (S_PUB, soff), 's_mov_b64 exec, 1',
                'buffer_store_dword v%d, v1, s[12:15], s%d offen offset:%d sc1' % (vtmp, S_PUB, add), 's_mov_b64 exec, -1']
    def flags(self, kind, r, soff, vaddr, tag, add=0):
        self.nlab += 1
        L, R = 'L_poll%d' % self.nlab, 'L_back%d' % self.nlab
        if kind == 'one': test = ['v_cmp_eq_u32_e64 s[62:63], s%d, v%d' % (S_NONCE, r)]
        else:
            test = ['v_xor_b32 v%d, s%d, v%d' % (r + i, S_NONCE, r + i) for i in range(4)] + \
                   ['v_or3_b32 v%d, v%d, v%d, v%d' % (r, r, r + 1, r + 2), 'v_or_b32 v%d, v%d, v%d' % (r, r, r + 3), 'v_cmp_eq_u32_e64 s[62:63], 0, v%d' % r]
        ld = ('buffer_load_dword v%d' % r if kind == 'one' else 'buffer_load_dwordx4 v[%d:%d]' % (r, r + 3)) + \
             ', v%d, s[12:15], s%d offen offset:%d sc1' % (vaddr, soff, add)
        c = self.cold
        c(L + ':'); c('s_mov_b32 s%d, %d' % (S_SPIN, SPIN))
        c(L + '_loop:'); c(ld); c('s_waitcnt vmcnt(0)')
        for o in test: c(o)
        c('s_nop 1\ns_cmp_eq_u64 s[62:63], exec\ns_cbranch_scc1 %s\ns_sleep %d\ns_sub_u32 s%d, s%d, 1\ns_cmp_lg_u32 s%d, 0\ns_cbranch_scc1 %s_loop\ns_branch %s' % (R, self.opt.get('sleep', 1), S_SPIN, S_SPIN, S_SPIN, L, R))
        return (ld, tag), [('waitvm', tag)] + test + ['s_cmp_eq_u64 s[62:63], exec', 's_cbranch_scc0 ' + L, R + ':']

    @staticmethod
    def const_cut(cs, at):
        i = min(at, len(cs.ops))
        while i < len(cs.ops):
            o = cs.ops[i]; p = cs.ops[i - 1] if i else None
            if p is not None and p.mn.startswith('v_cvt_pk') and o.mn.startswith(('v_add_f32', 'v_mul_f32', 'v_lshrrev')): return i
            i += 1
        return len(cs.ops)
    def build(self):
        a, opt = self.a, self.opt
        self.stamp_tmp = 83
        a('''s_load_dwordx16 s[64:79], s[0:1], 0
s_load_dwordx2 s[80:81], s[0:1], %d
s_load_dwordx2 s[82:83], s[0:1], %d''' % (KA_OUT, KA_WS))
        if opt.get('codepf', True):
            a('''s_getpc_b64 s[44:45]
L_pc:
s_lshr_b32 s46, s2, 3
s_lshl_b32 s46, s46, 11
v_lshrrev_b32 v248, 6, v0
v_and_b32 v249, 3, v0
v_lshl_add_u32 v248, v248, 2, v249
v_lshl_add_u32 v248, v248, 7, s46
v_min_u32 v248, L_done - L_pc, v248
v_mov_b32 v249, s45
v_add_co_u32 v248, vcc, s44, v248
v_addc_co_u32 v249, vcc, 0, v249, vcc
global_load_dword v247, v[248:249], off''')
        if self.stamps or opt.get('dbgclk'): a('s_memrealtime s[90:91]\ns_memtime s[92:93]')
        P1.roles(a)
        a('''s_waitcnt lgkmcnt(0)
s_mov_b32 s8, s64
s_mov_b32 s9, s65
s_mov_b32 s10, %d
s_mov_b32 s11, 0x20000
s_mov_b32 s12, s82
s_mov_b32 s13, s83
s_mov_b32 s14, %d
s_mov_b32 s15, 0x20000
s_cmp_ge_u32 s20, 2
s_cselect_b32 s84, s68, s66
s_cselect_b32 s85, s69, s67
s_mov_b32 s86, %d
s_mov_b32 s87, 0x20000
s_cselect_b32 s4, s74, s72
s_cselect_b32 s5, s75, s73
s_mov_b32 s6, %d
s_mov_b32 s7, 0x20000
s_mov_b32 s16, s76
s_mov_b32 s17, s77
s_mov_b32 s18, %d
s_mov_b32 s19, 0x20000
s_mov_b32 s64, s78
s_mov_b32 s65, s79
s_mov_b32 s66, 1152
s_mov_b32 s67, 0x20000
v_lshlrev_b32 v1, 4, v0''' % (NB_X, WS_BYTES, NB_WRI, NB_W, NB_W))
        if self.stamps:
            a('s_lshl_b32 s96, s2, 2\ns_add_u32 s96, s96, s20\ns_lshl_b32 s96, s96, 8\ns_add_u32 s96, s96, %d' % (STAMP_BASE + 65536))
        if opt.get('fl', True):
            a('s_mov_b32 s68, s72\ns_mov_b32 s69, s73\ns_mov_b32 s70, %d\ns_mov_b32 s71, 0x20000\ns_mov_b32 s72, s74\ns_mov_b32 s73, s75\ns_mov_b32 s74, %d\ns_mov_b32 s75, 0x20000' % (NB_W, NB_W))
        a('s_lshl_b32 s%d, s21, 5\ns_add_u32 s%d, s%d, s22' % (S_OWN, S_OWN, S_OWN))
        P1.FUSED[0] = True
        FLM = opt.get('fl', True)
        P1.FL[0] = FLM; P2.FLMAP[0] = FLM
        RING[0] = opt.get('ring', [0, 2, 3, 1])
        P2.EPI[0] = (slot_of(15) * SLOT, slot_of(14) * SLOT)
        P1.x_prefetch(a, 0)
        A1 = AB.A1(16, 96, SLOT, S_OWN, None, s_ax=8, s_gw=64, s_wt=84, wl=None)
        A2 = AB.A2(128, 16, 0, 2, wbase=240, tbase=244)
        A2.dr, A2.di, A2.bf = 128, 140, 232
        pre = Asm()
        if FLM: P1.setup_rest_fl(pre)
        else:
            P1.setup_rest(pre)
            P1.setup_pf(pre)
        P1.setup_x(pre)
        P2.setup2_scalar(pre)
        pre('''s_lshl_b32 s44, s21, 2
s_lshr_b32 s45, s22, 3
s_add_u32 s44, s44, s45
s_lshl_b32 s44, s44, 7
s_and_b32 s45, s22, 7
s_lshl_b32 s45, s45, 2
s_add_u32 s44, s44, s45
s_add_u32 s%d, s44, %d
s_lshr_b32 s44, s%d, 1
s_lshl_b32 s44, s44, 2
s_add_u32 s44, s44, s%d
s_lshl_b32 s44, s44, 7
s_add_u32 s%d, s44, %d
s_lshl_b32 s44, s%d, 11
s_lshl_b32 s45, s%d, 9
s_add_u32 s44, s44, s45
s_lshl_b32 s45, s%d, 7
s_add_u32 s44, s44, s45
s_add_u32 s%d, s44, %d
s_lshr_b32 s44, s3, 4
s_lshl_b32 s44, s44, 11
s_add_u32 s%d, s44, %d''' % (S_FHP, FH1, P2.S2_T, P2.S2_KS, S_FHC, FH1, P2.S2_T, P2.S2_NT, P2.S2_KS, S_FPP, FP, S_FPC, FP))
        pre('''s_mov_b32 s%d, s%d
s_mov_b32 s%d, s%d
s_lshr_b32 s44, s%d, 1
s_mul_i32 s44, s44, 9
s_and_b32 s45, s%d, 1
s_mul_i32 s45, s45, 5
s_add_u32 s44, s44, s45
s_lshl_b32 s44, s44, 10
s_add_u32 s%d, s44, s%d''' % (S_KS2S, P2.S2_KS, S_NT, P2.S2_NT, P2.S2_NT, P2.S2_NT, S_HPF, P2.S2_H))
        if FLM: pre('s_lshl_b32 s44, s%d, 12\ns_add_u32 s%d, s44, s%d' % (P2.S2_NT, S_HPF, P2.S2_H))
        for j in range(8):
            for o in P2.dm_calc(j, 83): pre(o)
        mid = Asm()
        P1.x_prefetch(mid, 1)
        if opt.get('tlb', False):
            mid('v_lshlrev_b32 v246, 21, v0\ns_mov_b64 exec, 7')
            mid('buffer_load_dword v245, v246, s[4:7], 0 offen', tag='pf')
            mid('buffer_load_dword v245, v246, s[16:19], 0 offen', tag='pf')
            mid('s_mov_b64 exec, -1')
        mid('s_mov_b32 s46, %d\nv_mov_b32 v95, 0' % EPOCH)
        mid('buffer_load_dword v94, v95, s[12:15], s46 offen sc1', tag='epoch')
        for op in mid.ops: a.add(op)
        if opt.get('a1_early', False):
            ld0 = Asm(); A1.loads(ld0); A1.loads_w(ld0)
            for op in ld0.ops: a.add(op)
        for op in pre.ops: a.add(op)
        if FLM:
            for ds_ in opt.get('fl_pf_first', (0,)):
                for g in P1.ds_prefetch(ds_):
                    for c_, o in g: put(a, o)
        elif opt.get('pf0_first', False):
            for s_ in range(opt.get('pf0_first')):
                for g in P1.w_prefetch(s_):
                    for c_, o in g: put(a, o)
        self.mark('issued')
        cs = Asm(); A1.consts(cs)
        first, subs = P1.x_substeps()
        cut = self.const_cut(cs, opt.get('xwin_at', 260))
        for op in cs.ops[:cut]: a.add(op)
        if opt.get('rows_mid', False):
            lm = Asm(); A1.loads(lm, t=89)
            for op in lm.ops: a.add(op)
        for o in first: put(a, o)
        for s_ in range(opt.get('pf_after_win', 0)):
            for g in P1.w_prefetch(s_):
                for c_, o in g: put(a, o)
        for op in cs.ops[cut:]: a.add(op)
        self.mark('consts')
        A3 = AB.A3(16, 0, S_OWN, 60000, vreg=240, abase=177, tbase=None)
        PKG = {'fre': 0, 'fim': 1, 'tc': 2, 'ts': 3, 'r8': 4, 'cs0': 5, 'cs1': 6, 'sn0': 7, 'sn1': 8, 'twc0': 9, 'twc1': 10, 'tws0': 11, 'tws1': 12, 'ab0': 13, 'ab1': 14}
        pc = Asm()
        pc('v_lshlrev_b32 v172, 4, v0\nv_add_u32 v172, %d, v172' % RAW)
        wr = lambda r, n: pc('ds_write_b128 v172, v[%d:%d] offset:%d' % (r, r + 3, 1024 * PKG[n]))
        A2.float_consts(pc, 104, 128, 132, 136, 140)
        for r, n in ((128, 'fre'), (132, 'fim'), (136, 'tc'), (140, 'ts')): wr(r, n)
        wr(A1.b1c, 'cs0'); wr(A1.b1s, 'sn0')
        pq = list(pc.ops)
        def park_stream():
            p3 = Asm()
            p3('v_lshlrev_b32 v84, 4, v0\nv_add_u32 v84, %d, v84' % RAW)
            w3 = lambda r, n: p3('ds_write_b128 v84, v[%d:%d] offset:%d' % (r, r + 3, 1024 * PKG[n]))
            def done(a_, n):
                if n == 'r8': w3(184, 'r8')
                elif n.startswith('cs'): w3(188, n); w3(192, 'sn' + n[2])
                elif n.startswith('tw'): w3(196, 'twc' + n[2]); w3(200, 'tws' + n[2])
                else: w3(204, n)
            A3.wide = False
            A3.float_consts(p3, 80, 160, 184, 188, 192, 196, 200, 204, done=done, skip0=True)
            return nodes_from_ops(p3.ops)
        ld = Asm()
        if not opt.get('a1_early', False):
            if not opt.get('rows_mid', False): A1.loads(ld)
            A1.loads_w(ld)
        nsub = len(subs)
        xsubs_plain = [list(x) for x in subs]
        mode = opt.get('w0_mode', 'bulk')
        tail_r = [[o for o in ld.ops]]
        flat = lambda G: [[o for c_, o in g] for g in G]
        if FLM:
            for ds_ in opt.get('fl_pf_riders', ()): tail_r += flat(P1.ds_prefetch(ds_))
            tail_r += flat(P1.ds_dma(0, 0))
            for ds_ in opt.get('fl_pf_riders2', (1,)): tail_r += flat(P1.ds_prefetch(ds_))
            for i, r_ in enumerate(tail_r): subs[nsub - 9 + min(i * 9 // len(tail_r), 8)] += r_
        else:
            if mode == 'bulk':
                w0_all = [P1.dma_ops(0, j) for j in range(9)]
                tail_r += [w0_all[0] + w0_all[1]] + w0_all[2:]
            elif mode in ('pf', 'late'):
                for s_ in range(opt.get('pf0_first', 0), opt.get('n_pf', 2)):
                    for g in P1.w_prefetch(s_): tail_r.append([o for c_, o in g])
            for i, r_ in enumerate(tail_r): subs[nsub - 9 + min(i, 8)] = subs[nsub - 9 + min(i, 8)] + r_
            if mode == 'bulk' and opt.get('pf1', True) and opt.get('pf0_first', 0) < 2 and opt.get('pf_after_win', 0) < 2:
                for s_ in opt.get('pf_riders', (1, 2)):
                    subs[nsub - 1] = subs[nsub - 1] + [o for g in P1.w_prefetch(s_) for c_, o in g]
        per = -(-len(pq) // (nsub - 10))
        xt = opt.get('x_tail_in_a1', False)
        for i_, st_ in enumerate(subs):
            if i_ == nsub - 9:
                for o in pq: a.add(o)
                pq = []
                self.mark('xlast')
                if xt:
                    for r_ in tail_r:
                        for o in r_:
                            if isinstance(o, Op): a.add(o)
                            else: put(a, o)
                    break
            if opt.get('xmarks') and i_ in (1, 28, 55): self.mark('x%d' % i_)
            for o in st_:
                if isinstance(o, Op): a.add(o)
                else: put(a, o)
            for o in pq[:per]: a.add(o)
            pq = pq[per:]
        xrest = [list(x) for x in xsubs_plain[nsub - 9:]] if xt else []
        if (FLM or opt.get('in_a1', (1, 2))) and not xt:
            a.wait_lgkm(('xr', 35))
            a('s_barrier')
        self.mark('xdone')
        a.wait_vm('epoch')
        a('v_readfirstlane_b32 s%d, v94' % S_NONCE)
        a('s_nop 0\ns_mul_i32 s%d, s%d, 0x19660d\ns_add_u32 s%d, s%d, 0x3c6ef35f' % ((S_NONCE,) * 4))
        b = Asm()
        def gate_to(a_, t):
            a_('''s_lshl_b32 s46, s3, 5
s_lshl_b32 s47, s20, 3
s_add_u32 s46, s46, s47
s_add_u32 s46, s46, %d
s_mov_b64 exec, 1
buffer_store_dwordx2 v[%d:%d], v1, s[12:15], s46 offen
s_mov_b64 exec, -1''' % (G_BASE, t, t + 1))
        A1.s_rl = 40
        A1.compute(b, gate_to=gate_to, stflags=opt.get('ust', 'sc1'))
        if opt.get('ust_none'): b.ops = [o for o in b.ops if o.tag != 'ust']
        if FLM:
            w0 = flat(P1.ds_dma(0, 1)) + flat(P1.ds_dma(1, 0))
            if not opt.get('fl_in_a1', True):
                for d_ in w0:
                    for o in d_: put(a, o)
                w0 = []
        else:
            w0 = [P1.dma_ops(0, j) for j in range(9)] if mode != 'bulk' else []
            for s_ in opt.get('in_a1', (1, 2)): w0 += [P1.dma_ops(s_, j) for j in range(9)]
        w0at = opt.get('w0_at', 60) if mode != 'late' else 10 ** 6; w0step = opt.get('w0_step', 16)
        inexec = False
        nbar = 0
        for i_, op in enumerate(b.ops):
            if opt.get('a1marks') and op.text == 's_barrier':
                nbar += 1; self.mark('b%dpre' % nbar)
            a.add(op)
            if opt.get('a1marks') and op.text == 's_barrier': self.mark('b%dpost' % nbar)
            if opt.get('a1marks') and i_ in (30, 120): self.mark('a1_%d' % i_)
            if op.text.startswith('s_mov_b64 exec, 1'): inexec = True
            if op.text.startswith('s_mov_b64 exec, -1'): inexec = False
            if xrest and not inexec and i_ % 12 == 11:
                for o in xrest.pop(0): put(a, o)
            if i_ >= w0at and w0 and not inexec and (i_ - w0at) % w0step == 0:
                for o in w0.pop(0): put(a, o)
        for st_ in xrest:
            for o in st_: put(a, o)
        if opt.get('a1marks'): self.mark('a1end')
        for d_ in w0:
            for o in d_: put(a, o)
        self.mark('a1done')
        a.wait_lgkm(('xr', 35))
        a('s_barrier')
        if FLM:
            for d_ in flat(P1.ds_dma(1, 1)):
                for o in d_: put(a, o)
            a.wait_vm(('ds', 0))
        else:
            if opt.get('dma1_pro', True) and 1 not in opt.get('in_a1', (1, 2)):
                for j in range(9):
                    for o in P1.dma_ops(1, j): put(a, o)
            for s_ in opt.get('pf_post', (3,)):
                for g in P1.w_prefetch(s_):
                    for c_, o in g: put(a, o)
            a.wait_vm(('dma', 0))
        a('s_barrier')
        self.mark('p1start')
        P1.LANE8[0] = 4
        fu_ld, fu_chk = self.flags('four', 128, 42, 1, 'fu')
        fh_ld, fh_chk = self.flags('one', 224, S_FHC, 225, 'fh1')
        h2_ld, h2_chk = self.flags('one', 229, 42, 225, 'fh2')
        SA = lambda L: [('S' if x.startswith('s_') else 'a', x) for x in L]
        def hpf_addr(d, t):
            return ['v_bfe_u32 v%d, v0, 3, 1' % d, 'v_mul_u32_u24 v%d, %d, v%d' % (d, 144 * 1024, d), 'v_and_b32 v%d, 7, v0' % t,
                    'v_lshl_add_u32 v%d, v%d, 7, v%d' % (d, t, d), 'v_bfe_u32 v%d, v0, 4, 1' % t, 'v_mul_u32_u24 v%d, %d, v%d' % (t, 18 * 1024, t),
                    'v_add_u32 v%d, v%d, v%d' % (d, d, t), 'v_lshrrev_b32 v%d, 5, v0' % t, 'v_lshl_add_u32 v%d, v%d, 10, v%d' % (d, t, d)]
        WDPF = opt.get('wdpf', [4, 5, 6])
        P1.SPLIT8[0] = opt.get('split8', [(0, 5), (5, 9), (9, 9)])
        D2AT = opt.get('d2at', {0: 8, 1: 9, 2: 9})
        def old_riders(st, dist):
            g = []
            lead = opt.get('wpf_lead', 2)
            if lead and st + dist + lead <= 8 and st >= opt.get('wpf_from', 1):
                for i, grp in enumerate(P1.w_prefetch(st + dist + lead)): g.append((opt.get('wpf_pos', 6) + opt.get('wpf_step', 40) * i, grp))
            for st_, tg, pos_ in opt.get('pf_extra', [(0, 4, 30), (1, 5, 2)] if lead == 2 else []):
                if st == st_:
                    for i, grp in enumerate(P1.w_prefetch(tg)): g.append((pos_ + 40 * i, grp))
            if st == 0:
                if not opt.get('dma1_pro', True) and 1 not in opt.get('in_a1', (1, 2)):
                    for j in range(9):
                        d = P1.dma_ops(1, j); g.append((1 + 4 * j, [('S', d[0]), ('S', d[1]), ('M', d[2])]))
                if dist == 3 and 2 not in opt.get('in_a1', (1, 2)):
                    for j in range(9):
                        d = P1.dma_ops(2, j); g.append((opt.get('d2pos', 20) + 7 * j, [('S', d[0]), ('S', d[1]), ('M', d[2])]))
            P8 = opt.get('pf8', [])
            if st in P8: g.append((100, P1.w_prefetch(8)[P8.index(st)]))
            return g
        def extra(st, nv):
            g = []
            dist = opt.get('dist', 3)
            if FLM:
                for st_, tg, pos_ in opt.get('fl_pf', [(0, 2, 10), (1, 3, 10)]):
                    if st == st_:
                        for i, grp in enumerate(P1.ds_prefetch(tg)): g.append((pos_ + 40 * i, grp))
                P8 = opt.get('pf8', [1, 2, 3])
                if st in P8: g.append((opt.get('pf8_pos', 60), P1.w_prefetch(8)[P8.index(st)]))
            else:
                g += old_riders(st, dist)
            if st in WDPF:
                e = WDPF.index(st)
                pre = ['s_lshr_b32 s44, s2, 3', 's_lshl_b32 s44, s44, 2', 's_add_u32 s44, s44, s20', 's_mul_i32 s44, s44, 3', 's_add_u32 s44, s44, %d' % e,
                       's_mul_i32 s45, s44, 911', 's_lshr_b32 s45, s45, 16', 's_mul_i32 s43, s45, 72', 's_sub_u32 s44, s44, s43',
                       's_lshl_b32 s44, s44, 7', 's_mul_i32 s45, s45, %d' % (32 * 9216), 's_add_u32 s44, s44, s45',
                       's_mul_i32 s45, s%d, %d' % (S_KS2S, 1152 * 1152), 's_add_u32 s44, s44, s45']
                g.append((opt.get('wdpf_pos', 60) if st < 7 else 4, SA(pre) + [('L', ('buffer_load_dword v8, v5, s[16:19], s44 offen', 'pf'))]))
            for s_, at in D2AT.items():
                if at == st:
                    lo_, hi_ = {6: (64, 134), 7: (90, 136), 8: (30, 90)}[st]
                    for j in range(8):
                        o = P2.dma2_ops(s_, j, slot_of(9 + s_))
                        g.append((lo_ + (j * (hi_ - lo_)) // 8, [('S', x) for x in o[:-1]] + [('M', o[-1])]))
            if st == 7:
                g.append((60, [('W', ('waitvm', 'pf'))] + SA(P1.rs_ops(4)) + SA(['v_lshlrev_b32 v4, 3, v0'])))
            if st == 8:
                g.append((0, SA(['s_mov_b32 s42, %d' % FU]) + [('L', fu_ld)]))
                g.append((10, SA(A2.u_base_ops(S_UO))))
                g.append((opt.get('fu_pos', 76), [('Z', fu_chk)]))
                for i_, grp in enumerate(A2.u_load_ops(S_UO)):
                    g.append((opt.get('fu_pos', 76) + 4 + 6 * i_, [('S', grp[0]), ('L', grp[1])]))
            return g
        def touches(pk, lo, hi):
            for n in pk.q:
                o = Op(n.item[0] if isinstance(n.item, tuple) else n.item)
                if (o.reads | o.writes) & {('v', i) for i in range(lo, hi)}: return True
            return False
        def stores_done(pk, p):
            def f(a_):
                if opt.get('hst') == 'none': return
                assert not any(isinstance(n.item, tuple) and n.item[1] == ('hst', p) for n in pk.q), 'stores of pair %d not yet issued' % p
                a_.wait_vm(('hst', p))
            return f
        SP = [84, 85, 86, 87, 94, 95, 97, 100]
        IM = opt.get('intra')
        def hook(st, nv, pk):
            if st == 0: pk.push(park_stream()); pk.chain = True
            if st == 2:
                pk.chain = False
                assert not any(n.cls == 'X' and 'ds_write' in str(n.item) for n in pk.q), 'parked constants not finished'
            if self.stamps and IM and st == IM[0]:
                for i_, pos in enumerate(IM[1]):
                    nv[pos].append(('Z', ['s_memtime s[98:99]', 's_waitcnt lgkmcnt(0)', 's_mov_b32 s%d, s98' % SP[i_]]))
            if st == 8:
                assert not touches(pk, 128, 132), 'GEGLU of pair 2 still pending in stage 8'
                def chk(a_):
                    assert not touches(pk, 128, 160), 'GEGLU of pair 2 overlaps the loads of the rotated rows'
                nv[opt.get('fu_pos', 76)].append(('W', chk))
                nv[124] += [('W', stores_done(pk, 2)), ('B', 's_barrier')]
                nv[125].append(('Z', self.publish(S_FHP + 0, 5, 0, base2=True)))
            if st == opt.get('fu_st', 1):
                nv[110].insert(0, ('W', ('waitvm', 'ust')))
                nv[111].append(('Z', ['s_lshl_b32 s43, s3, 2', 's_add_u32 s43, s43, %d' % FU] + self.publish(43, 85)))
            if st == 6:
                nv[110].insert(0, ('W', stores_done(pk, 1)))
                nv[111].append(('Z', self.publish(S_FHP, 4)))
        SPI = opt.get('p1marks', [1, 2, 3, 4, 5, 6, 7, 8]) if not opt.get('intra') else []
        def st1(a_, i):
            if i in SPI: a_('s_memtime s[98:99]\ns_waitcnt lgkmcnt(0)\ns_mov_b32 s%d, s98' % SP[SPI.index(i)])
        pk = P1.emit_phase1(a, stflags=opt.get('hst', 'sc1'), extra_dma=extra, prologue=False, hook=hook, tail=False, dist=opt.get('dist', 3), stamp=(st1 if self.stamps else None), skip=opt.get('skip1', ()))
        if self.stamps:
            a('s_waitcnt lgkmcnt(0)')
            names = ['s%d' % x for x in SPI] if not IM else ['i%d_%d' % (IM[0], x) for x in IM[1]]
            for i in range(len(names)):
                j = len(self.marks); self.marks.append(names[i])
                a('v_mov_b32 v255, s%d\ns_mov_b64 exec, 1\nbuffer_store_dword v255, v1, s[12:15], s96 offen offset:%d\ns_mov_b64 exec, -1' % (SP[i], 4 * j))
        self.stamp_tmp = 255
        self.mark('p1end')
        P2.setup2_vec(a)
        for o in P2.dm_calc(8, 16): a(o)
        for s_ in range(3):
            o = P2.dma2_ops(s_, 0, slot_of(9 + s_))[0:1] + P2.dma2_ops(s_, 8, slot_of(9 + s_))
            for x in o: put(a, x)
        a('v_and_b32 v225, 7, v0\nv_lshlrev_b32 v225, 2, v225')
        put(a, fh_ld)
        if not opt.get('h2_late', True):
            a('s_add_u32 s42, s%d, 4096' % S_FHC)
            put(a, h2_ld)
        for o in hpf_addr(226, 227): a(o)
        riders = []
        for s_, at in D2AT.items():
            if at == 9: riders += [P2.dma2_ops(s_, j, slot_of(9 + s_)) for j in range(8)]
        hr = [[x for c_, x in P2.h_ops(s_, i, rb, opt.get('hld', 'sc1'))] for s_ in range(2) for i in range(4) for rb in range(2)]
        b2 = Asm()
        b2('v_lshlrev_b32 v%d, 4, v0\nv_add_u32 v%d, %d, v%d' % (A2.t, A2.t, RAW, A2.t))
        for r, n in ((A2.fre, 'fre'), (A2.fim, 'fim'), (A2.tc, 'tc'), (A2.ts, 'ts')):
            b2('ds_read_b128 v[%d:%d], v%d offset:%d' % (r, r + 3, A2.t, 1024 * PKG[n]))
        A2.scaled_twiddles(b2); A2.addresses(b2)
        b2('s_barrier')
        A2.stage_in(b2)
        nchk = len(b2.ops)
        A2.compute(b2, before_bar=lambda a_: (a_.wait_vm(('hst', 4)) if opt.get('hst') != 'none' else None), after_bar=lambda a_: put(a_, ['s_add_u32 s43, s%d, 8192' % S_FHP] + self.publish(43, 230)))
        nlast = max(i for i, o in enumerate(b2.ops) if o.text == 's_barrier')
        A2.stage_out(b2, vlane16=1)
        hq = list(hr); rq = list(riders); masked = False
        per_op = opt.get('drain_rate', 1.0); credit = 0.0
        for i, op in enumerate(b2.ops):
            if i == nchk:
                put(a, fh_chk)
                put(a, ('buffer_load_dword v228, v226, s[12:15], s%d offen' % S_HPF, 'pf'))
            if i == nlast - 12:
                while pk.step(): pass
            a.add(op)
            if op.kind == 'salu' and ('x', 'exec') in op.writes: masked = not op.text.endswith('-1')
            if masked or op.kind == 'pseudo': continue
            credit += per_op
            while credit >= 1 and pk.q:
                pk.step(); credit -= 1
            if rq and i % 10 == 5: put(a, rq.pop(0))
            if i >= nchk + 120 and hq and (i - nchk) % 12 == 0: put(a, hq.pop(0))
        assert not pk.q
        for x in rq + hq: put(a, x)
        if opt.get('h2_late', True):
            a('s_add_u32 s42, s%d, 4096' % S_FHC)
            put(a, h2_ld)
        self.h2 = h2_chk + ['s_add_u32 s43, s%d, 2048' % S_HPF, 's_mov_b32 exec_hi, 0',
                            ('buffer_load_dword v228, v226, s[12:15], s43 offen', 'pf'), 's_mov_b64 exec, -1']
        self.mark('a2')
        h3_ld, h3_chk = self.flags('one', 80, 42, 81, 'fh3')
        fv_ld, fv_chk = self.flags('four', 84, 42, 82, 'fv')
        epi = P2.epi_ops(88)
        A3.tt, A3.xx = 212, 224
        ad = Asm(); A3.v_lds_addr(ad); A3.item_addr(ad); A3.addresses(ad)
        adq = [o.text for o in ad.ops]
        def pre2(st, nv, groups):
            if st == 0:
                for i, o in enumerate(['v_and_b32 v81, 7, v0', 'v_lshlrev_b32 v81, 2, v81'] + hpf_addr(92, 93) +
                                      ['v_bfe_u32 v93, v0, 3, 1', 'v_lshlrev_b32 v93, 14, v93', 'v_and_b32 v94, 7, v0', 'v_lshl_add_u32 v93, v94, 7, v93']):
                    nv[i].append(('a', o))
            if st == opt.get('h2_st', 0): nv[opt.get('h2_pos', 40)].append(('Z', self.h2))
            if st == 1:
                nv[61].insert(0, ('W', ('waitvm', 'vst')))
                nv[62].append(('Z', ['s_lshl_b32 s43, s2, 2', 's_add_u32 s43, s43, %d' % FV] + self.publish(43, 83)))
            if st == 2:
                groups.append((4, [('S', 's_add_u32 s42, s%d, 8192' % S_FHC), ('L', h3_ld)]))
            if st == 3:
                nv[0].append(('Z', h3_chk + ['s_add_u32 s43, s%d, 3072' % S_HPF, 's_mov_b32 exec_hi, 0',
                                             ('buffer_load_dword v95, v92, s[12:15], s43 offen', 'pf'),
                                             's_lshl_b32 s43, s%d, 10' % S_NT, 's_add_u32 s43, s43, s%d' % P2.S2_HS, 's_mov_b64 exec, 0xffff',
                                             ('buffer_load_dword v95, v93, s[12:15], s43 offen', 'pf'), 's_mov_b64 exec, -1']))
            if st == 0: pass
            if st == 6:
                for i, o in enumerate(epi): nv[2 + (i * 69) // len(epi)].append(('a', o))
            if st in (1, 2, 3, 4, 5):
                n_ = (len(adq) + (5 - st)) // (6 - st) if st < 5 else len(adq)
                for i in range(n_): nv[2 + (i * 68) // max(n_, 1)].append(('a', adq.pop(0)))
            if st == 6:
                nv[0].append(('a', 'v_min_u32 v82, 49, v0')); nv[1].append(('a', 'v_lshlrev_b32 v82, 4, v82'))
                groups.append((4, [('S', 's_mov_b32 s42, %d' % FV), ('L', fv_ld)]))
            if st == 7:
                va = A3.v_addr_ops(88)
                nv[0].append(('Z', fv_chk))
                for i, o in enumerate(va): nv[1 + i].append(('a', o))
                groups.append((len(va) + 3, [('L', x) for x in A3.v_load_ops(88)]))
        def st2(a_, i): self.mark('t%d' % i)
        P2.emit_phase2(a, slot0=9, ldflags=opt.get('hld', 'sc1'), skip=opt.get('skip2', ()), pre_stage=pre2, stamp=(st2 if self.stamps and opt.get('stage_marks') else None))
        self.mark('p2end')
        P2.epilogue2(a)
        a('s_lshl_b32 s46, s3, 5\ns_add_u32 s46, s46, %d\nv_lshlrev_b32 v4, 2, v0' % G_BASE)
        a('buffer_load_dword v5, v4, s[12:15], s46 offen', tag='g')
        a('s_mov_b32 s64, s80\ns_mov_b32 s65, s81\ns_mov_b32 s66, %d\ns_mov_b32 s67, 0x20000' % NB_X)
        assert not adq
        a('v_lshlrev_b32 v6, 4, v0\nv_add_u32 v6, %d, v6' % RAW)
        for r, n in ((A3.r8, 'r8'), (A3.cs, 'cs0'), (A3.cs + 4, 'cs1'), (A3.ns, 'sn0'), (A3.sn + 4, 'sn1'), (A3.twc, 'twc0'), (A3.twc + 4, 'twc1'),
                     (A3.tws, 'tws0'), (A3.tws + 4, 'tws1'), (A3.ab, 'ab0'), (A3.ab + 4, 'ab1')):
            a('ds_read_b128 v[%d:%d], v6 offset:%d' % (r, r + 3, 1024 * PKG[n]))
        for k_ in range(4):
            a('v_xor_b32 v%d, 0x80008000, v%d' % (A3.sn + k_, A3.ns + k_))
            a('v_xor_b32 v%d, 0x80008000, v%d' % (A3.ns + 4 + k_, A3.sn + 4 + k_))
        a('s_barrier')
        self.mark('a3consts')
        a('v_add_u32 v4, %d, v4' % A3.gl)
        a.wait_vm('g')
        a('s_mov_b64 exec, 0xff\nds_write_b32 v4, v5\ns_mov_b64 exec, -1')
        A3.spectral(a, mid_before=lambda a_: a_.wait_vm('pst'), mid_after=lambda a_: put(a_, self.publish(S_FPP, 252)))
        self.mark('spectral')
        A3.mix_pre(a)
        fp_ld, fp_chk = self.flags('one', 4, S_FPC, 5, 'fp')
        if opt.get('poll_all'):
            a('v_and_b32 v5, 15, v0\nv_lshlrev_b32 v5, 7, v5')
            put(a, fp_ld); put(a, fp_chk)
        else:
            a('s_cmp_lg_u32 s20, 0\ns_cbranch_scc1 L_nopoll')
            a('v_and_b32 v5, 15, v0\nv_lshlrev_b32 v5, 7, v5')
            put(a, fp_ld); put(a, fp_chk)
            a('L_nopoll:')
            a('s_barrier')
        self.mark('pflags')
        A3.p_loads(a)
        A3.mix_post(a, opt.get('outst', ''))
        a('s_cmp_lg_u32 s2, 0\ns_cbranch_scc1 L_fin')
        a('s_mov_b32 s46, %d' % EPOCH)
        put(a, self.publish(46, 252))
        a('L_fin:')
        self.mark('end')
        a('s_waitcnt vmcnt(0)')
        if self.stamps:
            a('''s_memrealtime s[94:95]
s_memtime s[98:99]
s_waitcnt lgkmcnt(0)
v_mov_b32 v10, s90
v_mov_b32 v11, s92
v_mov_b32 v12, s94
v_mov_b32 v13, s98
s_lshl_b32 s40, s2, 2
s_add_u32 s40, s40, s20
s_lshl_b32 s40, s40, 4
s_add_u32 s40, s40, %d
s_mov_b64 exec, 1
buffer_store_dwordx4 v[10:13], v1, s[12:15], s40 offen
s_waitcnt vmcnt(0)''' % STAMP_BASE)
        if opt.get('dbgclk'):
            a('''s_load_dwordx2 s[40:41], s[0:1], %d
s_memrealtime s[94:95]
s_memtime s[98:99]
s_waitcnt lgkmcnt(0)
s_mov_b32 s42, 256
s_mov_b32 s43, 0x20000
s_sub_u32 s94, s94, s90
s_sub_u32 s98, s98, s92
s_and_b32 s44, s2, 31
s_cmp_eq_u32 s44, 0
s_cbranch_scc0 L_nodbg
s_lshr_b32 s44, s2, 5
s_lshl_b32 s44, s44, 3
v_mov_b32 v10, s98
v_mov_b32 v11, s94
s_mov_b64 exec, 1
buffer_store_dwordx2 v[10:11], v1, s[40:43], s44 offen
s_waitcnt vmcnt(0)
L_nodbg:''' % KA_DBG)
        a('s_endpgm')
        body = a.finalize(); cold = self.cold.finalize()
        Kn = KN + '_kernel'
        src = HEADER + '; @launch grid=(256,1,1) block=(256,1,1) lds=%d\n' % LDS_BYTES
        src += '.amdgcn_target "amdgcn-amd-amdhsa--gfx950"\n.text\n.globl %s\n.p2align 8\n.type %s,@function\n%s:\n s_cmp_ge_u32 s2, 256\n s_cbranch_scc1 L_done\n' % (Kn, Kn, Kn)
        src += body + '\n' + cold + '\nL_done:\n s_endpgm\n.section .rodata,"a"\n' + kernel_desc(Kn) + '\n'
        return src

def variant(name, **opt):
    import json
    opt.setdefault('stage_marks', True)
    f = Fused(stamps=True, opt=opt); src = f.build(); open('work/%s.s' % name, 'w').write(src)
    json.dump(f.marks, open('work/%s.json' % name, 'w'))

if __name__ == '__main__':
    out = sys.argv[1] if len(sys.argv) > 1 else 'fused.s'
    f = Fused(); src = f.build(); open(out, 'w').write(src); print(out, f.a.stats, len(src))
    f = Fused(stamps=True, opt={'stage_marks': True}); src = f.build(); open(out.replace('.s', '_st.s'), 'w').write(src)
    import json; json.dump(f.marks, open(out.replace('.s', '_st.json'), 'w')); print(len(f.marks), 'marks')
```

```python
from asmlib import *
from common import *
import math

S_WV = 20
S_WS = 12
MF = 'v_mfma_f32_16x16x32_bf16'

def lit(x): return '0x%08x' % f32bits(x)

class Regs:
    def __init__(self, base): self.n = base
    def get(self, k=1, align=1):
        self.n = (self.n + align - 1) // align * align
        r = self.n; self.n += k
        return r

def lane_floats(a, vn, vq, fn, fq):
    a('v_and_b32 v%d, 15, v0\nv_lshrrev_b32 v%d, 4, v0\nv_cvt_f32_u32 v%d, v%d\nv_cvt_f32_u32 v%d, v%d' % (vn, vq, fn, vn, fq, vq))

def cos_pairs(a, dst, revs):
    for r in revs: a('v_cos_f32 v%d, v%d' % (r, r))
    for k in range(len(revs) // 2): a('v_cvt_pk_bf16_f32 v%d, v%d, v%d' % (dst + k, revs[2 * k], revs[2 * k + 1]))

def gate_finish(a, t, s_rl):
    for sh in (8, 4, 2, 1):
        for e in range(2): a('v_add_f32_dpp v%d, v%d, v%d row_ror:%d row_mask:0xf bank_mask:0xf' % (t + e, t + e, t + e, sh))
    for e in range(2):
        for k in range(4): a('v_readlane_b32 s%d, v%d, %d' % (s_rl + 4 * e + k, t + e, 16 * k))
    for e in range(2):
        a('v_mov_b32 v%d, s%d' % (t + e, s_rl + 4 * e))
        for k in range(1, 4): a('v_add_f32 v%d, s%d, v%d' % (t + e, s_rl + 4 * e + k, t + e))
        a('v_cvt_pk_bf16_f32 v%d, v%d, v%d' % (t + e, t + e, t + e))
        a('v_lshlrev_b32 v%d, 16, v%d' % (t + e, t + e))
        a('v_mul_f32 v%d, %s, v%d' % (t + e, lit(-math.log2(math.e)), t + e))
        a('v_exp_f32 v%d, v%d' % (t + e, t + e))
        a('v_add_f32 v%d, 1.0, v%d' % (t + e, t + e))
        a('v_rcp_f32 v%d, v%d' % (t + e, t + e))
        a('v_cvt_pk_bf16_f32 v%d, v%d, v%d' % (t + e, t + e, t + e))
        a('v_lshlrev_b32 v%d, 16, v%d' % (t + e, t + e))

class A1:
    def __init__(self, base, base2, lds, sw, gl_lds, s_ax=64, s_gw=68, s_wt=84, wl=None):
        self.S_AX, self.S_GW = s_ax, s_gw
        self.S_WT, self.WL = s_wt, wl
        self.s_rl = 72
        R = Regs(base)
        self.lds, self.sw, self.gl = lds, sw, gl_lds
        self.RP = 1600
        self.XR, self.XL = lds, lds + 8 * self.RP
        if wl is None: self.WL = self.XL + 10240
        self.b1c, self.b1s = R.get(4, 4), R.get(4, 4)
        self.twc, self.tws = R.get(8), R.get(8)
        self.a2r, self.a2i = R.get(12, 4), R.get(12, 4)
        self.r8 = R.get(4, 4)
        self.xa, self.xlw, self.msk, self.xlr = R.get(), R.get(6), R.get(2), R.get()
        self.end1 = R.n
        R = Regs(base2)
        self.dv, self.gx, self.gw = R.get(2), R.get(), R.get(5)
        self.af = R.get(16, 4)
        self.d2 = R.get(24, 4)
        self.d1 = R.get(32, 4)
        self.b2 = R.get(16, 4)
        self.t = R.get(12, 4)
        self.wa = R.get(); self.uo = R.get(5)
        self.wx = [self.d1 + 20 + i for i in range(12)] + [self.t + i for i in range(8)]
        self.end = R.n
    def loads(self, a, t=None):
        t = self.t if t is None else t
        a('''v_lshlrev_b32 v%d, 4, v0
v_add_u32 v%d, 1024, v%d
v_mov_b32 v%d, 0x7ffffff0
v_cmp_gt_u32 vcc, 8, v0
v_cndmask_b32 v%d, v%d, v%d, vcc
s_lshl_b32 s46, s%d, 9
s_add_u32 s46, s46, s%d
s_mul_i32 s46, s46, 1152
s_mul_i32 s47, s%d, %d
s_add_u32 s47, s47, %d''' % (self.dv, self.dv + 1, self.dv, t, self.dv + 1, t, self.dv + 1, S_WV, self.sw, S_WV, 2 * self.RP, self.XR))
        for e in range(2):
            for h in range(2):
                a('s_add_u32 s45, s46, %d\ns_add_u32 m0, s47, %d' % (e * 256 * 1152, e * self.RP + h * 1024))
                if h: a('s_mov_b32 exec_hi, 0xf')
                a('buffer_load_dwordx4 v%d, s[%d:%d], s45 offen lds' % (self.dv + h, self.S_AX, self.S_AX + 3), tag='a1x')
                if h: a('s_mov_b64 exec, -1')
        if not getattr(self, 'with_gate', True): return
        a('v_lshlrev_b32 v%d, 2, v0' % t)
        for i in range(5):
            a('buffer_load_dword v%d, v%d, s[%d:%d], 0 offen offset:%d' % (self.gw + i, t, self.S_GW, self.S_GW + 3, 256 * i), tag='a1g')
    def loads_w(self, a):
        a('''s_mul_i32 s46, s%d, 4624
s_and_b32 s47, s%d, 1
s_mul_i32 s47, s47, 3072
s_add_u32 s46, s46, s47
s_mul_i32 s47, s%d, 3072
s_add_u32 s47, s47, %d''' % (self.sw, S_WV, S_WV, self.WL))
        for i in range(3):
            a('s_add_u32 s45, s46, %d\ns_add_u32 m0, s47, %d' % (1024 * i, 1024 * i))
            a('buffer_load_dwordx4 v%d, s[%d:%d], s45 offen lds' % (self.dv, self.S_WT, self.S_WT + 3), tag='a1w')
    def consts(self, a):
        t = self.t
        vn, vq, fn, fq = t, t + 1, t + 2, t + 3
        x = self.d1
        lane_floats(a, vn, vq, fn, fq)
        a('v_mul_f32 v%d, %s, v%d' % (x + 16, lit(-1 / 24.), fn))
        a('v_mul_f32 v%d, %s, v%d' % (x + 17, lit(8.0), fq))
        a('v_mul_f32 v%d, v%d, v%d' % (x, x + 16, x + 17))
        for i in range(1, 8): a('v_add_f32 v%d, v%d, v%d' % (x + i, x + i - 1, x + 16))
        for i in range(8): a('v_sin_f32 v%d, v%d' % (x + 8 + i, x + i))
        for i in range(8): a('v_cos_f32 v%d, v%d' % (x + i, x + i))
        a('v_cmp_eq_u32 vcc, 3, v%d' % vq)
        for k in range(4):
            a('v_cvt_pk_bf16_f32 v%d, v%d, v%d' % (self.b1c + k, x + 2 * k, x + 2 * k + 1))
            a('v_cvt_pk_bf16_f32 v%d, v%d, v%d' % (self.b1s + k, x + 8 + 2 * k, x + 9 + 2 * k))
        for k in range(4):
            a('v_cndmask_b32_e64 v%d, v%d, 0, vcc' % (self.b1c + k, self.b1c + k))
            a('v_cndmask_b32_e64 v%d, v%d, 0, vcc' % (self.b1s + k, self.b1s + k))
        a('v_mul_f32 v%d, %s, v%d' % (x + 16, lit(-1 / 576.), fn))
        a('v_mul_f32 v%d, 4.0, v%d' % (x + 17, fq))
        a('v_mul_f32 v%d, v%d, v%d' % (x, x + 16, x + 17))
        for r in range(1, 4): a('v_add_f32 v%d, v%d, v%d' % (x + r, x + r - 1, x + 16))
        a('v_mul_f32 v%d, %s, v%d' % (x + 17, lit(16.0), x + 16))
        for r in range(4): a('v_add_f32 v%d, v%d, v%d' % (x + 4 + r, x + r, x + 17))
        for i in range(8): a('v_sin_f32 v%d, v%d' % (self.tws + i, x + i))
        for i in range(8): a('v_cos_f32 v%d, v%d' % (self.twc + i, x + i))
        a('''v_lshrrev_b32 v%d, 1, v%d
v_cvt_f32_u32 v%d, v%d
v_and_b32 v%d, 1, v%d
v_cvt_f32_u32 v%d, v%d''' % (x + 16, vn, x + 16, x + 16, x + 17, vn, x + 17, x + 17))
        a('v_mul_f32 v%d, %s, v%d' % (x + 17, lit(0.25), x + 17))
        a('v_mul_f32 v%d, 4.0, v%d' % (x + 18, fq))
        a('v_cmp_lt_u32 vcc, 1, v%d' % vq)
        for blk in range(3):
            a('v_add_f32 v%d, %s, v%d' % (x + 19, lit(8.0 * blk), x + 16))
            a('v_mul_f32 v%d, %s, v%d' % (x + 19, lit(1 / 24.), x + 19))
            a('v_fma_f32 v%d, v%d, v%d, v%d' % (x, x + 19, x + 18, x + 17))
            for i in range(1, 4): a('v_add_f32 v%d, v%d, v%d' % (x + i, x + i - 1, x + 19))
            a('v_mul_f32 v%d, %s, v%d' % (x + 20, lit(16.0), x + 19))
            for i in range(4): a('v_add_f32 v%d, v%d, v%d' % (x + 4 + i, x + i, x + 20))
            for i in range(8): a('v_add_f32 v%d, %s, v%d' % (x + 8 + i, lit(-0.25), x + i))
            cos_pairs(a, self.a2r + 4 * blk, [x + i for i in range(8)])
            cos_pairs(a, self.a2i + 4 * blk, [x + 8 + i for i in range(8)])
            for k in (2, 3):
                a('v_cndmask_b32_e64 v%d, v%d, 0, vcc' % (self.a2r + 4 * blk + k, self.a2r + 4 * blk + k))
                a('v_cndmask_b32_e64 v%d, v%d, 0, vcc' % (self.a2i + 4 * blk + k, self.a2i + 4 * blk + k))
        self.r8_consts(a, self.r8, +1, x, vn, vq, fq)
        self.addresses(a, vn, vq)
    def r8_consts(self, a, dst, sgn, x, vn, vq, fq):
        a('''v_lshrrev_b32 v%d, 1, v%d
v_cvt_f32_u32 v%d, v%d
v_and_b32 v%d, 1, v%d
v_cvt_f32_u32 v%d, v%d
v_cvt_f32_u32 v%d, s%d''' % (x + 16, vn, x + 16, x + 16, x + 17, vn, x + 17, x + 17, x + 18, self.sw))
        a('v_mul_f32 v%d, %s, v%d' % (x + 17, lit(0.25 * sgn), x + 17))
        if sgn > 0:
            a('v_mul_f32 v%d, %s, v%d' % (x + 18, lit(1 / 256.), x + 18))
            a('v_fma_f32 v%d, %s, v%d, v%d' % (x + 18, '4.0', fq, x + 18))
            a('v_mul_f32 v%d, %s, v%d' % (x + 19, lit(0.125), x + 16))
            a('v_fma_f32 v%d, v%d, v%d, v%d' % (x, x + 18, x + 19, x + 17))
            for jj in range(1, 4): a('v_add_f32 v%d, v%d, v%d' % (x + 2 * jj, x + 2 * jj - 2, x + 19))
        else:
            a('v_mul_f32 v%d, %s, v%d' % (x + 18, lit(1 / 256.), x + 18))
            a('v_add_f32 v%d, v%d, v%d' % (x + 18, x + 18, x + 16))
            a('v_mul_f32 v%d, %s, v%d' % (x + 19, lit(0.125), x + 18))
            a('v_mul_f32 v%d, 4.0, v%d' % (x + 18, fq))
            a('v_fma_f32 v%d, v%d, v%d, v%d' % (x, x + 18, x + 19, x + 17))
            for jj in range(1, 4): a('v_add_f32 v%d, v%d, v%d' % (x + 2 * jj, x + 2 * jj - 2, x + 19))
        for jj in range(4): a('v_add_f32 v%d, %s, v%d' % (x + 2 * jj + 1, lit(-0.25 * sgn), x + 2 * jj))
        cos_pairs(a, dst, [x + i for i in range(8)])
        a('v_cmp_lt_u32 vcc, 1, v%d' % vq)
        for k in range(4): a('v_cndmask_b32_e64 v%d, v%d, 0, vcc' % (dst + k, dst + k))
    def addresses(self, a, vn, vq):
        x = self.d1
        a('''v_lshrrev_b32 v%d, 2, v%d
v_lshl_add_u32 v%d, v%d, 3, v%d
v_mul_u32_u24 v%d, 48, v%d
v_and_b32 v%d, 3, v0
v_lshl_add_u32 v%d, v%d, 3, v%d
s_mul_i32 s46, s%d, %d
s_add_u32 s46, s46, %d
v_add_u32 v%d, s46, v%d''' % (x, vn, x, vq, x, x, x, x + 1, x, x + 1, x, S_WV, 2 * self.RP, self.XR, self.xa, x))
        a('s_lshl_b32 s46, s%d, 3\ns_add_u32 s46, s46, %d' % (S_WV, self.XL))
        for blk in range(3):
            for rr in range(2):
                d = self.xlw + 2 * blk + rr
                a('''v_lshl_add_u32 v%d, v%d, 1, %d
v_mul_u32_u24 v%d, 24, v%d
v_add_u32 v%d, v%d, v%d
v_sub_u32 v%d, 576, v%d
v_cmp_lt_u32 vcc, 288, v%d
v_cndmask_b32 v%d, v%d, v%d, vcc''' % (x, vq, 8 * blk + rr, x, x, x, x, vn, x + 1, x, x, x + 2, x, x + 1))
                if blk == 1:
                    a('v_mov_b32 v%d, 0x80000000\nv_cndmask_b32_e64 v%d, 0, v%d, vcc' % (x + 3, self.msk + rr, x + 3))
                a('''v_cmp_lt_u32 s[46:47], 12, v%d
v_add_u32 v%d, -1, v%d
v_cmp_lt_u32 s[48:49], 10, v%d
s_and_b64 s[48:49], s[48:49], vcc
s_or_b64 s[48:49], s[48:49], s[46:47]
v_mov_b32 v%d, 300
v_cndmask_b32_e64 v%d, v%d, v%d, s[48:49]
s_lshl_b32 s46, s%d, 3
s_add_u32 s46, s46, %d
v_lshlrev_b32 v%d, 5, v%d
v_add_u32 v%d, s46, v%d''' % (vn, x + 3, vn, x + 3, x + 3, x + 2, x + 2, x + 3, S_WV, self.XL, x + 2, x + 2, d, x + 2))
        a('''s_lshl_b32 s46, s%d, 9
s_add_u32 s46, s46, %d
v_and_b32 v%d, 1, v%d
v_lshlrev_b32 v%d, 4, v%d
v_lshl_add_u32 v%d, v%d, 5, v%d
v_add_u32 v%d, s46, v%d
v_lshlrev_b32 v%d, 2, v0
s_mul_i32 s46, s%d, %d
s_add_u32 s46, s46, %d
v_add_u32 v%d, s46, v%d''' % (S_WV, self.XL, x, vq, x, x, x, vn, x, self.xlr, x, x, S_WV, 2 * self.RP, self.XR, self.gx, x))
        a('v_mul_u32_u24 v%d, %d, v%d' % (x + 3, 2 * 25 * 128, vq))
        for i in range(5):
            a('s_lshl_b32 s46, s%d, 4\ns_add_u32 s46, s46, %d\nv_add_u32 v%d, s46, v%d' % (S_WV, 64 * i, x, vn))
            a('v_mul_u32_u24 v%d, 5462, v%d\nv_lshrrev_b32 v%d, 16, v%d' % (x + 1, x, x + 1, x + 1))
            a('v_mul_u32_u24 v%d, 12, v%d\nv_sub_u32 v%d, v%d, v%d' % (x + 2, x + 1, x + 2, x, x + 2))
            a('v_lshlrev_b32 v%d, 7, v%d\nv_lshl_add_u32 v%d, v%d, 3, v%d' % (x + 1, x + 1, x + 2, x + 2, x + 1))
            a('v_add_u32 v%d, v%d, v%d\nv_add_u32 v%d, %d, v%d' % (x + 2, x + 2, x + 3, self.uo + i, self.lds, x + 2))
            if i == 4:
                a('v_mov_b32 v%d, %d\nv_cmp_gt_u32 vcc, 300, v%d\nv_cndmask_b32 v%d, v%d, v%d, vcc' % (x + 1, self.lds + 200 * 128, x, self.uo + i, x + 1, self.uo + i))
        a('''v_mul_u32_u24 v%d, 1156, v%d
v_lshl_add_u32 v%d, v%d, 1, v%d
s_lshl_b32 s46, s%d, 5
s_add_u32 s46, s46, %d
v_add_u32 v%d, s46, v%d''' % (x, vq, x, vn, x, S_WV, self.WL, self.wa, x))
    def compute(self, a, stflags='sc1', gate_to=None):
        t = self.t
        a.wait_vm('a1x')
        gate = gate_to is not None
        for e in range(2 if gate else 0):
            for i in range(5): a('ds_read_b32 v%d, v%d offset:%d' % (self.d2 + 5 * e + i, self.gx, e * self.RP + 256 * i))
        for e in range(2):
            for mb in range(2):
                r = self.af + 8 * e + 4 * mb
                a('ds_read_b64_tr_b16 v[%d:%d], v%d offset:%d' % (r, r + 1, self.xa, e * self.RP + 32 * mb))
                a('ds_read_b64_tr_b16 v[%d:%d], v%d offset:%d' % (r + 2, r + 3, self.xa, e * self.RP + 32 * mb + 192))
        for e in range(2):
            for mb in range(2):
                r = self.af + 8 * e + 4 * mb
                for c, B in enumerate((self.b1c, self.b1s)):
                    d = self.d1 + 16 * e + 8 * c + 4 * mb
                    a('%s v[%d:%d], v[%d:%d], v[%d:%d], 0' % (MF, d, d + 3, r, r + 3, B, B + 3))
        for e in range(2 if gate else 0):
            a('v_mov_b32 v%d, 0' % (t + e))
            for i in range(5): a('v_dot2_f32_bf16 v%d, v%d, v%d, v%d' % (t + e, self.d2 + 5 * e + i, self.gw + i, t + e))
        for e in range(2):
            for mb in range(2):
                for r in range(4):
                    re = self.d1 + 16 * e + 4 * mb + r; im = re + 8
                    c, s = self.twc + 4 * mb + r, self.tws + 4 * mb + r
                    a('v_mul_f32 v%d, v%d, v%d' % (t + 2, im, s))
                    a('v_mul_f32 v%d, v%d, v%d' % (im, im, c))
                    a('v_fma_f32 v%d, v%d, v%d, v%d' % (im, re, s, im))
                    a('v_fma_f32 v%d, v%d, v%d, -v%d' % (re, re, c, t + 2))
            for c in range(2):
                for k in range(4):
                    src = self.d1 + 16 * e + 8 * c + 2 * k
                    a('v_cvt_pk_bf16_f32 v%d, v%d, v%d' % (self.b2 + 8 * e + 4 * c + k, src, src + 1))
        for e in range(2):
            for blk in range(3):
                d = self.d1 + 16 * e + 4 * blk
                br, bi = self.b2 + 8 * e, self.b2 + 8 * e + 4
                a('%s v[%d:%d], v[%d:%d], v[%d:%d], 0' % (MF, d, d + 3, self.a2r + 4 * blk, self.a2r + 4 * blk + 3, br, br + 3))
                a('%s v[%d:%d], v[%d:%d], v[%d:%d], v[%d:%d]' % (MF, d, d + 3, self.a2i + 4 * blk, self.a2i + 4 * blk + 3, bi, bi + 3, d, d + 3))
        if gate:
            gate_finish(a, t, self.s_rl)
            gate_to(a, t)
        for e in range(2):
            for blk in range(3):
                for rr in range(2):
                    src = self.d1 + 16 * e + 4 * blk + 2 * rr
                    p = self.b2 + (blk * 2 + rr)
                    a('v_cvt_pk_bf16_f32 v%d, v%d, v%d' % (p, src, src + 1))
                    if blk == 1: a('v_xor_b32 v%d, v%d, v%d' % (p, self.msk + rr, p))
                    if blk == 2: a('v_xor_b32 v%d, 0x80000000, v%d' % (p, p))
                    a('ds_write_b32 v%d, v%d offset:%d' % (self.xlw + 2 * blk + rr, p, 4 * e), tag='xl')
        a.wait_lgkm('xl')
        a.wait_vm('a1w')
        a('s_barrier')
        for i in range(5):
            a('ds_read_b128 v[%d:%d], v%d offset:%d' % (self.d2 + 4 * i, self.d2 + 4 * i + 3, self.xlr, i * 4 * 512))
        for i in range(5):
            for rr in range(2):
                for k in range(2):
                    a('ds_read_u16 v%d, v%d offset:%d' % (self.wx[4 * i + 2 * rr + k], self.wa, k * 6144 + rr * 578 + i * 128))
        for i in range(5):
            d = self.d1 + 4 * i
            a('%s v[%d:%d], v[%d:%d], v[%d:%d], 0' % (MF, d, d + 3, self.r8, self.r8 + 3, self.d2 + 4 * i, self.d2 + 4 * i + 3))
        for i in range(5):
            d = self.d1 + 4 * i; p = self.af + 4 * (i % 4) if i < 4 else self.b2
            for rr in range(2):
                w0, w1 = self.wx[4 * i + 2 * rr], self.wx[4 * i + 2 * rr + 1]
                a('v_cvt_pk_bf16_f32 v%d, v%d, v%d' % (p + 2 * rr, d + 2 * rr, d + 2 * rr + 1))
                a('v_lshl_or_b32 v%d, v%d, 16, v%d' % (p + 2 * rr + 1, w1, w0))
        a('s_barrier')
        for i in range(5):
            p = self.af + 4 * (i % 4) if i < 4 else self.b2
            for rr in range(2):
                a('ds_write_b64 v%d, v[%d:%d] offset:%d' % (self.uo + i, p + 2 * rr, p + 2 * rr + 1, rr * 25 * 128), tag='usg')
        t = self.t
        a('''v_lshrrev_b32 v%d, 3, v0
v_and_b32 v%d, 7, v0
v_lshlrev_b32 v%d, 4, v%d
v_lshl_add_u32 v%d, v%d, 15, v%d
s_mul_i32 s46, s%d, 7168
s_add_u32 s46, s46, %d
v_lshlrev_b32 v%d, 4, v0
v_add_u32 v%d, s46, v%d
s_and_b32 s46, s%d, 15
s_lshl_b32 s46, s46, 4
s_lshr_b32 s47, s%d, 4
s_add_u32 s46, s46, s47
s_lshl_b32 s46, s46, 7
s_mul_i32 s47, s%d, %d
s_add_u32 s46, s46, s47
s_add_u32 s46, s46, %d''' % (t, t + 1, t + 1, t + 1, t, t, t + 1, S_WV, self.lds, t + 1, t + 1, t + 1, self.sw, self.sw, S_WV, 7 * 8 * U_BLK, U_BASE))
        a.wait_lgkm('usg')
        a('s_barrier')
        for i in range(7):
            a('ds_read_b128 v[%d:%d], v%d offset:%d' % (self.d1 + 4 * i, self.d1 + 4 * i + 3, t + 1, i * 1024))
        for i in range(7):
            a('s_add_u32 s47, s46, %d' % (i * 8 * U_BLK))
            if i >= 4: a('s_cmp_eq_u32 s%d, 3\ns_cselect_b32 s47, 0x7ff00000, s47' % S_WV)
            a('buffer_store_dwordx4 v[%d:%d], v%d, s[%d:%d], s47 offen %s' % (self.d1 + 4 * i, self.d1 + 4 * i + 3, t, S_WS, S_WS + 3, stflags), tag='ust')

class A2:
    S_WR = 64
    S_WI = 68
    def __init__(self, ubase, base, lds, sb, wbase=None, tbase=None):
        self.lds, self.sb = lds, sb
        self.PU = 1040
        self.LU, self.LW, self.LT = lds, lds + 12 * self.PU, lds + 24 * self.PU
        R = Regs(ubase)
        self.u = R.get(32, 4)
        self.wraw = R.get(16, 4) if wbase is None else wbase
        self.uend = R.n
        self.shr = self.wraw + 7
        R = Regs(base)
        self.fre, self.fim = R.get(4, 4), R.get(4, 4)
        self.tc, self.ts, self.tc2, self.ts2 = R.get(4, 4), R.get(4, 4), R.get(4), R.get(4)
        self.rd, self.tw, self.ow, self.wt, self.sh = R.get(), R.get(), R.get(), R.get(), R.get()
        self.ord = R.get(3)
        self.af = R.get(12, 4)
        self.wf = R.get(12, 4)
        self.dr = R.get(12, 4); self.di = R.get(12, 4)
        self.bf = R.get(12, 4)
        self.t = R.get(24, 4) if tbase is None else tbase
        self.end = R.n
    def gather_addr(self, a, t):
        a('''s_lshl_b32 s46, s%d, 2
v_lshrrev_b32 v%d, 4, v0
v_add_u32 v%d, s46, v%d
v_and_b32 v%d, 15, v0
v_lshl_add_u32 v%d, v%d, 4, v%d
s_and_b32 s46, s%d, 7
s_lshr_b32 s47, s%d, 3
v_mul_u32_u24 v%d, %d, v%d
s_mul_i32 s48, s46, %d
s_mul_i32 s49, s47, 48
s_add_u32 s48, s48, s49
s_add_u32 s48, s48, %d
v_lshl_add_u32 v%d, v%d, 3, s46
v_mul_u32_u24 v%d, 289, v%d
s_mul_i32 s49, s47, 12
v_add_u32 v%d, s49, v%d
v_lshlrev_b32 v%d, 1, v%d''' % (S_WV, t + 2, t + 2, t + 2, t + 3, t + 2, t + 3, t + 2,
                                self.sb, self.sb, t, U_W, t + 2, U_R, U_BASE,
                                t + 1, t + 2, t + 1, t + 1, t + 1, t + 1, t + 1, t + 1))
    def w_addr_ops(self, dst, t):
        return ('''s_lshl_b32 s44, s%d, 2
v_lshrrev_b32 v%d, 4, v0
v_add_u32 v%d, s44, v%d
v_and_b32 v%d, 15, v0
v_lshl_add_u32 v%d, v%d, 4, v%d
s_and_b32 s44, s%d, 7
s_lshr_b32 s45, s%d, 3
s_mul_i32 s45, s45, 12
v_lshl_add_u32 v%d, v%d, 3, s44
v_mul_u32_u24 v%d, 289, v%d
v_add_u32 v%d, s45, v%d
v_lshlrev_b32 v%d, 1, v%d''' % (S_WV, t, t, t, t + 1, t, t + 1, t, self.sb, self.sb, t, t, t, t, t, t, dst, t)).split('\n')
    def w_dma_ops(self, addr, raw):
        L = []
        for k, srd in enumerate((self.S_WR, self.S_WI)):
            for h in range(2):
                L.append([('S', 's_lshl_b32 s44, s%d, 10' % S_WV),
                          ('S', 's_add_u32 m0, s44, %d' % (raw + (2 * k + h) * 4096 - 16 * h)),
                          ('M', ('buffer_load_dwordx4 v%d, s[%d:%d], 0 offen offset:%d lds' % (addr, srd, srd + 3, 16 * h), 'a2w'))])
        return L
    def w_from_lds(self, a, raw, byteoff):
        t = self.t
        a('s_lshl_b32 s46, s%d, 10\ns_add_u32 s46, s46, %d\nv_lshlrev_b32 v%d, 4, v0\nv_add_u32 v%d, s46, v%d' % (S_WV, raw, t, t, t))
        for k in range(2):
            for h in range(2):
                r = self.wraw + 8 * k + 4 * h
                a('ds_read_b128 v[%d:%d], v%d offset:%d' % (r, r + 3, t, (2 * k + h) * 4096))
        a('v_and_b32 v%d, 2, v%d\nv_lshlrev_b32 v%d, 3, v%d' % (self.shr, byteoff, self.shr, self.shr))
    def u_base_ops(self, s_off):
        return ['s_and_b32 s44, s%d, 7' % self.sb, 's_mul_i32 s44, s44, 25', 's_lshr_b32 s45, s%d, 3' % self.sb, 's_min_u32 s45, s45, 24', 's_add_u32 s44, s44, s45',
                's_mul_i32 s44, s44, %d' % U_BLK, 's_lshl_b32 s45, s%d, 13' % S_WV, 's_add_u32 s44, s44, s45', 's_add_u32 s%d, s44, %d' % (s_off, U_BASE)]
    def u_load_ops(self, s_off, ldflags='sc1'):
        L = []
        for k in range(8):
            L.append(['s_add_u32 s45, s%d, %d' % (s_off, 1024 * k),
                      ('buffer_load_dwordx4 v[%d:%d], v1, s[%d:%d], s45 offen %s' % (self.u + 4 * k, self.u + 4 * k + 3, S_WS, S_WS + 3, ldflags), 'a2u')])
        return L
    def loads_w(self, a, t):
        a('v_and_b32 v%d, -4, v%d' % (t + 2, t + 1))
        for k, srd in enumerate((self.S_WR, self.S_WI)):
            r = self.wraw + 8 * k
            a('buffer_load_dwordx4 v[%d:%d], v%d, s[%d:%d], 0 offen' % (r, r + 3, t + 2, srd, srd + 3), tag='a2w')
            a('buffer_load_dwordx3 v[%d:%d], v%d, s[%d:%d], 0 offen offset:16' % (r + 4, r + 6, t + 2, srd, srd + 3), tag='a2w')
        a('v_and_b32 v%d, 2, v%d\nv_lshlrev_b32 v%d, 3, v%d' % (self.wraw + 7, t + 1, self.wraw + 7, self.wraw + 7))
    def loads_u(self, a, t, ldflags='sc1'):
        for k in range(3):
            a('buffer_load_dwordx4 v[%d:%d], v%d, s[%d:%d], s48 offen offset:%d %s' % (self.u + 4 * k, self.u + 4 * k + 3, t, S_WS, S_WS + 3, 16 * k, ldflags), tag='a2u')
    def float_consts(self, a, t, fre, fim, tc, ts):
        vn, vq, fn, fq = t, t + 1, t + 2, t + 3
        x = t + 4
        lane_floats(a, vn, vq, fn, fq)
        a('v_mul_f32 v%d, %s, v%d' % (x + 16, lit(1 / 16.), fn))
        a('v_mul_f32 v%d, 4.0, v%d' % (x + 17, fq))
        a('v_mul_f32 v%d, v%d, v%d' % (x, x + 16, x + 17))
        for j in range(1, 4): a('v_add_f32 v%d, v%d, v%d' % (x + j, x + j - 1, x + 16))
        for j in range(4): a('v_sin_f32 v%d, v%d' % (x + 4 + j, x + j))
        for j in range(4): a('v_cos_f32 v%d, v%d' % (x + j, x + j))
        for j in range(4):
            a('v_cvt_pk_bf16_f32 v%d, v%d, v%d' % (fre + j, x + j, x + 4 + j))
            a('v_cvt_pk_bf16_f32 v%d, -v%d, v%d' % (fim + j, x + 4 + j, x + j))
        a('v_mul_f32 v%d, %s, v%d' % (x + 16, lit(-1 / 256.), fn))
        a('v_mul_f32 v%d, v%d, v%d' % (x + 8, x + 16, x + 17))
        for j in range(1, 4): a('v_add_f32 v%d, v%d, v%d' % (x + 8 + j, x + 8 + j - 1, x + 16))
        for j in range(4): a('v_sin_f32 v%d, v%d' % (ts + j, x + 8 + j))
        for j in range(4): a('v_cos_f32 v%d, v%d' % (tc + j, x + 8 + j))
    def scaled_twiddles(self, a):
        sc = 1.0 / (2048.0 * 576.0)
        for j in range(4):
            a('v_mul_f32 v%d, %s, v%d' % (self.ts2 + j, lit(sc), self.ts + j))
            a('v_mul_f32 v%d, %s, v%d' % (self.tc2 + j, lit(sc), self.tc + j))
    def consts(self, a):
        self.float_consts(a, self.t, self.fre, self.fim, self.tc, self.ts)
        self.scaled_twiddles(a)
        self.addresses(a)
    def addresses(self, a):
        t = self.t
        vn, vq = t, t + 1
        x = t + 4
        a('v_and_b32 v%d, 15, v0\nv_lshrrev_b32 v%d, 4, v0' % (vn, vq))
        PU = self.PU
        a('''v_lshlrev_b32 v%d, 6, v%d
v_lshl_add_u32 v%d, v%d, 4, v%d
s_mul_i32 s46, s%d, %d
s_add_u32 s47, s46, %d
v_add_u32 v%d, s47, v%d
s_lshl_b32 s45, s%d, 10
s_add_u32 s45, s45, %d
v_add_u32 v%d, s45, v%d
v_lshlrev_b32 v%d, 8, v%d
v_lshl_add_u32 v%d, v%d, 2, v%d
v_add_u32 v%d, s45, v%d
v_add_u32 v%d, s47, v%d''' % (x, vn, x, vq, x, S_WV, PU, self.LU, self.rd, x, S_WV, self.LT, self.sh, x,
                              x + 1, vq, x + 1, vn, x + 1, self.tw, x + 1, self.ow, x + 1))
        a('''v_and_b32 v%d, 7, v0
v_mul_u32_u24 v%d, %d, v%d
v_lshrrev_b32 v%d, 3, v0
v_lshl_add_u32 v%d, v%d, 2, v%d
s_lshl_b32 s46, s%d, 8
s_add_u32 s46, s46, %d
v_add_u32 v%d, s46, v%d''' % (x, x, 2 * PU, x, x + 1, x, x + 1, x, S_WV, self.LU, self.wt, x))
        for i in range(3):
            a('''s_mul_i32 s46, s%d, 192
s_add_u32 s46, s46, %d
v_add_u32 v%d, s46, v0
v_mul_u32_u24 v%d, 21846, v%d
v_lshrrev_b32 v%d, 16, v%d
v_mul_u32_u24 v%d, 3, v%d
v_sub_u32 v%d, v%d, v%d
v_mul_u32_u24 v%d, %d, v%d
v_lshl_add_u32 v%d, v%d, 2, v%d
v_add_u32 v%d, %d, v%d''' % (S_WV, 64 * i, x, x + 1, x, x + 1, x + 1, x + 2, x + 1, x + 2, x, x + 2, x + 2, 4 * PU, x + 2,
                             x + 2, x + 1, x + 2, self.ord + i, self.LU, x + 2))
    def stage_in(self, a):
        PU = self.PU
        a('s_mov_b32 s46, 0x3f3f3f3f\ns_mov_b32 s47, 0x3f3f3f3f')
        a.wait_vm('a2u')
        a('s_mov_b64 exec, s[46:47]')
        for k in range(8):
            r = self.u + 4 * k
            for e in range(4):
                a('ds_write_b32 v%d, v%d offset:%d' % (self.wt, r + e, 32 * k + (e >> 1) * PU + (e & 1) * 12 * PU), tag='a2s')
        a('s_mov_b64 exec, -1')
        a.wait_lgkm('a2s')
        a('s_barrier')
    def cmul(self, a, re, im, c, s, tmp):
        a('v_mul_f32 v%d, v%d, v%d' % (tmp, im, s))
        a('v_mul_f32 v%d, v%d, v%d' % (im, im, c))
        a('v_fma_f32 v%d, v%d, v%d, v%d' % (im, re, s, im))
        a('v_fma_f32 v%d, v%d, v%d, -v%d' % (re, re, c, tmp))
    def compute(self, a, before_bar=None, after_bar=None):
        t = self.t
        U3 = range(3)
        off = lambda i: i * 4 * self.PU
        for i in U3:
            a('ds_read_b128 v[%d:%d], v%d offset:%d' % (self.af + 4 * i, self.af + 4 * i + 3, self.rd, off(i)))
        for i in U3:
            a('ds_read_b128 v[%d:%d], v%d offset:%d' % (self.wf + 4 * i, self.wf + 4 * i + 3, self.rd, 12 * self.PU + off(i)))
        def mm(dst, A, B): a('%s v[%d:%d], v[%d:%d], v[%d:%d], 0' % (MF, dst, dst + 3, A, A + 3, B, B + 3))
        for i in U3:
            mm(self.dr + 4 * i, self.af + 4 * i, self.fre); mm(self.di + 4 * i, self.af + 4 * i, self.fim)
        for i in U3:
            for r in range(4):
                self.cmul(a, self.dr + 4 * i + r, self.di + 4 * i + r, self.tc + r, self.ts + r, t + r)
            for r in range(4): a('v_cvt_pk_bf16_f32 v%d, v%d, v%d' % (self.bf + 4 * i + r, self.dr + 4 * i + r, self.di + 4 * i + r))
        for i in U3:
            mm(self.dr + 4 * i, self.fre, self.bf + 4 * i); mm(self.di + 4 * i, self.fim, self.bf + 4 * i)
        for i in U3:
            for r in range(4):
                w = self.wf + 4 * i + r; xr, xi = self.dr + 4 * i + r, self.di + 4 * i + r
                wr, wi = t + 2 * r, t + 2 * r + 1
                a('v_lshlrev_b32 v%d, 16, v%d\nv_and_b32 v%d, 0xffff0000, v%d' % (wr, w, wi, w))
                self.cmul(a, xr, xi, wr, wi, t + 8 + r)
            for r in range(4): a('v_cvt_pk_bf16_f32 v%d, v%d, -v%d' % (self.bf + 4 * i + r, self.dr + 4 * i + r, self.di + 4 * i + r))
        for i in U3:
            mm(self.dr + 4 * i, self.fre, self.bf + 4 * i); mm(self.di + 4 * i, self.fim, self.bf + 4 * i)
        for i in U3:
            for r in range(4):
                self.cmul(a, self.dr + 4 * i + r, self.di + 4 * i + r, self.tc2 + r, self.ts2 + r, t + r)
            for r in range(4):
                a('v_cvt_pk_bf16_f32 v%d, v%d, v%d' % (self.bf + 4 * i + r, self.dr + 4 * i + r, self.di + 4 * i + r))
                a('ds_write_b32 v%d, v%d offset:%d' % (self.ow, self.bf + 4 * i + r, 12 * self.PU + off(i) + r * 64), tag='a2t')
        a.wait_lgkm('a2t')
        for i in U3:
            a('ds_read_b128 v[%d:%d], v%d offset:%d' % (self.af + 4 * i, self.af + 4 * i + 3, self.rd, 12 * self.PU + off(i)))
        for i in U3:
            mm(self.dr + 4 * i, self.af + 4 * i, self.fre); mm(self.di + 4 * i, self.af + 4 * i, self.fim)
        for i in U3:
            for r in range(4):
                a('v_cvt_pk_bf16_f32 v%d, v%d, -v%d' % (self.bf + 4 * i + r, self.dr + 4 * i + r, self.di + 4 * i + r))
                a('ds_write_b32 v%d, v%d offset:%d' % (self.ow, self.bf + 4 * i + r, off(i) + r * 64), tag='a2o')
        a.wait_lgkm('a2o')
        if before_bar: before_bar(a)
        a('s_barrier')
        if after_bar: after_bar(a)
    def rdT(self, a):
        return self.sh
    def addr_T(self, a):
        pass
    def stage_out(self, a, stflags='sc1', vlane16=None):
        t = self.t
        a('''s_and_b32 s46, s%d, 7
s_mul_i32 s46, s46, 25
s_lshr_b32 s47, s%d, 3
s_add_u32 s46, s46, s47
s_mul_i32 s46, s46, %d
s_mul_i32 s47, s%d, 3072
s_add_u32 s46, s46, s47
s_add_u32 s46, s46, %d
s_cmp_lt_u32 s%d, 200
s_cselect_b32 s46, s46, 0x7ff00000''' % (self.sb, self.sb, V_BLK, S_WV, V_BASE, self.sb))
        if vlane16 is None:
            vlane16 = t + 12
            a('v_lshlrev_b32 v%d, 4, v0' % vlane16)
        for i in range(3):
            for e in range(4): a('ds_read_b32 v%d, v%d offset:%d' % (t + 4 * i + e, self.ord + i, e * self.PU))
        for i in range(3):
            a('buffer_store_dwordx4 v[%d:%d], v%d, s[%d:%d], s46 offen offset:%d %s' % (t + 4 * i, t + 4 * i + 3, vlane16, S_WS, S_WS + 3, i * 1024, stflags), tag='vst')

class A3:
    S_OUT = 64
    PITCH = 1536
    def __init__(self, base, lds, sw, gate_lds, vreg=None, abase=None, tbase=None):
        self.lds, self.sw, self.gl = lds, sw, gate_lds
        self.VL = lds
        self.YR = lds + 10240
        self.YI = self.YR + 8 * self.PITCH
        self.AO = self.YI + 8 * self.PITCH
        R = Regs(base)
        self.v = R.get(12, 4) if vreg is None else vreg
        self.p = R.get(48, 4)
        self.r8 = R.get(4, 4)
        self.cs, self.sn, self.ns = R.get(8, 4), R.get(8, 4), R.get(8, 4)
        self.twc, self.tws = R.get(8, 4), R.get(8, 4)
        self.ab = R.get(8, 4)
        self.d = R.get(32, 4)
        self.f = R.get(16, 4)
        if abase is not None: self.end0 = R.n; R = Regs(abase)
        self.vw, self.vr, self.yd, self.ym, self.imk, self.ya = R.get(), R.get(), R.get(5), R.get(5), R.get(5), R.get()
        self.aow = R.get(4)
        self.item = R.get(3); self.oaddr = R.get(3); self.aor = R.get(3); self.gad = R.get(3)
        self.t = R.get(24, 4) if tbase is None else tbase
        self.end = R.n
        self.tt = self.t
        self.xx = self.d
    def v_addr_ops(self, t):
        return ('''s_lshl_b32 s44, s%d, 6
v_add_u32 v%d, s44, v0
v_and_b32 v%d, 7, v%d
v_lshrrev_b32 v%d, 3, v%d
v_mul_u32_u24 v%d, 25, v%d
v_add_u32 v%d, v%d, v%d
v_mul_u32_u24 v%d, %d, v%d
s_and_b32 s45, s%d, 15
s_lshl_b32 s45, s45, 4
s_lshr_b32 s44, s%d, 4
s_add_u32 s45, s45, s44
s_mul_i32 s45, s45, 48
s_add_u32 s45, s45, %d
v_cmp_gt_u32 vcc, 200, v%d
v_mov_b32 v%d, 0x7ffffff0
v_cndmask_b32 v%d, v%d, v%d, vcc''' % (S_WV, t, t + 1, t, t + 2, t, t + 3, t + 1, t + 3, t + 3, t + 2, t + 3, V_BLK, t + 3,
                                      self.sw, self.sw, V_BASE, t, t + 4, t + 3, t + 4, t + 3)).split('\n')
    def v_load_ops(self, t, ldflags='sc1'):
        return [('buffer_load_dwordx4 v[%d:%d], v%d, s[%d:%d], s45 offen offset:%d %s' % (self.v + 4 * k, self.v + 4 * k + 3, t + 3, S_WS, S_WS + 3, 16 * k, ldflags), 'a3v') for k in range(3)]
    def v_lds_addr(self, a):
        t = self.tt
        a('''s_lshl_b32 s46, s%d, 6
v_add_u32 v%d, s46, v0
v_and_b32 v%d, 7, v%d
v_lshrrev_b32 v%d, 3, v%d
v_mul_u32_u24 v%d, 384, v%d
v_lshl_add_u32 v%d, v%d, 2, v%d
v_add_u32 v%d, %d, v%d
v_mov_b32 v%d, %d
v_cmp_gt_u32 vcc, 200, v%d
v_cndmask_b32 v%d, v%d, v%d, vcc''' % (S_WV, t, t + 1, t, t + 2, t, t + 4, t + 2, t + 4, t + 1, t + 4, t + 4, self.VL, t + 4, t + 5, self.VL + 304 * 32, t, self.vw, t + 5, t + 4))
    def v_loads(self, a, ldflags='sc1'):
        t = self.t
        for o in self.v_addr_ops(t): a(o)
        for o, tg in self.v_load_ops(t, ldflags): a(o, tag=tg)
        self.v_lds_addr(a)
    def item_addr(self, a):
        t = self.tt
        for i in range(3):
            a('''s_lshl_b32 s46, s%d, 6
s_add_u32 s46, s46, %d
v_add_u32 v%d, s46, v0''' % (S_WV, 256 * i, t))
            a('v_mul_u32_u24 v%d, 911, v%d\nv_lshrrev_b32 v%d, 16, v%d' % (t + 1, t, t + 1, t + 1))
            a('v_mul_u32_u24 v%d, 72, v%d\nv_sub_u32 v%d, v%d, v%d' % (t + 2, t + 1, t + 2, t, t + 2))
            a('v_mul_u32_u24 v%d, 3641, v%d\nv_lshrrev_b32 v%d, 16, v%d' % (t + 3, t + 2, t + 3, t + 3))
            a('v_mul_u32_u24 v%d, 18, v%d\nv_sub_u32 v%d, v%d, v%d' % (t + 4, t + 3, t + 4, t + 2, t + 4))
            a('v_lshlrev_b32 v%d, 8, v%d\nv_add_u32 v%d, s%d, v%d' % (t + 5, t + 1, t + 5, self.sw, t + 5))
            a('s_lshr_b32 s47, s%d, 4\ns_lshl_b32 s47, s47, 7\ns_and_b32 s48, s%d, 15\ns_add_u32 s47, s47, s48' % (self.sw, self.sw))
            a('v_lshlrev_b32 v%d, 4, v%d\nv_add_u32 v%d, s47, v%d' % (t + 6, t + 1, t + 6, t + 6))
            if getattr(self, 'split', False):
                a('v_lshl_add_u32 v%d, v%d, 11, v%d' % (t + 7, t + 3, t + 6))
                a('v_lshlrev_b32 v%d, 7, v%d' % (t + 8, t + 7))
                a('v_lshrrev_b32 v%d, 3, v%d\ns_mov_b32 s47, %d\nv_mul_lo_u32 v%d, s47, v%d\nv_add_u32 v%d, v%d, v%d' % (t + 6, t + 4, P_PART, t + 6, t + 6, t + 8, t + 6, t + 8))
                a('v_and_b32 v%d, 7, v%d\nv_lshl_add_u32 v%d, v%d, 4, v%d' % (t + 6, t + 4, t + 8, t + 6, t + 8))
                a('v_lshlrev_b32 v%d, 5, v%d\nv_and_b32 v%d, 1, v%d\nv_lshl_add_u32 v%d, v%d, 4, v%d\nv_add_u32 v%d, %d, v%d' %
                  (t + 7, t + 7, t + 6, t + 4, t + 7, t + 6, t + 7, t + 7, 2 * P_PART, t + 7))
                a('v_cmp_lt_u32 vcc, 15, v%d\nv_cndmask_b32 v%d, v%d, v%d, vcc' % (t + 4, t + 6, t + 8, t + 7))
            else:
                a('v_mul_u32_u24 v%d, 288, v%d\nv_lshl_add_u32 v%d, v%d, 4, v%d' % (t + 6, t + 6, t + 6, t + 4, t + 6))
                a('s_mov_b32 s47, %d\nv_mul_lo_u32 v%d, s47, v%d\nv_add_u32 v%d, v%d, v%d' % (P_TILE, t + 7, t + 3, t + 6, t + 6, t + 7))
            a('v_mul_u32_u24 v%d, 1152, v%d\nv_lshl_add_u32 v%d, v%d, 4, v%d' % (t + 7, t + 5, t + 7, t + 2, t + 7))
            a('v_mul_u32_u24 v%d, 2304, v%d\nv_lshl_add_u32 v%d, v%d, 5, v%d\nv_add_u32 v%d, %d, v%d' % (t + 8, t + 1, t + 8, t + 2, t + 8, self.aor + i, self.AO, t + 8))
            a('v_lshlrev_b32 v%d, 2, v%d\nv_add_u32 v%d, %d, v%d' % (t + 8, t + 1, self.gad + i, self.gl, t + 8))
            if i == 2:
                a('''v_cmp_gt_u32 vcc, 576, v%d
v_mov_b32 v%d, 0x7ffffff0
v_cndmask_b32 v%d, v%d, v%d, vcc
v_cndmask_b32 v%d, v%d, v%d, vcc
v_mov_b32 v%d, %d
v_cndmask_b32 v%d, v%d, v%d, vcc
v_mov_b32 v%d, %d
v_cndmask_b32 v%d, v%d, v%d, vcc''' % (t, t + 8, t + 6, t + 8, t + 6, t + 7, t + 8, t + 7,
                                       t + 8, self.AO, self.aor + i, t + 8, self.aor + i, t + 8, self.gl, self.gad + i, t + 8, self.gad + i))
            a('v_mov_b32 v%d, v%d\nv_mov_b32 v%d, v%d' % (self.item + i, t + 6, self.oaddr + i, t + 7))
    def p_loads(self, a, ldflags='sc1'):
        for i in range(3):
            for ks in range(4):
                r = self.p + 16 * i + 4 * ks
                a('s_mov_b32 s46, %d' % (P_BASE + ks * (P_KS if getattr(self, 'split', False) else 4 * P_TILE)))
                a('buffer_load_dwordx4 v[%d:%d], v%d, s[%d:%d], s46 offen %s' % (r, r + 3, self.item + i, S_WS, S_WS + 3, ldflags), tag='a3p')
    def consts(self, a):
        self.float_consts(a, self.t, self.d, self.r8, self.cs, self.sn, self.twc, self.tws, self.ab)
        self.negsin(a)
        self.addresses(a)
    def negsin(self, a):
        for k in range(8): a('v_xor_b32 v%d, 0x80008000, v%d' % (self.ns + k, self.sn + k))
    def float_consts(self, a, t, x, r8, cs, sn, twc, tws, ab, done=None, skip0=False):
        vn, vq, fn, fq = t, t + 1, t + 2, t + 3
        done = done or (lambda a_, n: None)
        lane_floats(a, vn, vq, fn, fq)
        helper = A1.__new__(A1); helper.sw = self.sw
        helper.r8_consts(a, r8, -1, x, vn, vq, fq)
        done(a, 'r8')
        wide = done is None or getattr(self, 'wide', True)
        a('v_mul_f32 v%d, %s, v%d' % (x + 17, lit(8.0), fq))
        for nb in range(1 if skip0 else 0, 2):
            a('v_add_f32 v%d, %s, v%d' % (x + 16, lit(16.0 * nb), fn))
            a('v_mul_f32 v%d, %s, v%d' % (x + 16, lit(1 / 24.), x + 16))
            a('v_mul_f32 v%d, v%d, v%d' % (x, x + 16, x + 17))
            for i in range(1, 8): a('v_add_f32 v%d, v%d, v%d' % (x + i, x + i - 1, x + 16))
            for i in range(8): a('v_sin_f32 v%d, v%d' % (x + 8 + i, x + i))
            for i in range(8): a('v_cos_f32 v%d, v%d' % (x + i, x + i))
            a('v_cmp_eq_u32 vcc, 3, v%d' % vq)
            for k in range(4):
                a('v_cvt_pk_bf16_f32 v%d, v%d, v%d' % (cs + (4 * nb if wide else 0) + k, x + 2 * k, x + 2 * k + 1))
                a('v_cvt_pk_bf16_f32 v%d, v%d, v%d' % (sn + (4 * nb if wide else 0) + k, x + 8 + 2 * k, x + 9 + 2 * k))
            for k in range(4):
                a('v_cndmask_b32_e64 v%d, v%d, 0, vcc' % (cs + (4 * nb if wide else 0) + k, cs + (4 * nb if wide else 0) + k))
                a('v_cndmask_b32_e64 v%d, v%d, 0, vcc' % (sn + (4 * nb if wide else 0) + k, sn + (4 * nb if wide else 0) + k))
            done(a, 'cs%d' % nb)
        a('v_mul_f32 v%d, 4.0, v%d' % (x + 17, fq))
        for r in range(4):
            a('''v_lshl_add_u32 v%d, v%d, 2, %d
v_mov_b32 v%d, 2.0
v_cmp_eq_u32 vcc, 0, v%d
v_cndmask_b32_e64 v%d, v%d, 1.0, vcc
v_cmp_eq_u32 vcc, 12, v%d
v_cndmask_b32_e64 v%d, v%d, 1.0, vcc
v_cmp_lt_u32 vcc, 12, v%d
v_cndmask_b32_e64 v%d, v%d, 0, vcc''' % (x + 18, vq, r, x + 20 + r, x + 18, x + 20 + r, x + 20 + r, x + 18, x + 20 + r, x + 20 + r, x + 18, x + 20 + r, x + 20 + r))
        for nb in range(2):
            a('v_add_f32 v%d, %s, v%d' % (x + 16, lit(16.0 * nb), fn))
            a('v_mul_f32 v%d, %s, v%d' % (x + 16, lit(1 / 576.), x + 16))
            a('v_mul_f32 v%d, v%d, v%d' % (x, x + 16, x + 17))
            for r in range(1, 4): a('v_add_f32 v%d, v%d, v%d' % (x + r, x + r - 1, x + 16))
            for r in range(4): a('v_sin_f32 v%d, v%d' % (x + 4 + r, x + r))
            for r in range(4): a('v_cos_f32 v%d, v%d' % (x + r, x + r))
            for r in range(4):
                a('v_mul_f32 v%d, v%d, v%d' % (twc + (4 * nb if wide else 0) + r, x + r, x + 20 + r))
                a('v_mul_f32 v%d, v%d, v%d' % (tws + (4 * nb if wide else 0) + r, x + 4 + r, x + 20 + r))
            done(a, 'tw%d' % nb)
        for mb in range(2):
            a('v_add_f32 v%d, %s, v%d' % (x + 16, lit(16.0 * mb), fn))
            a('v_mul_f32 v%d, %s, v%d' % (x + 16, lit(1 / 24.), x + 16))
            a('v_mul_f32 v%d, v%d, v%d' % (x, x + 16, x + 17))
            for i in range(1, 4): a('v_add_f32 v%d, v%d, v%d' % (x + i, x + i - 1, x + 16))
            for i in range(4): a('v_add_f32 v%d, %s, v%d' % (x + 4 + i, lit(0.25), x + i))
            cos_pairs(a, ab + (4 * mb if wide else 0), [x + i for i in range(8)])
            done(a, 'ab%d' % mb)
    def addresses(self, a):
        t = self.tt; x = self.xx
        vn, vq = t, t + 1
        a('v_and_b32 v%d, 15, v0\nv_lshrrev_b32 v%d, 4, v0' % (vn, vq))
        a('''s_lshl_b32 s46, s%d, 9
s_add_u32 s46, s46, %d
v_and_b32 v%d, 1, v%d
v_lshlrev_b32 v%d, 4, v%d
v_lshl_add_u32 v%d, v%d, 5, v%d
v_add_u32 v%d, s46, v%d''' % (S_WV, self.VL, x, vq, x, x, x, vn, x, self.vr, x))
        a('s_mov_b32 s50, 0xffff')
        for i in range(5):
            k, dm, di, mi, tmp, row = x, x + 1, x + 2, x + 3, x + 4, x + 5
            a('s_lshl_b32 s46, s%d, 4\ns_add_u32 s46, s46, %d\nv_add_u32 v%d, s46, v%d' % (S_WV, 64 * i, k, vn))
            a('v_mov_b32 v%d, 700' % dm)
            a('v_cmp_ge_u32 vcc, 288, v%d\nv_cndmask_b32 v%d, v%d, v%d, vcc' % (k, di, dm, k))
            a('v_sub_u32 v%d, 576, v%d\nv_add_u32 v%d, -1, v%d' % (mi, k, tmp, k))
            a('v_cmp_gt_u32 vcc, 287, v%d\nv_cndmask_b32 v%d, v%d, v%d, vcc' % (tmp, mi, dm, mi))
            a('v_mul_u32_u24 v%d, %d, v%d' % (row, 2 * self.PITCH, vq))
            a('v_lshl_add_u32 v%d, v%d, 1, v%d\nv_add_u32 v%d, %d, v%d' % (di, di, row, self.yd + i, self.YR, di))
            a('v_lshl_add_u32 v%d, v%d, 1, v%d\nv_add_u32 v%d, %d, v%d' % (mi, mi, row, self.ym + i, self.YR, mi))
            a('v_mov_b32 v%d, -1' % (self.imk + i))
            a('v_mov_b32 v%d, s50' % tmp)
            a('v_cmp_eq_u32 vcc, 0, v%d\nv_cndmask_b32 v%d, v%d, v%d, vcc' % (k, self.imk + i, self.imk + i, tmp))
            a('v_cmp_eq_u32 vcc, 288, v%d\nv_cndmask_b32 v%d, v%d, v%d, vcc' % (k, self.imk + i, self.imk + i, tmp))
        a('''v_min_u32 v%d, 2, v%d
v_lshrrev_b32 v%d, 2, v%d
v_lshl_add_u32 v%d, v%d, 3, v%d
v_mul_u32_u24 v%d, 48, v%d
v_and_b32 v%d, 3, v0
v_lshl_add_u32 v%d, v%d, 3, v%d
s_mul_i32 s46, s%d, %d
s_add_u32 s46, s46, %d
v_add_u32 v%d, s46, v%d''' % (x, vq, x + 1, vn, x, x, x + 1, x, x, x + 1, x, x + 1, x, S_WV, 2 * self.PITCH, self.YR, self.ya, x))
        for mb in range(2):
            for nb in range(2):
                d = self.aow + 2 * mb + nb
                a('''v_lshl_add_u32 v%d, v%d, 2, %d
v_mul_u32_u24 v%d, 24, v%d
v_add_u32 v%d, %d, v%d
v_add_u32 v%d, v%d, v%d
v_lshlrev_b32 v%d, 2, v%d
s_mul_i32 s46, s%d, 4608
s_add_u32 s46, s46, %d
v_add_u32 v%d, s46, v%d''' % (x, vq, 16 * mb, x + 1, x, x + 1, 16 * nb, x + 1, x + 1, x + 1, vn, x + 1, x + 1, S_WV, self.AO, d, x + 1))
                if mb or nb:
                    a('v_mov_b32 v%d, %d' % (x + 2, self.AO + 8 * 2304))
                    if mb: a('v_cmp_lt_u32 vcc, 1, v%d\nv_cndmask_b32 v%d, v%d, v%d, vcc' % (vq, d, d, x + 2))
                    if nb: a('v_cmp_lt_u32 vcc, 7, v%d\nv_cndmask_b32 v%d, v%d, v%d, vcc' % (vn, d, d, x + 2))
    def spectral(self, a, mid_before=None, mid_after=None, end_before=None, end_after=None):
        t = self.t
        for u in range(12): a('ds_write_b32 v%d, v%d offset:%d' % (self.vw, self.v + u, u * 32), tag='vl')
        a.wait_lgkm('vl')
        a('s_barrier')
        for i in range(5):
            a('ds_read_b128 v[%d:%d], v%d offset:%d' % (self.f + 4 * (i % 4), self.f + 4 * (i % 4) + 3, self.vr, i * 2048))
            d = self.d + 4 * i
            a('%s v[%d:%d], v[%d:%d], v[%d:%d], 0' % (MF, d, d + 3, self.r8, self.r8 + 3, self.f + 4 * (i % 4), self.f + 4 * (i % 4) + 3))
        yi = self.YI - self.YR
        for i in range(5):
            d = self.d + 4 * i
            for e in range(2):
                p = t + 2 * e
                a('v_cvt_pk_bf16_f32 v%d, v%d, v%d' % (p, d + 2 * e, d + 2 * e + 1))
                a('v_and_b32 v%d, v%d, v%d' % (p, self.imk + i, p))
                a('v_xor_b32 v%d, 0x80000000, v%d' % (p + 1, p))
                o = e * self.PITCH
                a('ds_write_b16 v%d, v%d offset:%d' % (self.yd + i, p, o), tag='yl')
                a('ds_write_b16_d16_hi v%d, v%d offset:%d' % (self.yd + i, p, o + yi), tag='yl')
                a('ds_write_b16 v%d, v%d offset:%d' % (self.ym + i, p, o), tag='yl')
                a('ds_write_b16_d16_hi v%d, v%d offset:%d' % (self.ym + i, p + 1, o + yi), tag='yl')
        a.wait_lgkm('yl')
        if mid_before: mid_before(a)
        a('s_barrier')
        if mid_after: mid_after(a)
        for e in range(2):
            o = e * self.PITCH
            fr, fi = self.f + 8 * e, self.f + 8 * e + 4
            a('ds_read_b64_tr_b16 v[%d:%d], v%d offset:%d' % (fr, fr + 1, self.ya, o))
            a('ds_read_b64_tr_b16 v[%d:%d], v%d offset:%d' % (fr + 2, fr + 3, self.ya, o + 192))
            a('ds_read_b64_tr_b16 v[%d:%d], v%d offset:%d' % (fi, fi + 1, self.ya, o + yi))
            a('ds_read_b64_tr_b16 v[%d:%d], v%d offset:%d' % (fi + 2, fi + 3, self.ya, o + yi + 192))
        def mm(dst, A, B, C=None):
            a('%s v[%d:%d], v[%d:%d], v[%d:%d], %s' % (MF, dst, dst + 3, A, A + 3, B, B + 3, '0' if C is None else 'v[%d:%d]' % (C, C + 3)))
        for e in range(2):
            fr, fi = self.f + 8 * e, self.f + 8 * e + 4
            for nb in range(2):
                sr, si = self.d + 16 * e + 8 * nb, self.d + 16 * e + 8 * nb + 4
                mm(sr, fr, self.cs + 4 * nb); mm(si, fr, self.sn + 4 * nb)
                mm(sr, fi, self.ns + 4 * nb, sr); mm(si, fi, self.cs + 4 * nb, si)
        for e in range(2):
            for nb in range(2):
                sr, si = self.d + 16 * e + 8 * nb, self.d + 16 * e + 8 * nb + 4
                for r in range(4):
                    c, s = self.twc + 4 * nb + r, self.tws + 4 * nb + r
                    a('v_mul_f32 v%d, v%d, v%d' % (t + r, si + r, s))
                    a('v_mul_f32 v%d, v%d, v%d' % (si + r, si + r, c))
                    a('v_fma_f32 v%d, v%d, v%d, v%d' % (si + r, sr + r, s, si + r))
                    a('v_fma_f32 v%d, v%d, v%d, -v%d' % (sr + r, sr + r, c, t + r))
                b = self.f + 8 * e + 4 * nb
                a('v_cvt_pk_bf16_f32 v%d, v%d, v%d\nv_cvt_pk_bf16_f32 v%d, v%d, v%d' % (b, sr, sr + 1, b + 1, sr + 2, sr + 3))
                a('v_cvt_pk_bf16_f32 v%d, v%d, v%d\nv_cvt_pk_bf16_f32 v%d, v%d, v%d' % (b + 2, si, si + 1, b + 3, si + 2, si + 3))
        for e in range(2):
            for nb in range(2):
                for mb in range(2):
                    mm(self.d + 16 * e + 8 * nb + 4 * mb, self.ab + 4 * mb, self.f + 8 * e + 4 * nb)
        for e in range(2):
            for nb in range(2):
                for mb in range(2):
                    d = self.d + 16 * e + 8 * nb + 4 * mb
                    for r in range(4):
                        a('ds_write_b32 v%d, v%d offset:%d' % (self.aow + 2 * mb + nb, d + r, e * 2304 + 96 * r), tag='ao')
        a.wait_lgkm('ao')
        if end_before: end_before(a)
        a('s_barrier')
        if end_after: end_after(a)
    def mix_pre(self, a):
        for i in range(3):
            a('ds_read_b128 v[%d:%d], v%d' % (self.d + 8 * i, self.d + 8 * i + 3, self.aor + i))
            a('ds_read_b128 v[%d:%d], v%d offset:16' % (self.d + 8 * i + 4, self.d + 8 * i + 7, self.aor + i))
            a('ds_read_b32 v%d, v%d' % (self.f + 2 * i, self.gad + i))
        for i in range(3):
            g, og = self.f + 2 * i, self.f + 8 + 2 * i
            a('v_sub_f32 v%d, 1.0, v%d' % (og, g))
            a('v_cvt_pk_bf16_f32 v%d, v%d, v%d\nv_lshlrev_b32 v%d, 16, v%d\nv_mov_b32 v%d, v%d' % (og, og, og, og, og, og + 1, og))
            for x in range(8): a('v_mul_f32 v%d, v%d, v%d' % (self.d + 8 * i + x, self.d + 8 * i + x, g))
    def mix_post(self, a, stflags=''):
        t = self.t
        for i in range(3):
            p = self.p + 16 * i
            og = self.f + 8 + 2 * i
            for dw in range(4):
                acc, tmp = t + 2 * dw, t + 8 + 2 * (dw & 1)
                a('v_lshlrev_b32 v%d, 16, v%d\nv_and_b32 v%d, 0xffff0000, v%d' % (acc, p + dw, acc + 1, p + dw))
                for ks in range(1, 4):
                    a('v_lshlrev_b32 v%d, 16, v%d\nv_and_b32 v%d, 0xffff0000, v%d' % (tmp, p + 4 * ks + dw, tmp + 1, p + 4 * ks + dw))
                    a('v_pk_add_f32 v[%d:%d], v[%d:%d], v[%d:%d]' % (acc, acc + 1, acc, acc + 1, tmp, tmp + 1))
            for dw in range(4):
                acc = t + 2 * dw; ga = self.d + 8 * i + 2 * dw
                a('v_pk_fma_f32 v[%d:%d], v[%d:%d], v[%d:%d], v[%d:%d]' % (acc, acc + 1, acc, acc + 1, og, og + 1, ga, ga + 1))
            o = t + 12 + 4 * (i & 1)
            for dw in range(4): a('v_cvt_pk_bf16_f32 v%d, v%d, v%d' % (o + dw, t + 2 * dw, t + 2 * dw + 1))
            a('buffer_store_dwordx4 v[%d:%d], v%d, s[%d:%d], 0 offen %s' % (o, o + 3, self.oaddr + i, self.S_OUT, self.S_OUT + 3, stflags))
    def mix(self, a, stflags=''):
        self.mix_pre(a); self.mix_post(a, stflags)
```

```python
from asmlib import *
from common import *
from sched import Node, Packer, place_groups

V_LANE16 = 1
V_LANE8 = 2
V_XOFF = 3
V_DP = 4
V_DS = 5
V_RA0 = 6
V_RA1 = 7
V_RS = 8
V_C2 = 9
V_T = 10
V_XD = 80
V_XR0 = 81
V_XR1 = 82
NSL = 16
AF0 = 16
GT0 = 80
HP0 = 88
ACC0 = 96
XV0 = 224

S_W = 4
S_X = 8
S_WS = 12
S_WV, S_T, S_FJ = 20, 21, 22
S_DOFFP, S_DOFFS = 23, 24
S_M0B = 25
S_HP, S_HSG = 26, 27
S_TMP, S_TMP2 = 28, 29
S_C1 = 30
S_RB = 32
S_ST = 36
S_XB = 38
S_XM = 39

FL = [False]
S_WG, S_WU = 68, 72
S_DFL = 23
S_M0S = 82
S_PSH = 59
DS_SLOTS = {0: (0, 2), 1: (3, 1)}
FUSED = [False]
SPLIT8 = [[(0, 5), (5, 9), (9, 9)]]
S_PFP, S_PFS = 62, 63
S_PF2 = 58
S_XPF = 77
S_PFM = 78
V_DUMMY = 8
LANE8 = [V_LANE8]

def xfrag(rb, ks):
    fi = ks * 4 + rb
    if fi < 64: return 'a[%d:%d]' % (4 * fi, 4 * fi + 3)
    b = XV0 + 4 * (fi - 64)
    return 'v[%d:%d]' % (b, b + 3)

def acc(setn, bl, mx, rb):
    return ACC0 + 64 * setn + (bl * 2 + mx) * 16 + rb * 4

def roles(a):
    a('''v_lshrrev_b32 v10, 6, v0
v_and_b32 v0, 63, v0
s_nop 0
v_readfirstlane_b32 s%d, v10
s_and_b32 s%d, s2, 7
s_lshr_b32 s%d, s2, 3
s_and_b32 s%d, s%d, 3
s_lshr_b32 s%d, s%d, 2
s_lshl_b32 s%d, s%d, 2
s_and_b32 s46, s%d, 3
s_add_u32 s%d, s%d, s46
s_lshl_b32 s%d, s%d, 3
s_lshr_b32 s46, s%d, 2
s_add_u32 s%d, s%d, s46''' % (S_WV, S_TMP, S_TMP2,
        S_FJ, S_TMP,
        S_T, S_TMP,
        S_T, S_T,
        S_TMP2,
        S_T, S_T,
        S_FJ, S_FJ,
        S_TMP2,
        S_FJ, S_FJ))

T0, T1, T2, T3, T4, T5 = 83, 84, 85, 86, 87, 88

def setup_x(a):
    a('''s_lshl_b32 s40, s%d, 5
s_lshr_b32 s41, s%d, 1
s_lshl_b32 s41, s41, 4
s_add_u32 s40, s40, s41
s_and_b32 s41, s%d, 1
s_lshl_b32 s41, s41, 10
s_add_u32 s40, s40, s41
s_mul_i32 s%d, s40, 1152
s_mul_i32 s%d, s%d, 18432
s_add_u32 s%d, s%d, %d
v_lshrrev_b32 v%d, 3, v0
v_and_b32 v%d, 7, v0
v_xor_b32 v%d, v%d, v%d
v_mul_u32_u24 v%d, 1152, v%d
v_lshl_add_u32 v%d, v%d, 4, v%d
v_and_b32 v%d, 15, v0
v_lshrrev_b32 v%d, 4, v0
v_and_b32 v%d, 7, v%d
v_xor_b32 v%d, v%d, v%d
v_lshlrev_b32 v%d, 4, v%d
v_lshl_add_u32 v%d, v%d, 7, v%d
v_add_u32 v%d, s%d, v%d
v_xor_b32 v%d, 64, v%d''' % (S_T, S_WV, S_WV, S_XB, S_XM, S_WV, S_XM, S_XM, 2 * SLOT,
        T0, T1, T1, T1, T0, T0, T0, V_XD, T1, T0,
        T0, T1, T2, T0, T2, T2, T1, T2, T2, T2, T0, T2, V_XR0, S_XM, T2, V_XR1, V_XR0))

def setup_rest(a):
    a('''v_and_b32 v10, 15, v0
v_lshrrev_b32 v11, 4, v0''')
    a('''v_lshrrev_b32 v12, 2, v0
v_mul_u32_u24 v12, 9216, v12
v_lshrrev_b32 v13, 5, v0
v_lshlrev_b32 v13, 1, v13
v_and_b32 v14, 3, v0
v_xor_b32 v13, v13, v14
v_lshl_add_u32 v%d, v13, 4, v12
v_lshrrev_b32 v12, 1, v0
v_and_b32 v13, 0x13, v12
v_and_b32 v14, 4, v12
v_lshl_or_b32 v13, v14, 1, v13
v_and_b32 v14, 8, v12
v_lshrrev_b32 v14, 1, v14
v_or_b32 v13, v13, v14
v_mul_u32_u24 v13, 9216, v13
v_and_b32 v14, 1, v0
v_lshl_add_u32 v%d, v14, 4, v13''' % (V_DP, V_DS))
    a('''v_lshrrev_b32 v12, 2, v10
v_and_b32 v13, 3, v0
v_lshl_add_u32 v14, v11, 3, v12
v_lshlrev_b32 v14, 6, v14
v_lshl_add_u32 v14, v13, 3, v14
v_and_b32 v15, 1, v11
v_lshl_add_u32 v%d, v15, 5, v14
v_xor_b32 v%d, 32, v%d
v_lshrrev_b32 v14, 1, v11
v_lshlrev_b32 v14, 4, v14
v_lshl_add_u32 v14, v15, 2, v14
v_add_u32 v14, v14, v12
v_lshlrev_b32 v14, 5, v14
v_lshl_add_u32 v%d, v13, 3, v14
v_mov_b32 v%d, 0x%08x
s_mov_b32 s%d, 0x%08x''' % (V_RA0, V_RA1, V_RA0, V_RS, V_C2, f32bits(GC2), S_C1, f32bits(GC1)))
    a('''s_and_b32 s40, s%d, 1
s_and_b32 s41, s%d, 1
s_mul_i32 s42, s%d, 288
s_lshl_b32 s43, s41, 5
s_add_u32 s%d, s42, s43
s_mul_i32 s43, s40, %d
s_add_u32 s%d, s%d, s43
s_xor_b32 s43, s41, 1
s_lshl_b32 s43, s43, 8
s_add_u32 s%d, s42, s43
s_mul_i32 s43, s40, %d
s_add_u32 s%d, s%d, s43
s_mul_i32 s%d, s%d, 9216''' % (S_WV, S_FJ, S_FJ,
        S_DOFFP, 144 * 9216, S_DOFFP, S_DOFFP,
        S_DOFFS, 288 * 9216, S_DOFFS, S_DOFFS,
        S_M0B, S_WV))
    a('''s_lshl_b32 s42, s%d, 4
s_lshl_b32 s43, s%d, 2
s_add_u32 s42, s42, s43
s_lshr_b32 s43, s%d, 1
s_mul_i32 s44, s43, 9
s_mul_i32 s45, s41, 5
s_add_u32 s44, s44, s45
s_mul_i32 s45, s42, 144
s_add_u32 s44, s44, s45
s_lshl_b32 s%d, s44, 10
s_add_u32 s%d, s%d, %d
s_lshl_b32 s44, s42, 4
s_add_u32 s44, s44, s43
s_lshl_b32 s44, s44, 1
s_add_u32 s44, s44, s41
s_lshl_b32 s%d, s44, 9
s_add_u32 s%d, s%d, %d''' % (S_T, S_WV, S_FJ, S_HP, S_HP, S_HP, HF_BASE, S_HSG, S_HSG, S_HSG, HS_BASE))


def setup_rest_fl(a):
    a('''v_and_b32 v10, 15, v0
v_lshrrev_b32 v11, 4, v0''')
    a('''v_lshrrev_b32 v12, 3, v0
v_bfe_u32 v13, v0, 4, 1
s_and_b32 s40, s%d, 1
s_lshl_b32 s40, s40, 1
v_or_b32 v13, s40, v13
v_bfe_u32 v14, v0, 1, 2
v_xor_b32 v13, v13, v14
v_mul_u32_u24 v12, 9216, v12
v_lshl_add_u32 v12, v13, 5, v12
v_and_b32 v14, 1, v0
v_lshl_add_u32 v%d, v14, 4, v12
v_lshrrev_b32 v12, 1, v0
v_and_b32 v13, 0x13, v12
v_and_b32 v14, 4, v12
v_lshl_or_b32 v13, v14, 1, v13
v_and_b32 v14, 8, v12
v_lshrrev_b32 v14, 1, v14
v_or_b32 v13, v13, v14
v_mul_u32_u24 v13, 9216, v13
v_and_b32 v14, 1, v0
v_lshl_add_u32 v%d, v14, 4, v13''' % (S_WV, V_DP, V_DS))
    a('''v_lshrrev_b32 v12, 2, v10
v_and_b32 v13, 3, v0
v_lshl_add_u32 v14, v11, 3, v12
v_lshlrev_b32 v14, 7, v14
v_lshl_add_u32 v14, v13, 3, v14
v_lshrrev_b32 v15, 1, v12
v_and_b32 v13, 1, v11
v_lshl_or_b32 v15, v13, 1, v15
v_lshl_add_u32 v%d, v15, 5, v14
v_xor_b32 v%d, 32, v%d
v_mov_b32 v%d, 0x%08x
s_mov_b32 s%d, 0x%08x''' % (V_RA0, V_RA1, V_RA0, V_C2, f32bits(GC2), S_C1, f32bits(GC1)))
    a('''s_lshr_b32 s40, s%d, 3
s_and_b32 s41, s%d, 7
s_lshr_b32 s42, s41, 2
s_lshl_b32 s43, s41, 1
s_add_u32 s43, s43, s42
s_mul_i32 s44, s40, 2304
s_lshl_b32 s45, s43, 7
s_add_u32 s45, s45, s44
s_mul_i32 s46, s%d, %d
s_add_u32 s%d, s45, s46
s_and_b32 s46, s%d, 3
s_lshl_b32 s46, s46, 1
s_and_b32 s47, s%d, 1
s_add_u32 s46, s46, s47
s_lshl_b32 s%d, s46, 3
s_mul_i32 s46, s46, %d
s_add_u32 s%d, s45, s46
s_add_u32 s%d, s45, %d
s_mul_i32 s45, s42, 9
s_add_u32 s45, s45, 8
s_lshl_b32 s45, s45, 7
s_add_u32 s45, s45, s44
s_and_b32 s46, s41, 3
s_lshl_b32 s46, s46, 5
s_add_u32 s45, s45, s46
s_mul_i32 s46, s47, %d
s_add_u32 s%d, s45, s46
s_mul_i32 s%d, s%d, 9216
s_lshr_b32 s46, s%d, 1
s_mul_i32 s46, s46, 18432
s_lshl_b32 s47, s47, 10
s_add_u32 s%d, s46, s47''' % (S_FJ, S_FJ, S_WV, 72 * 9216, S_DFL, S_T, S_WV, S_PSH, 32 * 9216, S_PFP, S_PF2, 256 * 9216,
                                 32 * 9216, S_DOFFS, S_M0B, S_WV, S_WV, S_M0S))
    a('''s_lshl_b32 s46, s%d, 4
s_lshl_b32 s47, s%d, 2
s_add_u32 s46, s46, s47
s_mul_i32 s44, s40, 36
s_lshl_b32 s45, s43, 1
s_add_u32 s44, s44, s45
s_mul_i32 s45, s46, 144
s_add_u32 s44, s44, s45
s_lshl_b32 s%d, s44, 10
s_add_u32 s%d, s%d, %d
s_lshr_b32 s43, s%d, 1
s_lshl_b32 s44, s46, 4
s_add_u32 s44, s44, s43
s_lshl_b32 s44, s44, 1
s_and_b32 s45, s%d, 1
s_add_u32 s44, s44, s45
s_lshl_b32 s%d, s44, 9
s_add_u32 s%d, s%d, %d''' % (S_T, S_WV, S_HP, S_HP, S_HP, HF_BASE, S_FJ, S_FJ, S_HSG, S_HSG, S_HSG, HS_BASE))
    a('''s_and_b32 s40, s%d, 3
s_mul_i32 s41, s40, 589824
s_add_u32 s%d, s%d, s41
s_lshl_b32 s41, s40, 4
s_mov_b64 s[%d:%d], 0xffff
s_lshl_b64 s[%d:%d], s[%d:%d], s41''' % (S_T, S_PFS, S_DOFFS, S_PFM, S_PFM + 1, S_PFM, S_PFM + 1, S_PFM, S_PFM + 1))

def ds_dma(ds, mx):
    Q, h = ds >> 1, ds & 1
    slot = DS_SLOTS[h][mx]; srd = (S_WG, S_WU)[mx]
    G = []
    for par in range(2):
        for j in range(par, 9, 2):
            g = []
            if par == 1 and j == 1: g.append(('a', 'v_xor_b32 v%d, 64, v%d' % (V_DP, V_DP)))
            g += [('S', 's_add_u32 s%d, s%d, %d' % (S_TMP, S_DFL, Q * 128 + (288 * h + 8 * j) * 9216)),
                  ('S', 's_add_u32 m0, s%d, %d' % (S_M0B, slot * SLOT + j * 1024)),
                  ('M', ('buffer_load_dwordx4 v%d, s[%d:%d], s%d offen lds' % (V_DP, srd, srd + 3, S_TMP), ('ds', ds)))]
            if j == 7: g.append(('a', 'v_xor_b32 v%d, 64, v%d' % (V_DP, V_DP)))
            G.append(g)
    return G

def ds_prefetch(ds):
    Q, h = ds >> 1, ds & 1
    off = Q * 128 + 288 * h * 9216
    ld = lambda: ('buffer_load_dword v%d, v%d, s[%d:%d], s%d offen' % (V_DUMMY, V_DS, S_W, S_W + 3, S_TMP2), 'pf')
    return [[('S', 's_add_u32 s%d, s%d, %d' % (S_TMP2, S_PFP, off)), ('L', ld())],
            [('S', 's_add_u32 s%d, s%d, %d' % (S_TMP2, S_PF2, off)),
             ('Z', ['s_mov_b64 s[46:47], 0xff', 's_lshl_b64 s[46:47], s[46:47], s%d' % S_PSH, 's_mov_b64 exec, s[46:47]', ld(), 's_mov_b64 exec, -1'])]]

def fl_state(stage):
    return DS_SLOTS[stage & 1] + ((stage >> 1) & 1,)

def fl_move(reg, a_, b_):
    L = []
    d = (b_[0] - a_[0]) * SLOT
    if d > 0: L.append('v_add_u32 v%d, %d, v%d' % (reg, d, reg))
    elif d < 0: L.append('v_subrev_u32 v%d, %d, v%d' % (reg, -d, reg))
    if a_[1] != b_[1]: L.append('v_xor_b32 v%d, 64, v%d' % (reg, reg))
    return L

def setup(a):
    a('''s_load_dwordx2 s[8:9], s[0:1], %d
s_load_dwordx4 s[40:43], s[0:1], %d
s_load_dwordx2 s[12:13], s[0:1], %d''' % (KA_AX, KA_WG, KA_WS))
    roles(a)
    a('''s_waitcnt lgkmcnt(0)
s_mov_b32 s10, %d
s_mov_b32 s11, 0x20000
s_mov_b32 s14, %d
s_mov_b32 s15, 0x20000
s_cmp_ge_u32 s%d, 2
s_cselect_b32 s4, s42, s40
s_cselect_b32 s5, s43, s41
s_mov_b32 s6, %d
s_mov_b32 s7, 0x20000''' % (NB_X, WS_BYTES, S_WV, NB_W))
    a('v_lshlrev_b32 v%d, 4, v0\nv_lshlrev_b32 v%d, 3, v0' % (V_LANE16, V_LANE8))
    setup_x(a)
    setup_rest(a)

def w_prefetch(stage):
    G = []
    if stage < 8:
        p, h = stage >> 1, stage & 1
        offs = [(S_PFP, (288 * h) * 9216 + 64 * p), (S_PFP, (288 * h + 64) * 9216 + 64 * p), (S_DOFFP, (288 * h + 128) * 9216 + 64 * p)]
        vo = V_DP
    elif FL[0]:
        offs = [(S_PFS, 0), (S_PFS, 256 * 9216), (S_DOFFS, 512 * 9216)]
        vo = V_DS
    else:
        offs = [(S_PFS, 0), (S_PFS, 128 * 9216), (S_DOFFS, 256 * 9216)]
        vo = V_DS
    for i, (base, off) in enumerate(offs):
        ld = ('buffer_load_dword v%d, v%d, s[%d:%d], s%d offen' % (V_DUMMY, vo, S_W, S_W + 3, S_TMP2), 'pf')
        if i < 2: G.append([('S', 's_add_u32 s%d, s%d, %d' % (S_TMP2, base, off)), ('L', ld)])
        else:
            G.append([('S', 's_add_u32 s%d, s%d, %d' % (S_TMP2, base, off)),
                      ('Z', ['s_mov_b64 exec, s[%d:%d]' % (S_PFM, S_PFM + 1), ld, 's_mov_b64 exec, -1'])])
    return G

def wd_prefetch(e, s_base, s_srd):
    return [('S', 's_add_u32 s%d, s%d, %d' % (S_TMP2, s_base, 0)), ]

def setup_pf(a):
    a('''s_and_b32 s40, s%d, 3
s_mul_i32 s41, s40, 147456
s_add_u32 s%d, s%d, s41
s_mul_i32 s41, s40, 294912
s_add_u32 s%d, s%d, s41
s_lshl_b32 s41, s40, 4
s_mov_b64 s[%d:%d], 0xffff
s_lshl_b64 s[%d:%d], s[%d:%d], s41''' % (S_T, S_PFP, S_DOFFP, S_PFS, S_DOFFS, S_PFM, S_PFM + 1, S_PFM, S_PFM + 1, S_PFM, S_PFM + 1))

def rs_ops(t):
    return ['v_lshrrev_b32 v%d, 4, v0' % V_RS, 'v_lshrrev_b32 v%d, 1, v%d' % (t, V_RS), 'v_lshlrev_b32 v%d, 4, v%d' % (t, t),
            'v_and_b32 v%d, 1, v%d' % (V_RS, V_RS), 'v_lshl_add_u32 v%d, v%d, 2, v%d' % (t, V_RS, t),
            'v_bfe_u32 v%d, v0, 2, 2' % V_RS, 'v_add_u32 v%d, v%d, v%d' % (t, t, V_RS), 'v_lshlrev_b32 v%d, 5, v%d' % (t, t),
            'v_and_b32 v%d, 3, v0' % V_RS, 'v_lshl_add_u32 v%d, v%d, 3, v%d' % (V_RS, V_RS, t)]

def x_prefetch(a, part=None, lanes=None):
    if part in (None, 0):
        if lanes is None or lanes[0] == 'lo':
            a('''s_and_b32 s40, s%d, 7
s_mul_i32 s40, s40, 294912
s_mul_i32 s41, s%d, 36864
s_add_u32 s%d, s40, s41
v_lshlrev_b32 v%d, 7, v0''' % (S_FJ, S_T, S_XPF, 253))
        a('s_lshl_b32 s41, s%d, 13\ns_add_u32 s41, s41, s%d' % (S_WV, S_XPF))
        if lanes:
            m = (1 << lanes[1]) - 1
            if lanes[0] == 'hi': m ^= (1 << 64) - 1
            a('s_mov_b32 exec_lo, 0x%x\ns_mov_b32 exec_hi, 0x%x' % (m & 0xffffffff, m >> 32))
        a('buffer_load_dword v%d, v%d, s[%d:%d], s41 offen' % (254, 253, S_X, S_X + 3))
        if lanes: a('s_mov_b64 exec, -1')
    if part in (None, 1):
        a('''s_add_u32 s40, s%d, 32768
s_cmp_eq_u32 s20, 0
s_cselect_b32 s42, 32, 0
v_cmp_gt_u32 vcc, s42, v0
v_mov_b32 v%d, 0x7ffffff0
v_cndmask_b32 v%d, v%d, v%d, vcc
buffer_load_dword v%d, v%d, s[%d:%d], s40 offen''' % (S_XPF, T1, T1, T1, 253, 255, T1, S_X, S_X + 3))

def dma_ops(stage, j):
    slot = slot_of(stage) if not FL[0] else 0
    if stage < 8:
        p, h = stage >> 1, stage & 1
        off = (288 * h + 16 * j) * 9216 + 64 * p
        base, vo = S_DOFFP, V_DP
    elif FL[0]:
        return ['s_add_u32 s%d, s%d, %d' % (S_TMP, S_DOFFS, 64 * j * 9216),
                's_add_u32 m0, s%d, %d' % (S_M0S, j * 2048),
                ('buffer_load_dwordx4 v%d, s[%d:%d], s%d offen lds' % (V_DS, S_W, S_W + 3, S_TMP), ('dma', 8) if j > 4 else ('dma', 'h0'))]
    else:
        off = 32 * j * 9216
        base, vo = S_DOFFS, V_DS
    return ['s_add_u32 s%d, s%d, %d' % (S_TMP, base, off),
            's_add_u32 m0, s%d, %d' % (S_M0B, slot * SLOT + j * 1024),
            ('buffer_load_dwordx4 v%d, s[%d:%d], s%d offen lds' % (vo, S_W, S_W + 3, S_TMP), ('dma', stage))]

NXB = 9

def xblocks():
    return [(rb, kp) for rb in range(4) for kp in range(9)]

def x_dma(b):
    rb, kp = xblocks()[b]
    L = []
    for e in range(2):
        L += ['s_add_u32 s%d, s%d, %d' % (S_TMP, S_XB, (256 * rb + 8 * e) * 1152 + kp * 128),
              's_add_u32 m0, s%d, %d' % (S_XM, (b % NXB) * 2048 + e * 1024),
              ('buffer_load_dwordx4 v%d, s[%d:%d], s%d offen lds' % (V_XD, S_X, S_X + 3, S_TMP), ('xd', b))]
    return L

def x_read(b):
    rb, kp = xblocks()[b]
    o = (b % NXB) * 2048
    return ['ds_read_b128 %s, v%d offset:%d' % (xfrag(rb, 2 * kp), V_XR0, o),
            ('ds_read_b128 %s, v%d offset:%d' % (xfrag(rb, 2 * kp + 1), V_XR1, o), ('xr', b))]

def x_steps():
    steps = []
    steps.append([o for b in range(NXB) for o in x_dma(b)])
    for b in range(36):
        st = [('waitvm', ('xd', b))] + x_read(b)
        if b >= 1 and b - 1 + NXB < 36:
            st += [('waitlg', ('xr', b - 1))] + x_dma(b - 1 + NXB)
        steps.append(st)
    return steps

def x_substeps():
    def piece(b, e, tmp):
        rb, kp = xblocks()[b]
        return (['s_add_u32 s%d, s%d, %d' % (tmp, S_XB, (256 * rb + 8 * e) * 1152 + kp * 128),
                 's_add_u32 m0, s%d, %d' % (S_XM, (b % NXB) * 2048 + e * 1024)],
                ('buffer_load_dwordx4 v%d, s[%d:%d], s%d offen lds' % (V_XD, S_X, S_X + 3, tmp), ('xd', b)))
    first = [o for b in range(NXB) for o in x_dma(b)]
    subs = []
    for b in range(36):
        nb = b - 1 + NXB
        if b >= 1 and nb < 36:
            (sa, la), (sb, lb) = piece(nb, 0, S_TMP), piece(nb, 1, S_TMP)
            subs.append(sa + [('waitvm', ('xd', b))] + x_read(b))
            subs.append([('waitlg', ('xr', b - 1)), la] + sb)
            subs.append([lb])
        else:
            subs.append([('waitvm', ('xd', b))] + x_read(b))
    return first, subs

def put2(a, o):
    if isinstance(o, tuple) and o[0] == 'waitvm': a.wait_vm(o[1])
    elif isinstance(o, tuple) and o[0] == 'waitlg': a.wait_lgkm(o[1])
    else: put(a, o)

class GegluState:
    def __init__(self):
        self.tlast = {}
        self.hlast = {}

def geglu_nodes(gs, setn, bl, rb, dst, tset, war):
    g = acc(setn, bl, 0, rb); u = acc(setn, bl, 1, rb)
    t = GT0 + 4 * tset
    prev = gs.tlast.get(tset, [None] * 4)
    N = []
    fin = []
    rows = [[] for _ in range(8)]
    for r in range(4):
        n0 = Node('a', 'v_mul_f32 v%d, v%d, v%d' % (t + r, g + r, g + r), [prev[r]] if prev[r] else [])
        n1 = Node('a', 'v_fma_f32 v%d, v%d, s%d, v%d' % (t + r, t + r, S_C1, V_C2), [n0])
        n2 = Node('a', 'v_mul_f32 v%d, v%d, v%d' % (t + r, t + r, g + r), [n1])
        n3 = Node('T', 'v_exp_f32 v%d, v%d' % (t + r, t + r), [n2])
        nm = Node('a', 'v_mul_f32 v%d, v%d, v%d' % (u + r, g + r, u + r))
        n4 = Node('a', 'v_add_f32 v%d, 1.0, v%d' % (t + r, t + r), [n3])
        n5 = Node('T', 'v_rcp_f32 v%d, v%d' % (t + r, t + r), [n4])
        n6 = Node('a', 'v_mul_f32 v%d, v%d, v%d' % (u + r, u + r, t + r), [n5, nm])
        for i, n in enumerate((n0, n1, n2, n3, nm, n4, n5, n6)): rows[i].append(n)
        fin.append(n6)
    for row in rows: N += row
    c0 = Node('a', 'v_cvt_pk_bf16_f32 v%d, v%d, v%d' % (dst, u, u + 1), fin[:2] + war)
    c1 = Node('a', 'v_cvt_pk_bf16_f32 v%d, v%d, v%d' % (dst + 1, u + 2, u + 3), fin[2:] + war)
    gs.tlast[tset] = fin
    return N + [c0, c1], [c0, c1]

def geglu_pair(gs, p, stflags):
    L = []
    for rb in range(4):
        hs = rb & 1
        hp = HP0 + 4 * hs
        war = [gs.hlast[hs]] if hs in gs.hlast else []
        cv = []
        for bl in range(2):
            n, c = geglu_nodes(gs, p & 1, bl, rb, hp + 2 * bl, bl, war)
            L += n; cv += c
        if stflags == 'none': continue
        sa = Node('S', 's_add_u32 s%d, s%d, %d' % (S_ST + hs, S_HP, rb * 144 * 1024 + p * 1024), war)
        st = Node('X', ('buffer_store_dwordx4 v[%d:%d], v%d, s[%d:%d], s%d offen %s' % (hp, hp + 3, V_LANE16, S_WS, S_WS + 3, S_ST + hs, stflags), ('hst', p)), cv + [sa])
        L += [sa, st]; gs.hlast[hs] = st
    return L

def geglu_single(gs, stflags):
    L = []
    for rb in range(4):
        hs = rb & 1
        hp = HP0 + 4 * hs
        war = [gs.hlast[hs]] if hs in gs.hlast else []
        n, cv = geglu_nodes(gs, 0, 0, rb, hp, rb & 1, war)
        L += n
        if stflags == 'none': continue
        sa = Node('S', 's_add_u32 s%d, s%d, %d' % (S_ST + hs, S_HSG, rb * 16 * 1024), war)
        st = Node('X', ('buffer_store_dwordx2 v[%d:%d], v%d, s[%d:%d], s%d offen %s' % (hp, hp + 1, LANE8[0], S_WS, S_WS + 3, S_ST + hs, stflags), ('hst', 4)), cv + [sa])
        L += [sa, st]; gs.hlast[hs] = st
    return L

def put(a, item):
    if isinstance(item, tuple): a(item[0], tag=item[1])
    else: a(item)

def stage_frags(stage):
    C = []
    for ci in range(4):
        if stage < 8:
            p, h = stage >> 1, stage & 1
            bl, mx = ci >> 1, ci & 1
            ks0 = 9 * h
            if FL[0]: C.append(dict(addr=(V_RA0, V_RA1)[bl], off=lambda k: k * 4096, e2=512, setn=p & 1, bl=bl, mx=mx, ks0=ks0))
            else: C.append(dict(addr=(V_RA0, V_RA1)[bl], off=lambda k, mx=mx: mx * 18432 + k * 2048, setn=p & 1, bl=bl, mx=mx, ks0=ks0))
        else:
            mx, hh = ci & 1, ci >> 1
            C.append(dict(addr=V_RS, off=lambda k, mx=mx, hh=hh: mx * 18432 + (9 * hh + k) * 1024, setn=0, bl=0, mx=mx, ks0=9 * hh))
    return C

def read_ops(stage, ci, k, F):
    c = stage_frags(stage)[ci]
    r = AF0 + 4 * (F % NSL)
    o = c['off'](k)
    return ['ds_read_b64_tr_b16 v[%d:%d], v%d offset:%d' % (r, r + 1, c['addr'], o),
            ('ds_read_b64_tr_b16 v[%d:%d], v%d offset:%d' % (r + 2, r + 3, c['addr'], o + c.get('e2', 256)), ('fr', F))]

def addr_bump(stage_next):
    d = (slot_of(stage_next) - slot_of(stage_next - 1)) * SLOT
    regs = (V_RA0, V_RA1) if FUSED[0] else (V_RA0, V_RA1, V_RS)
    if d > 0: return ['v_add_u32 v%d, %d, v%d' % (r, d, r) for r in regs]
    return ['v_subrev_u32 v%d, %d, v%d' % (r, -d, r) for r in regs]

LEAD = 12
FL_BARS = {0, 1, 2, 3, 4, 6, 7}
FL_HEAD = 5
FL_SPAN = 58

def emit_phase1(a, stflags='sc1', nstage=9, extra_dma=None, stamp=None, skip=(), bp=110, w1pos=27, prologue=True, hook=None, tail=True, dist=3):
    if prologue:
        if stamp: stamp(a, 10)
        if 'xpf' not in skip: x_prefetch(a)
        xs = x_steps()
        for o in xs[0]: put2(a, o)
        for j in range(9):
            for o in dma_ops(0, j): put(a, o)
        if stamp: stamp(a, 11)
        for i, st in enumerate(xs[1:]):
            for o in st: put2(a, o)
            if w1pos == i:
                for j in range(9):
                    for o in dma_ops(1, j): put(a, o)
        a.wait_lgkm(('xr', 35))
        a('s_barrier')
        for j in range(9):
            for o in dma_ops(2, j): put(a, o)
        a.wait_vm(('dma', 0))
        if stamp: stamp(a, 12)
        a('s_barrier')
    if stamp: stamp(a, 0)
    F = 0
    for k in range(9):
        for o in read_ops(0, 0, k, k): put(a, o)
    if FL[0]:
        g_, u_, pp = fl_state(0)
        for o in fl_move(V_RA0, (g_, pp), (u_, pp)): a(o)
    pk = Packer(a, put2)
    gs = GegluState()
    for st in range(nstage):
        C = stage_frags(st)
        nv = [[] for _ in range(144)]
        BP = bp
        for ci in range(1, 5):
            s2, c2 = (st, ci) if ci < 4 else (st + 1, 0)
            if s2 >= nstage: continue
            for k in range(9):
                Fi = (st * 4 + ci) * 9 + k
                ro = read_ops(s2, c2, k, Fi) if 'reads' not in skip else []
                base = 36 * (ci - 1)
                if ci < 4: pos = (base + 4 * k, base + 4 * k + 2)
                else:
                    span = 143 - (BP + 1)
                    pos = (BP + 1 + (span * (2 * k)) // 18, BP + 1 + (span * (2 * k + 1)) // 18)
                    if k >= 7: pos = (max(pos[0], base + 28 + (k - 7)), max(pos[1], base + 29 + (k - 7)))
                for e, o in enumerate(ro): nv[pos[e]].append(('D', o))
        for ci in range(4):
            for k in (0, 3, 6):
                Fi = (st * 4 + ci) * 9 + k + 2
                pos = 36 * ci + k - 1
                if pos >= 0: nv[pos].append(('W', ('waitlg', ('fr', Fi))))
        if st + 1 < nstage:
            nv[143].append(('W', ('waitlg', ('fr', ((st + 1) * 4) * 9 + 2))))
            if not FL[0]:
                for i, o in enumerate(addr_bump(st + 1)): nv[BP - 3 + i].append(('a', o))
                nv[BP] += [('W', ('waitlg', ('fr', (st * 4 + 3) * 9 + 8))), ('W', ('waitvm', ('dma', st + 1)))]
                if 'barrier' not in skip: nv[BP].append(('B', 's_barrier'))
            else:
                need = {0: ('ds', 1), 3: ('ds', 2), 4: ('ds', 3), 7: ('dma', 'h0')}.get(st)
                if st in FL_BARS:
                    nv[BP].append(('W', ('waitlg', ('fr', (st * 4 + 3) * 9 + 8))))
                    if need: nv[BP].append(('W', ('waitvm', need)))
                    nv[BP].append(('B', 's_barrier'))
        if FL[0] and st < 8:
            g_, u_, pp = fl_state(st)
            mv = []
            mv += [(71, o) for o in fl_move(V_RA1, (g_, pp), (u_, pp))]
            if st < 7:
                g2, u2, pp2 = fl_state(st + 1)
                mv += [(40 + i, o) for i, o in enumerate(fl_move(V_RA0, (u_, pp), (g2, pp2)))]
                mv += [(107 + i, o) for i, o in enumerate(fl_move(V_RA1, (u_, pp), (g2, pp2)))]
                mv += [(143, o) for o in fl_move(V_RA0, (g2, pp2), (u2, pp2))]
            for pos_, o in mv: nv[pos_].append(('a', o))
        dl = []
        tgt = st + dist
        if 'dma' in skip or FL[0]: pass
        elif dist == 3 and tgt in (8, 9, 10) and nstage > 8: dl = [dma_ops(8, j) for j in range(*SPLIT8[0][tgt - 8])]
        elif dist == 2 and tgt == 8: dl = [dma_ops(8, j) for j in range(3, 9)]
        elif tgt < 9 and tgt < nstage: dl = [dma_ops(tgt, j) for j in range(9)]
        lo, hi = ((90, 138) if st == 0 else (2, 40) if st == 7 else (2, 134)) if dist == 3 else ((40, 96) if st == 0 else (2, 92))
        groups = [(lo + (i * (hi - lo)) // max(len(dl), 1), [('S', d[0]), ('S', d[1]), ('M', d[2])]) for i, d in enumerate(dl)]
        if dist == 2 and st == 5:
            for j in range(3):
                d = dma_ops(8, j); groups.append((100 + 12 * j, [('S', d[0]), ('S', d[1]), ('M', d[2])]))
        if FL[0]:
            plan = {2: (2, 0), 3: (3, 0)}
            seq = []
            if st in (2, 3): seq = ('head', (ds_dma(st, 0) + ds_dma(st, 1)))
            if st in (3, 4):
                tail_ = ds_dma(st - 1, 0) + ds_dma(st - 1, 1)
                for i, g_ in enumerate(tail_[FL_HEAD:]): groups.append((1 + (i * FL_SPAN) // (18 - FL_HEAD), g_))
            if st in (2, 3):
                for i, g_ in enumerate(seq[1][:FL_HEAD]): groups.append((BP + 2 + 5 * i, g_))
            if st == 6:
                for j in range(2):
                    d = dma_ops(8, j); groups.append((BP + 2 + 12 * j, [('S', d[0]), ('S', d[1]), ('M', d[2])]))
            if st == 7:
                for j in range(2, 5):
                    d = dma_ops(8, j); groups.append((1 + 16 * (j - 2), [('S', d[0]), ('S', d[1]), ('M', d[2])]))
                for j in range(5, 9):
                    d = dma_ops(8, j); groups.append((56 + 20 * (j - 5), [('S', d[0]), ('S', d[1]), ('M', d[2])]))
            if st == 8:
                nv[34] += [('W', ('waitvm', ('dma', 8))), ('B', 's_barrier')]
        if extra_dma: groups += extra_dma(st, nv)
        place_groups(nv, groups)
        if hook: hook(st, nv, pk)
        for n in range(144):
            ci, rb, k = n // 36, (n % 36) // 9, n % 9
            c = C[ci]
            ks = c['ks0'] + k
            d = acc(c['setn'], c['bl'], c['mx'], rb)
            fr = AF0 + 4 * (((st * 4 + ci) * 9 + k) % NSL)
            srcc = '0' if ks == 0 else 'v[%d:%d]' % (d, d + 3)
            if ks == 0:
                for nd_ in pk.q:
                    o_ = Op(nd_.item[0] if isinstance(nd_.item, tuple) else nd_.item)
                    assert not ((o_.reads | o_.writes) & {('v', d + i) for i in range(4)}), 'GEGLU backlog overlaps new accumulation'
            a('v_mfma_f32_16x16x32_bf16 v[%d:%d], v[%d:%d], %s, %s' % (d, d + 3, fr, fr + 3, xfrag(rb, ks), srcc))
            fixed = sorted(nv[n], key=lambda f: {'D': 0, 'S': 1, 'M': 1, 'L': 1, 'X': 1, 'W': 2, 'B': 3, 'Z': 3, 'a': 4, 'T': 4}[f[0]])
            pk.fill(fixed)
        if stamp: stamp(a, st + 1)
        if 'geglu' in skip: continue
        if st < 8 and (st & 1): pk.push(geglu_pair(gs, st >> 1, stflags))
        if st == 8: pk.push(geglu_single(gs, stflags))
    if tail: pk.drain()
    return pk
```

```python
from asmlib import *
from common import *
from sched import Node, Packer, place_groups

V_LANE16 = 1
V_LANE8 = 8
DM = [2, 3, 10, 11, 12, 13, 14, 15, 5]
V2_RA = 6
V2_EW = 7
V2_T = 16
AF2 = 32
NSL2 = 12
ACC2 = 96
V2_ER = 168
HB0 = 0
EPI_LDS = 2 * SLOT

S_WD = 16
S_WS = 12
S_WV = 20
S2_T, S2_NT, S2_KS = 48, 49, 50
S2_DA, S2_DB = 51, 52
S2_M0 = 53
S2_H, S2_HS = 54, 55
S2_P = 56
S2_T1, S2_T2, S2_T3 = 57, 58, 59

def roles2(a):
    a('''s_and_b32 s46, s2, 7
s_lshr_b32 s47, s2, 3
s_and_b32 s%d, s46, 3
s_lshr_b32 s46, s46, 2
s_lshl_b32 s46, s46, 3
s_and_b32 s%d, s47, 7
s_add_u32 s%d, s%d, s46
s_lshr_b32 s%d, s47, 3''' % (S2_KS, S2_T, S2_T, S2_T, S2_NT))

EPI = [(2 * SLOT, 2 * SLOT + 2 * 9728)]
def epi_base(sr):
    return ['s_and_b32 s%d, s%d, 1' % (sr, S_WV), 's_mul_i32 s%d, s%d, 9728' % (sr, sr),
            's_cmp_ge_u32 s%d, 2\ns_cselect_b32 s59, %d, 0' % (S_WV, (EPI[0][1] - EPI[0][0]) & 0xffffffff),
            's_add_u32 s%d, s%d, s59' % (sr, sr), 's_add_u32 s%d, s%d, %d' % (sr, sr, EPI[0][0])]

def dm_calc(j, t, er=False):
    L = ['v_add_u32 v%d, %d, v0' % (t, 64 * j), 'v_mul_u32_u24 v%d, 3641, v%d' % (t + 1, t), 'v_lshrrev_b32 v%d, 16, v%d' % (t + 1, t + 1),
         'v_mul_u32_u24 v%d, 18, v%d' % (t + 2, t + 1), 'v_sub_u32 v%d, v%d, v%d' % (t + 2, t, t + 2)]
    if not er: L += ['v_mul_u32_u24 v%d, 1152, v%d' % (t + 3, t + 1), 'v_lshl_add_u32 v%d, v%d, 4, v%d' % (DM[j], t + 2, t + 3)]
    else: L += ['v_mul_u32_u24 v%d, 304, v%d' % (t + 3, t + 1), 'v_lshl_add_u32 v%d, v%d, 4, v%d' % (V2_ER + j, t + 2, t + 3)]
    return L

def setup2_vec(a):
    a('''v_and_b32 v16, 15, v0
v_lshrrev_b32 v17, 4, v0
v_lshrrev_b32 v18, 2, v16
v_lshl_add_u32 v18, v17, 2, v18
v_mul_u32_u24 v18, 288, v18
v_and_b32 v19, 3, v0
v_lshl_add_u32 v%d, v19, 3, v18
v_mul_u32_u24 v18, 304, v16
v_lshl_add_u32 v18, v17, 3, v18
%s
v_add_u32 v%d, s46, v18
v_lshlrev_b32 v%d, 3, v0''' % (V2_RA, '\n'.join(epi_base(46)), V2_EW, V_LANE8))

def epi_ops(t):
    L = []
    for j in range(9): L += dm_calc(j, t, er=True)
    L += epi_base(43)
    L += ['v_add_u32 v%d, s43, v%d' % (V2_ER + j, V2_ER + j) for j in range(9)]
    return L

def setup2_epi(a):
    for o in epi_ops(16): a(o)

def setup2(a):
    for j in range(9):
        for o in dm_calc(j, 16): a(o)
    setup2_vec(a); setup2_epi(a); setup2_scalar(a)

def setup2_scalar(a):
    roles2(a)
    if FLMAP[0]:
        a('''s_lshl_b32 s46, s%d, 2
s_mul_i32 s47, s%d, 36
s_add_u32 s46, s46, s47
s_mul_i32 s46, s46, 36864
s_mul_i32 s%d, s%d, 288
s_add_u32 s%d, s46, s%d
s_lshr_b32 s46, s%d, 1
s_mul_i32 s46, s46, 18
s_add_u32 s46, s46, 16
s_add_u32 s46, s46, s47
s_and_b32 s47, s%d, 1
s_add_u32 s46, s46, s47
s_mul_i32 s46, s46, 36864
s_add_u32 s%d, s46, s%d
s_mul_i32 s%d, s%d, 9216''' % (S_WV, S2_KS, S2_T1, S2_NT, S2_DA, S2_T1, S_WV, S_WV, S2_DB, S2_T1, S2_M0, S_WV))
    else: a('''s_lshr_b32 s46, s%d, 1
s_mul_i32 s46, s46, 9
s_and_b32 s47, s%d, 1
s_mul_i32 s47, s47, 5
s_add_u32 s46, s46, s47
s_mul_i32 s47, s%d, 36
s_add_u32 s46, s46, s47
s_mul_i32 s46, s46, 36864
s_mul_i32 s%d, s%d, 288
s_add_u32 s%d, s46, s%d
s_mul_i32 s46, s%d, 9
s_add_u32 s46, s46, 4
s_add_u32 s46, s46, s47
s_mul_i32 s46, s46, 36864
s_add_u32 s%d, s46, s%d
s_mul_i32 s%d, s%d, 9216''' % (S_WV, S_WV, S2_KS, S2_T1, S2_NT, S2_DA, S2_T1, S_WV, S2_DB, S2_T1, S2_M0, S_WV))
    a('''s_lshl_b32 s46, s%d, 3
s_lshl_b32 s47, s%d, 1
s_add_u32 s46, s46, s47
s_mul_i32 s47, s46, 144
s_mul_i32 s%d, s%d, 36
s_add_u32 s47, s47, s%d
s_lshl_b32 s%d, s47, 10
s_add_u32 s%d, s%d, %d
s_lshl_b32 s47, s46, 4
s_lshl_b32 s%d, s%d, 2
s_add_u32 s47, s47, s%d
s_lshl_b32 s%d, s47, 10
s_add_u32 s%d, s%d, %d''' % (S2_T, S_WV, S2_T1, S2_KS, S2_T1, S2_H, S2_H, S2_H, HF_BASE, S2_T1, S2_KS, S2_T1, S2_HS, S2_HS, S2_HS, HS_BASE))
    a('''s_lshl_b32 s46, s%d, 2
s_add_u32 s46, s46, s%d
s_mul_i32 s46, s46, %d
s_lshl_b32 s47, s%d, 7
s_lshl_b32 s%d, s%d, 5
s_add_u32 s47, s47, s%d
s_mul_i32 s47, s47, 288
s_add_u32 s46, s46, s47
s_add_u32 s%d, s46, %d''' % (S2_KS, S2_NT, P_TILE, S2_T, S2_T1, S_WV, S2_T1, S2_P, P_BASE))

FLMAP = [False]
def kkl(st, i):
    if FLMAP[0]: return 18 * (st & 1) + (st >> 1) + 4 * i if st < 8 else 16 + (i & 1) + 18 * (i >> 1)
    if st < 8: return 18 * (st & 1) + (st >> 1) + 9 * (i >> 1) + 5 * (i & 1)
    return 9 * i + 4

def dma2_ops(st, j, slot):
    if st < 8: base, off = S2_DA, (18 * (st & 1) + (st >> 1)) * 36864
    else: base, off = S2_DB, 0
    L = ['s_add_u32 s%d, s%d, %d' % (S2_T1, base, off)] if j == 0 else []
    return L + ['s_add_u32 m0, s%d, %d' % (S2_M0, slot * SLOT + j * 1024),
                ('buffer_load_dwordx4 v%d, s[%d:%d], s%d offen lds' % (DM[j], S_WD, S_WD + 3, S2_T1), ('dma2', st))]

def hfrag(st, i, rb):
    return HB0 + (st % 4) * 32 + (i * 2 + rb) * 4

def h_ops(st, i, rb, ldflags):
    r = hfrag(st, i, rb)
    if st < 8:
        return [('S', 's_add_u32 s%d, s%d, %d' % (S2_T2, S2_H, (rb * 144 + kkl(st, i)) * 1024)),
                ('L', ('buffer_load_dwordx4 a[%d:%d], v%d, s[%d:%d], s%d offen %s' % (r, r + 3, V_LANE16, S_WS, S_WS + 3, S2_T2, ldflags), ('h', st)))]
    return [('S', 's_add_u32 s%d, s%d, %d' % (S2_T2, S2_HS, (rb * 16 + i) * 1024)),
            ('L', ('buffer_load_dwordx2 a[%d:%d], v%d, s[%d:%d], s%d offen %s' % (r, r + 1, V_LANE8, S_WS, S_WS + 3, S2_T2, ldflags), ('h', st))),
            ('L', ('buffer_load_dwordx2 a[%d:%d], v%d, s[%d:%d], s%d offen offset:512 %s' % (r + 2, r + 3, V_LANE8, S_WS, S_WS + 3, S2_T2, ldflags), ('h', st)))]

def acc2(db, rb): return ACC2 + (db * 2 + rb) * 4

def read2_ops(db, i, F):
    r = AF2 + 4 * (F % NSL2)
    o = i * 9216 + db * 32
    return ['ds_read_b64_tr_b16 v[%d:%d], v%d offset:%d' % (r, r + 1, V2_RA, o),
            ('ds_read_b64_tr_b16 v[%d:%d], v%d offset:%d' % (r + 2, r + 3, V2_RA, o + 16 * 288), ('fr2', F))]

def put(a, item):
    if isinstance(item, tuple) and item[0] == 'waitvm': a.wait_vm(item[1])
    elif isinstance(item, tuple) and item[0] == 'waitlg': a.wait_lgkm(item[1])
    elif isinstance(item, tuple): a(item[0], tag=item[1])
    else: a(item)

def bump2(idx_next):
    d = (slot_of(idx_next) - slot_of(idx_next - 1)) * SLOT
    return 'v_add_u32 v%d, %d, v%d' % (V2_RA, d, V2_RA) if d > 0 else 'v_subrev_u32 v%d, %d, v%d' % (V2_RA, -d, V2_RA)

def place2(nv, groups):
    ptr = 0
    for want, items in sorted(groups, key=lambda g: g[0]):
        ptr = max(ptr, want)
        for cls, it in items:
            while any(c in 'MLBZX' for c, _ in nv[ptr]) or sum(1 for c, _ in nv[ptr] if c in 'SW') >= 1 or sum(1 for c, _ in nv[ptr] if c == 'D') > 1:
                ptr += 1
            nv[ptr].append((cls, it)); ptr += 1

def prologue2(a, slot0, ldflags, dma=True):
    if dma:
        for st in range(3):
            for j in range(9):
                for o in dma2_ops(st, j, slot_of(slot0 + st)): put(a, o)
    for st in range(2):
        for i in range(4):
            for rb in range(2):
                for c, o in h_ops(st, i, rb, ldflags): put(a, o)

def emit_phase2(a, slot0=0, ldflags='sc1', stamp=None, skip=(), pre_stage=None, bp=61, hdist=2):
    if slot_of(slot0): a('v_add_u32 v%d, %d, v%d' % (V2_RA, slot_of(slot0) * SLOT, V2_RA))
    a.wait_vm(('dma2', 0))
    a('s_barrier')
    if stamp: stamp(a, 0)
    for g in range(2):
        for i in range(4):
            for o in read2_ops(g, i, g * 4 + i): put(a, o)
    for st in range(9):
        slot = slot0 + st
        nv = [[] for _ in range(72)]
        BP = bp
        for g in range(2, 9):
            for i in range(4):
                F = (st * 9 + g) * 4 + i
                for e, o in enumerate(read2_ops(g, i, F)): nv[8 * (g - 2) + 2 * i + e].append(('D', o))
        if st < 8:
            for g in range(2):
                for i in range(4):
                    F = ((st + 1) * 9 + g) * 4 + i
                    for e, o in enumerate(read2_ops(g, i, F)): nv[BP + 1 + 4 * g + i].append(('D', o))
        for db in range(9):
            F = (st * 9 + db) * 4 + 3
            if db: nv[8 * db - 1].append(('W', ('waitlg', ('fr2', F))))
        if st < 8:
            nv[71].append(('W', ('waitlg', ('fr2', ((st + 1) * 9) * 4 + 3))))
            nv[BP - 1].append(('a', bump2(slot + 1)))
            nv[BP] += [('W', ('waitlg', ('fr2', (st * 9 + 8) * 4 + 3))), ('W', ('waitvm', ('dma2', st + 1))), ('B', 's_barrier')]
        groups = []
        if st + 3 < 9 and 'dma' not in skip:
            for j in range(9):
                o = dma2_ops(st + 3, j, slot_of(slot + 3))
                groups.append((1 + (j * 56) // 9, [('S', x) for x in o[:-1]] + [('L', o[-1])]))
        hw = 0
        if pre_stage: hw = pre_stage(st, nv, groups) or 0
        if st + hdist < 9 and 'h' not in skip:
            for i in range(4):
                for rb in range(2):
                    groups.append((hw + 3 + ((i * 2 + rb) * (56 - hw)) // 8, h_ops(st + hdist, i, rb, ldflags)))
        place2(nv, groups)
        for n in range(72):
            db, rb, i = n // 8, (n % 8) // 4, n % 4
            d = acc2(db, rb)
            fr = AF2 + 4 * (((st * 9 + db) * 4 + i) % NSL2)
            h = hfrag(st, i, rb)
            srcc = '0' if (st == 0 and i == 0) else 'v[%d:%d]' % (d, d + 3)
            a('v_mfma_f32_16x16x32_bf16 v[%d:%d], v[%d:%d], a[%d:%d], %s' % (d, d + 3, fr, fr + 3, h, h + 3, srcc))
            for c, o in sorted(nv[n], key=lambda f: {'D': 1, 'S': 0, 'M': 2, 'L': 2, 'X': 2, 'W': 3, 'B': 4, 'Z': 4, 'a': 5, 'T': 5}[f[0]]): put(a, o)
        if stamp: stamp(a, st + 1)

def epilogue2(a, stflags='sc1'):
    for db in range(9):
        for rb in range(2):
            d = acc2(db, rb); t = V2_T + 2 * ((db * 2 + rb) % 8)
            a('v_cvt_pk_bf16_f32 v%d, v%d, v%d\nv_cvt_pk_bf16_f32 v%d, v%d, v%d' % (t, d, d + 1, t + 1, d + 2, d + 3))
            a('ds_write_b64 v%d, v[%d:%d] offset:%d' % (V2_EW, t, t + 1, rb * 16 * 304 + db * 32), tag='pw')
    a.wait_lgkm('pw')
    for j in range(9):
        a('ds_read_b128 v[%d:%d], v%d' % (AF2 + 4 * j, AF2 + 4 * j + 3, V2_ER + j))
    for j in range(9):
        a('s_add_u32 s%d, s%d, %d' % (S2_T1, S2_P, j * 1024))
        a('buffer_store_dwordx4 v[%d:%d], v%d, s[%d:%d], s%d offen %s' % (AF2 + 4 * j, AF2 + 4 * j + 3, V_LANE16, S_WS, S_WS + 3, S2_T1, stflags), tag='pst')


V2_EC = 168
V2_RAB = 169
V2_RC = 170
S2_PC = 83
RB0 = 212
EPW = 10752

def epi_base2(sr):
    return ['s_and_b32 s%d, s%d, 1' % (sr, S_WV), 's_mul_i32 s%d, s%d, %d' % (sr, sr, EPW),
            's_cmp_ge_u32 s%d, 2\ns_cselect_b32 s59, %d, 0' % (S_WV, (EPI[0][1] - EPI[0][0]) & 0xffffffff),
            's_add_u32 s%d, s%d, s59' % (sr, sr), 's_add_u32 s%d, s%d, %d' % (sr, sr, EPI[0][0])]

def split_addr_ops(t):
    L = epi_base2(43)
    L += ['v_and_b32 v%d, 15, v0' % t, 'v_lshrrev_b32 v%d, 4, v0' % (t + 1), 'v_mul_u32_u24 v%d, 144, v%d' % (V2_EW, t),
          'v_lshl_add_u32 v%d, v%d, 3, v%d' % (V2_EW, t + 1, V2_EW), 'v_add_u32 v%d, s43, v%d' % (V2_EW, V2_EW),
          'v_mul_u32_u24 v%d, 48, v%d' % (V2_EC, t), 'v_lshl_add_u32 v%d, v%d, 3, v%d' % (V2_EC, t + 1, V2_EC), 'v_add_u32 v%d, s43, v%d' % (V2_EC, V2_EC),
          'v_lshrrev_b32 v%d, 3, v0' % t, 'v_mul_u32_u24 v%d, 144, v%d' % (V2_RAB, t), 'v_and_b32 v%d, 7, v0' % t,
          'v_lshl_add_u32 v%d, v%d, 4, v%d' % (V2_RAB, t, V2_RAB), 'v_add_u32 v%d, s43, v%d' % (V2_RAB, V2_RAB),
          'v_lshrrev_b32 v%d, 1, v0' % t, 'v_mul_u32_u24 v%d, 48, v%d' % (V2_RC, t), 'v_and_b32 v%d, 1, v0' % t,
          'v_lshl_add_u32 v%d, v%d, 4, v%d' % (V2_RC, t, V2_RC), 'v_add_u32 v%d, s43, v%d' % (V2_RC, V2_RC)]
    return L

def split_scalar(a):
    a('''s_lshl_b32 s46, s%d, 7
s_lshl_b32 s47, s%d, 5
s_add_u32 s46, s46, s47
s_lshl_b32 s47, s%d, 11
s_add_u32 s46, s46, s47
s_mul_i32 s45, s%d, %d
s_lshl_b32 s47, s46, 7
s_add_u32 s47, s47, s45
s_add_u32 s%d, s47, %d
s_lshl_b32 s47, s46, 5
s_add_u32 s47, s47, s45
s_add_u32 s%d, s47, %d''' % (S2_T, S_WV, S2_NT, S2_KS, P_KS, S2_P, P_BASE, S2_PC, P_BASE + 2 * P_PART))

def split_part(part, stflags='sc1'):
    L = []
    dbs = range(4 * part, 4 * part + 4) if part < 2 else (8,)
    for k, db in enumerate(dbs):
        for rb in range(2):
            d = acc2(db, rb); t = V2_T + 2 * ((2 * k + rb) % 8)
            L += [('a', 'v_cvt_pk_bf16_f32 v%d, v%d, v%d' % (t, d, d + 1)), ('a', 'v_cvt_pk_bf16_f32 v%d, v%d, v%d' % (t + 1, d + 2, d + 3))]
            if part < 2: L.append(('X', ('ds_write_b64 v%d, v[%d:%d] offset:%d' % (V2_EW, t, t + 1, part * 4608 + rb * 16 * 144 + k * 32), ('pw', part))))
            else: L.append(('X', ('ds_write_b64 v%d, v[%d:%d] offset:%d' % (V2_EC, t, t + 1, 9216 + rb * 16 * 48), ('pw', part))))
    L.append(('W', ('waitlg', ('pw', part))))
    n = 4 if part < 2 else 1
    for i in range(n):
        r = RB0 + 4 * i if part < 2 else RB0 + 16
        if part < 2: L.append(('D', 'ds_read_b128 v[%d:%d], v%d offset:%d' % (r, r + 3, V2_RAB, part * 4608 + i * 8 * 144)))
        else: L.append(('D', 'ds_read_b128 v[%d:%d], v%d offset:9216' % (r, r + 3, V2_RC)))
    for i in range(n):
        r = RB0 + 4 * i if part < 2 else RB0 + 16
        if part < 2: L.append(('S', 's_add_u32 s%d, s%d, %d' % (S2_T1, S2_P, part * P_PART + i * 1024)))
        else: L.append(('S', 's_mov_b32 s%d, s%d' % (S2_T1, S2_PC)))
        L.append(('X', ('buffer_store_dwordx4 v[%d:%d], v%d, s[%d:%d], s%d offen %s' % (r, r + 3, V_LANE16, S_WS, S_WS + 3, S2_T1, stflags), 'pst')))
    return L
```

```python
import sys, re; sys.path.insert(0, 'gen')
from asmlib import *; from common import *
import phase1 as P1, phase2 as P2, abranch as AB
from sched import Node, nodes_from_ops

HEADER = open('cdna_kernels/' + KN + '.s.ref').read().split('; Override launch geometry')[0]
LDS_BYTES = 163840
RAW = 4 * SLOT
FU = FLAG_BASE
FH1 = FU + 4096
FH2 = FH1 + 4096
FH3 = FH2 + 4096
FV = FH3 + 4096
FP = FV + 4096
EPOCH = FP + 32768
S_NONCE, S_SPIN = 60, 61
S_FHP, S_FHC, S_UO, S_FPP, S_FPC = 31, 32, 33, 34, 35
S_HPF = 76
S_KS2S, S_NT = 88, 89
S_PUB = 77
S_OWN = 3
SPIN = 300000

def put(a, item):
    if callable(item): item(a)
    elif isinstance(item, list):
        for x in item: put(a, x)
    elif isinstance(item, tuple) and item[0] == 'waitvm': a.wait_vm(item[1])
    elif isinstance(item, tuple) and item[0] == 'waitlg': a.wait_lgkm(item[1])
    elif isinstance(item, tuple): a(item[0], tag=item[1])
    else: a(item)
P1.put2 = put; P1.put = put; P2.put = put

class Fused:
    def __init__(self, stamps=False, opt=None):
        self.a = Asm(); self.cold = Asm(); self.nlab = 0; self.stamps = stamps; self.marks = []; self.opt = opt or {}
    def mark(self, name):
        if not self.stamps: return
        i = len(self.marks); self.marks.append(name)
        assert i < 60
        self.a('s_memtime s[98:99]')
        self.a('s_waitcnt lgkmcnt(0)')
        self.a('v_mov_b32 v%d, s98' % self.stamp_tmp)
        self.a('s_mov_b64 exec, 1')
        self.a('buffer_store_dword v%d, v1, s[12:15], s96 offen offset:%d' % (self.stamp_tmp, 4 * i))
        self.a('s_mov_b64 exec, -1')
    def publish(self, soff, vtmp, add=0, base2=False):
        if base2: return ['s_add_u32 s43, s%d, 4096' % soff] + self.publish(43, vtmp)
        if self.opt.get('pub_all'):
            return ['v_mov_b32 v%d, s%d' % (vtmp, S_NONCE), 's_mov_b64 exec, 1',
                    'buffer_store_dword v%d, v1, s[12:15], s%d offen offset:%d sc1' % (vtmp, soff, add), 's_mov_b64 exec, -1']
        return ['v_mov_b32 v%d, s%d' % (vtmp, S_NONCE), 's_cmp_eq_u32 s20, 0', 's_cselect_b32 s%d, s%d, 0x7ff00000' % (S_PUB, soff), 's_mov_b64 exec, 1',
                'buffer_store_dword v%d, v1, s[12:15], s%d offen offset:%d sc1' % (vtmp, S_PUB, add), 's_mov_b64 exec, -1']
    def flags(self, kind, r, soff, vaddr, tag, add=0):
        self.nlab += 1
        L, R = 'L_poll%d' % self.nlab, 'L_back%d' % self.nlab
        if kind == 'one': test = ['v_cmp_eq_u32_e64 s[62:63], s%d, v%d' % (S_NONCE, r)]
        else:
            test = ['v_xor_b32 v%d, s%d, v%d' % (r + i, S_NONCE, r + i) for i in range(4)] + \
                   ['v_or3_b32 v%d, v%d, v%d, v%d' % (r, r, r + 1, r + 2), 'v_or_b32 v%d, v%d, v%d' % (r, r, r + 3), 'v_cmp_eq_u32_e64 s[62:63], 0, v%d' % r]
        ld = ('buffer_load_dword v%d' % r if kind == 'one' else 'buffer_load_dwordx4 v[%d:%d]' % (r, r + 3)) + \
             ', v%d, s[12:15], s%d offen offset:%d sc1' % (vaddr, soff, add)
        c = self.cold
        c(L + ':'); c('s_mov_b32 s%d, %d' % (S_SPIN, SPIN))
        c(L + '_loop:'); c(ld); c('s_waitcnt vmcnt(0)')
        for o in test: c(o)
        c('s_nop 1\ns_cmp_eq_u64 s[62:63], exec\ns_cbranch_scc1 %s\ns_sleep %d\ns_sub_u32 s%d, s%d, 1\ns_cmp_lg_u32 s%d, 0\ns_cbranch_scc1 %s_loop\ns_branch %s' % (R, self.opt.get('sleep', 1), S_SPIN, S_SPIN, S_SPIN, L, R))
        return (ld, tag), [('waitvm', tag)] + test + ['s_cmp_eq_u64 s[62:63], exec', 's_cbranch_scc0 ' + L, R + ':']

    @staticmethod
    def const_cut(cs, at):
        regs = {('x', 'vcc')} | {('s', i) for i in range(40, 50)}
        for i in range(min(at, len(cs.ops)), len(cs.ops) + 1):
            live = False; seen = set()
            for o in cs.ops[i:]:
                if (o.reads & regs) - seen: live = True; break
                seen |= o.writes & regs
                if seen == regs: break
            if not live: return i
        return len(cs.ops)
    def prologue_b(self, a, opt, A1, A2, pre, PKG):
        flat = lambda G: [[o for c_, o in g] for g in G]
        n_lo = opt.get('xpf_lo', 44)
        A1.loads(a, t=89)
        a('s_mov_b32 s46, %d\nv_mov_b32 v95, 0' % EPOCH)
        a('buffer_load_dword v94, v95, s[12:15], s46 offen sc1', tag='epoch')
        for op in pre.ops: a.add(op)
        self.mark('issued')
        cs = Asm(); A1.consts(cs)
        cut = self.const_cut(cs, opt.get('b2_at', 120))
        for op in cs.ops[:cut]: a.add(op)
        b2_ = Asm()
        P1.x_prefetch(b2_, 0, ('hi', n_lo)); P1.x_prefetch(b2_, 1)
        A1.loads_w(b2_)
        for op in b2_.ops: a.add(op)
        for g in P1.ds_prefetch(0):
            for c_, o in g: put(a, o)
        for op in cs.ops[cut:]: a.add(op)
        a.wait_vm('epoch')
        a('v_readfirstlane_b32 s%d, v94' % S_NONCE)
        a('s_nop 0\ns_mul_i32 s%d, s%d, 0x19660d\ns_add_u32 s%d, s%d, 0x3c6ef35f' % ((S_NONCE,) * 4))
        self.mark('consts')
        b = Asm(); A1.s_rl = 40
        A1.compute(b, gate_to=None, stflags=opt.get('ust', 'sc1'))
        first, subs = P1.x_substeps()
        win = [first[i:i + 3] for i in range(0, len(first), 3)]
        g00 = flat(P1.ds_dma(0, 0))
        inexec = False
        for i_, op in enumerate(b.ops):
            a.add(op)
            if op.kind == 'salu' and ('x', 'exec') in op.writes: inexec = not op.text.endswith('-1')
            if inexec: continue
            if i_ >= opt.get('g_at', 40) and g00 and (i_ - opt.get('g_at', 40)) % opt.get('g_step', 12) == 0:
                for o in g00.pop(0): put(a, o)
            elif i_ >= opt.get('win_at', 170) and win and i_ % opt.get('win_step', 7) == 0:
                for o in win.pop(0): put(a, o)
        for x_ in g00 + win:
            for o in x_: put(a, o)
        a('s_barrier')
        self.mark('a1done')
        pc = Asm()
        pc('v_lshlrev_b32 v172, 4, v0\nv_add_u32 v172, %d, v172' % RAW)
        wr = lambda r, n: pc('ds_write_b128 v172, v[%d:%d] offset:%d' % (r, r + 3, 1024 * PKG[n]))
        wr(A1.b1c, 'cs0'); wr(A1.b1s, 'sn0')
        A2.float_consts(pc, 104, 128, 132, 136, 140)
        for r, n in ((128, 'fre'), (132, 'fim'), (136, 'tc'), (140, 'ts')): wr(r, n)
        pq = list(pc.ops)
        nsub = len(subs)
        u00 = flat(P1.ds_dma(0, 1))
        tail = u00 + flat(P1.ds_prefetch(1))
        t0 = nsub - 9
        for i, r_ in enumerate(tail): subs[t0 + min(i * 9 // len(tail), 8)] += r_
        per = -(-len(pq) // (nsub - 10))
        for i_, st_ in enumerate(subs):
            if i_ == t0:
                for o in pq: a.add(o)
                pq = []
                self.mark('xlast')
            for o in st_: put(a, o)
            for o in pq[:per]: a.add(o)
            pq = pq[per:]
        a.wait_lgkm(('xr', 35))
        a('s_barrier')
        self.mark('xdone')
        for d_ in flat(P1.ds_dma(1, 0)) + flat(P1.ds_dma(1, 1)):
            for o in d_: put(a, o)
            if opt.get('d01_head', 4) is not None and d_ is None: pass
        a.wait_vm(('ds', 0))
        a('s_barrier')
        self.mark('p1start')
    def build(self):
        a, opt = self.a, self.opt
        self.stamp_tmp = 83
        a('''s_load_dwordx16 s[64:79], s[0:1], 0
s_load_dwordx2 s[80:81], s[0:1], %d
s_load_dwordx2 s[82:83], s[0:1], %d''' % (KA_OUT, KA_WS))
        if opt.get('codepf', True):
            a('''s_getpc_b64 s[44:45]
L_pc:
s_lshr_b32 s46, s2, 3
s_lshl_b32 s46, s46, 11
v_lshrrev_b32 v248, 6, v0
v_and_b32 v249, 3, v0
v_lshl_add_u32 v248, v248, 2, v249
v_lshl_add_u32 v248, v248, 7, s46
v_min_u32 v248, L_done - L_pc, v248
v_mov_b32 v249, s45
v_add_co_u32 v248, vcc, s44, v248
v_addc_co_u32 v249, vcc, 0, v249, vcc
global_load_dword v247, v[248:249], off''')
        if self.stamps or opt.get('dbgclk'): a('s_memrealtime s[90:91]\ns_memtime s[92:93]')
        P1.roles(a)
        a('''s_waitcnt lgkmcnt(0)
s_mov_b32 s8, s64
s_mov_b32 s9, s65
s_mov_b32 s10, %d
s_mov_b32 s11, 0x20000
s_mov_b32 s12, s82
s_mov_b32 s13, s83
s_mov_b32 s14, %d
s_mov_b32 s15, 0x20000
s_cmp_ge_u32 s20, 2
s_cselect_b32 s84, s68, s66
s_cselect_b32 s85, s69, s67
s_mov_b32 s86, %d
s_mov_b32 s87, 0x20000
s_cselect_b32 s4, s74, s72
s_cselect_b32 s5, s75, s73
s_mov_b32 s6, %d
s_mov_b32 s7, 0x20000
s_mov_b32 s16, s76
s_mov_b32 s17, s77
s_mov_b32 s18, %d
s_mov_b32 s19, 0x20000
s_mov_b32 s64, s78
s_mov_b32 s65, s79
s_mov_b32 s66, 1152
s_mov_b32 s67, 0x20000
v_lshlrev_b32 v1, 4, v0''' % (NB_X, WS_BYTES, NB_WRI, NB_W, NB_W))
        if self.stamps:
            a('s_lshl_b32 s96, s2, 2\ns_add_u32 s96, s96, s20\ns_lshl_b32 s96, s96, 8\ns_add_u32 s96, s96, %d' % (STAMP_BASE + 65536))
        if opt.get('fl', True):
            a('s_mov_b32 s68, s72\ns_mov_b32 s69, s73\ns_mov_b32 s70, %d\ns_mov_b32 s71, 0x20000\ns_mov_b32 s72, s74\ns_mov_b32 s73, s75\ns_mov_b32 s74, %d\ns_mov_b32 s75, 0x20000' % (NB_W, NB_W))
        a('s_lshl_b32 s%d, s21, 5\ns_add_u32 s%d, s%d, s22' % (S_OWN, S_OWN, S_OWN))
        P1.FUSED[0] = True
        FLM = opt.get('fl', True)
        P1.FL[0] = FLM; P2.FLMAP[0] = FLM
        OB = opt.get('order', 'B') == 'B'
        RING[0] = opt.get('ring', [0, 2, 3, 1]) if not OB else [0, 1, 2, 3]
        P1.DS_SLOTS.update({0: (0, 2), 1: (3, 1)} if not OB else {0: (0, 1), 1: (2, 3)})
        P2.EPI[0] = (slot_of(15) * SLOT, slot_of(14) * SLOT)
        P1.x_prefetch(a, 0, ('lo', opt.get('xpf_lo', 44)) if OB else None)
        A1 = AB.A1(16, 96, SLOT, S_OWN, None, s_ax=8, s_gw=64, s_wt=84, wl=None)
        A1.with_gate = False
        A2 = AB.A2(128, 16, 0, 2, wbase=240, tbase=244)
        A2.dr, A2.di, A2.bf = 128, 140, 232
        pre = Asm()
        if FLM: P1.setup_rest_fl(pre)
        else:
            P1.setup_rest(pre)
            P1.setup_pf(pre)
        P1.setup_x(pre)
        P2.setup2_scalar(pre)
        SPL = opt.get('split', True)
        if SPL: P2.split_scalar(pre)
        pre('''s_lshl_b32 s44, s21, 2
s_lshr_b32 s45, s22, 3
s_add_u32 s44, s44, s45
s_lshl_b32 s44, s44, 7
s_and_b32 s45, s22, 7
s_lshl_b32 s45, s45, 2
s_add_u32 s44, s44, s45
s_add_u32 s%d, s44, %d
s_lshr_b32 s44, s%d, 1
s_lshl_b32 s44, s44, 2
s_add_u32 s44, s44, s%d
s_lshl_b32 s44, s44, 7
s_add_u32 s%d, s44, %d
s_lshl_b32 s44, s%d, 11
s_lshl_b32 s45, s%d, 9
s_add_u32 s44, s44, s45
s_lshl_b32 s45, s%d, 7
s_add_u32 s44, s44, s45
s_add_u32 s%d, s44, %d
s_lshr_b32 s44, s3, 4
s_lshl_b32 s44, s44, 11
s_add_u32 s%d, s44, %d''' % (S_FHP, FH1, P2.S2_T, P2.S2_KS, S_FHC, FH1, P2.S2_T, P2.S2_NT, P2.S2_KS, S_FPP, FP, S_FPC, FP))
        pre('''s_mov_b32 s%d, s%d
s_mov_b32 s%d, s%d
s_lshr_b32 s44, s%d, 1
s_mul_i32 s44, s44, 9
s_and_b32 s45, s%d, 1
s_mul_i32 s45, s45, 5
s_add_u32 s44, s44, s45
s_lshl_b32 s44, s44, 10
s_add_u32 s%d, s44, s%d''' % (S_KS2S, P2.S2_KS, S_NT, P2.S2_NT, P2.S2_NT, P2.S2_NT, S_HPF, P2.S2_H))
        if FLM: pre('s_lshl_b32 s44, s%d, 12\ns_add_u32 s%d, s44, s%d' % (P2.S2_NT, S_HPF, P2.S2_H))
        for j in range(8):
            for o in P2.dm_calc(j, 83): pre(o)
        A3 = AB.A3(16, 0, S_OWN, 60000, vreg=240, abase=177, tbase=None)
        PKG = {'fre': 0, 'fim': 1, 'tc': 2, 'ts': 3, 'r8': 4, 'cs0': 5, 'cs1': 6, 'sn0': 7, 'sn1': 8, 'twc0': 9, 'twc1': 10, 'tws0': 11, 'tws1': 12, 'ab0': 13, 'ab1': 14}
        def park_stream():
            p3 = Asm()
            p3('v_lshlrev_b32 v84, 4, v0\nv_add_u32 v84, %d, v84' % RAW)
            w3 = lambda r, n: p3('ds_write_b128 v84, v[%d:%d] offset:%d' % (r, r + 3, 1024 * PKG[n]))
            def done(a_, n):
                if n == 'r8': w3(184, 'r8')
                elif n.startswith('cs'): w3(188, n); w3(192, 'sn' + n[2])
                elif n.startswith('tw'): w3(196, 'twc' + n[2]); w3(200, 'tws' + n[2])
                else: w3(204, n)
            A3.wide = False
            A3.float_consts(p3, 80, 160, 184, 188, 192, 196, 200, 204, done=done, skip0=True)
            return nodes_from_ops(p3.ops)
        if OB: self.prologue_b(a, opt, A1, A2, pre, PKG)
        else:
            mid = Asm()
            P1.x_prefetch(mid, 1)
            if opt.get('tlb', False):
                mid('v_lshlrev_b32 v246, 21, v0\ns_mov_b64 exec, 7')
                mid('buffer_load_dword v245, v246, s[4:7], 0 offen', tag='pf')
                mid('buffer_load_dword v245, v246, s[16:19], 0 offen', tag='pf')
                mid('s_mov_b64 exec, -1')
            mid('s_mov_b32 s46, %d\nv_mov_b32 v95, 0' % EPOCH)
            mid('buffer_load_dword v94, v95, s[12:15], s46 offen sc1', tag='epoch')
            for op in mid.ops: a.add(op)
            if opt.get('a1_early', False):
                ld0 = Asm(); A1.loads(ld0); A1.loads_w(ld0)
                for op in ld0.ops: a.add(op)
            for op in pre.ops: a.add(op)
            if FLM:
                for ds_ in opt.get('fl_pf_first', (0,)):
                    for g in P1.ds_prefetch(ds_):
                        for c_, o in g: put(a, o)
            elif opt.get('pf0_first', False):
                for s_ in range(opt.get('pf0_first')):
                    for g in P1.w_prefetch(s_):
                        for c_, o in g: put(a, o)
            self.mark('issued')
            cs = Asm(); A1.consts(cs)
            first, subs = P1.x_substeps()
            cut = self.const_cut(cs, opt.get('xwin_at', 260))
            for op in cs.ops[:cut]: a.add(op)
            if opt.get('rows_mid', False):
                lm = Asm(); A1.loads(lm, t=89)
                for op in lm.ops: a.add(op)
            for o in first: put(a, o)
            for s_ in range(opt.get('pf_after_win', 0)):
                for g in P1.w_prefetch(s_):
                    for c_, o in g: put(a, o)
            for op in cs.ops[cut:]: a.add(op)
            self.mark('consts')
            pc = Asm()
            pc('v_lshlrev_b32 v172, 4, v0\nv_add_u32 v172, %d, v172' % RAW)
            wr = lambda r, n: pc('ds_write_b128 v172, v[%d:%d] offset:%d' % (r, r + 3, 1024 * PKG[n]))
            A2.float_consts(pc, 104, 128, 132, 136, 140)
            for r, n in ((128, 'fre'), (132, 'fim'), (136, 'tc'), (140, 'ts')): wr(r, n)
            wr(A1.b1c, 'cs0'); wr(A1.b1s, 'sn0')
            pq = list(pc.ops)
            ld = Asm()
            if not opt.get('a1_early', False):
                if not opt.get('rows_mid', False): A1.loads(ld)
                A1.loads_w(ld)
            nsub = len(subs)
            xsubs_plain = [list(x) for x in subs]
            mode = opt.get('w0_mode', 'bulk')
            tail_r = [[o for o in ld.ops]]
            flat = lambda G: [[o for c_, o in g] for g in G]
            if FLM:
                for ds_ in opt.get('fl_pf_riders', ()): tail_r += flat(P1.ds_prefetch(ds_))
                tail_r += flat(P1.ds_dma(0, 0))
                for ds_ in opt.get('fl_pf_riders2', (1,)): tail_r += flat(P1.ds_prefetch(ds_))
                for i, r_ in enumerate(tail_r): subs[nsub - 9 + min(i * 9 // len(tail_r), 8)] += r_
            else:
                if mode == 'bulk':
                    w0_all = [P1.dma_ops(0, j) for j in range(9)]
                    tail_r += [w0_all[0] + w0_all[1]] + w0_all[2:]
                elif mode in ('pf', 'late'):
                    for s_ in range(opt.get('pf0_first', 0), opt.get('n_pf', 2)):
                        for g in P1.w_prefetch(s_): tail_r.append([o for c_, o in g])
                for i, r_ in enumerate(tail_r): subs[nsub - 9 + min(i, 8)] = subs[nsub - 9 + min(i, 8)] + r_
                if mode == 'bulk' and opt.get('pf1', True) and opt.get('pf0_first', 0) < 2 and opt.get('pf_after_win', 0) < 2:
                    for s_ in opt.get('pf_riders', (1, 2)):
                        subs[nsub - 1] = subs[nsub - 1] + [o for g in P1.w_prefetch(s_) for c_, o in g]
            per = -(-len(pq) // (nsub - 10))
            xt = opt.get('x_tail_in_a1', False)
            for i_, st_ in enumerate(subs):
                if i_ == nsub - 9:
                    for o in pq: a.add(o)
                    pq = []
                    self.mark('xlast')
                    if xt:
                        for r_ in tail_r:
                            for o in r_:
                                if isinstance(o, Op): a.add(o)
                                else: put(a, o)
                        break
                if opt.get('xmarks') and i_ in (1, 28, 55): self.mark('x%d' % i_)
                for o in st_:
                    if isinstance(o, Op): a.add(o)
                    else: put(a, o)
                for o in pq[:per]: a.add(o)
                pq = pq[per:]
            xrest = [list(x) for x in xsubs_plain[nsub - 9:]] if xt else []
            if (FLM or opt.get('in_a1', (1, 2))) and not xt:
                a.wait_lgkm(('xr', 35))
                a('s_barrier')
            self.mark('xdone')
            a.wait_vm('epoch')
            a('v_readfirstlane_b32 s%d, v94' % S_NONCE)
            a('s_nop 0\ns_mul_i32 s%d, s%d, 0x19660d\ns_add_u32 s%d, s%d, 0x3c6ef35f' % ((S_NONCE,) * 4))
            b = Asm()
            def gate_to(a_, t):
                a_('''s_lshl_b32 s46, s3, 5
s_lshl_b32 s47, s20, 3
s_add_u32 s46, s46, s47
s_add_u32 s46, s46, %d
s_mov_b64 exec, 1
buffer_store_dwordx2 v[%d:%d], v1, s[12:15], s46 offen
s_mov_b64 exec, -1''' % (G_BASE, t, t + 1))
            A1.s_rl = 40
            A1.compute(b, gate_to=None, stflags=opt.get('ust', 'sc1'))
            if opt.get('ust_none'): b.ops = [o for o in b.ops if o.tag != 'ust']
            if FLM:
                w0 = flat(P1.ds_dma(0, 1)) + flat(P1.ds_dma(1, 0))
                if not opt.get('fl_in_a1', True):
                    for d_ in w0:
                        for o in d_: put(a, o)
                    w0 = []
            else:
                w0 = [P1.dma_ops(0, j) for j in range(9)] if mode != 'bulk' else []
                for s_ in opt.get('in_a1', (1, 2)): w0 += [P1.dma_ops(s_, j) for j in range(9)]
            w0at = opt.get('w0_at', 60) if mode != 'late' else 10 ** 6; w0step = opt.get('w0_step', 16)
            inexec = False
            nbar = 0
            for i_, op in enumerate(b.ops):
                if opt.get('a1marks') and op.text == 's_barrier':
                    nbar += 1; self.mark('b%dpre' % nbar)
                a.add(op)
                if opt.get('a1marks') and op.text == 's_barrier': self.mark('b%dpost' % nbar)
                if opt.get('a1marks') and i_ in (30, 120): self.mark('a1_%d' % i_)
                if op.text.startswith('s_mov_b64 exec, 1'): inexec = True
                if op.text.startswith('s_mov_b64 exec, -1'): inexec = False
                if xrest and not inexec and i_ % 12 == 11:
                    for o in xrest.pop(0): put(a, o)
                if i_ >= w0at and w0 and not inexec and (i_ - w0at) % w0step == 0:
                    for o in w0.pop(0): put(a, o)
            for st_ in xrest:
                for o in st_: put(a, o)
            if opt.get('a1marks'): self.mark('a1end')
            for d_ in w0:
                for o in d_: put(a, o)
            self.mark('a1done')
            a.wait_lgkm(('xr', 35))
            a('s_barrier')
            if FLM:
                for d_ in flat(P1.ds_dma(1, 1)):
                    for o in d_: put(a, o)
                a.wait_vm(('ds', 0))
            else:
                if opt.get('dma1_pro', True) and 1 not in opt.get('in_a1', (1, 2)):
                    for j in range(9):
                        for o in P1.dma_ops(1, j): put(a, o)
                for s_ in opt.get('pf_post', (3,)):
                    for g in P1.w_prefetch(s_):
                        for c_, o in g: put(a, o)
                a.wait_vm(('dma', 0))
            a('s_barrier')
            self.mark('p1start')
        P1.LANE8[0] = 4
        fu_ld, fu_chk = self.flags('four', 128, 42, 1, 'fu')
        fh_ld, fh_chk = self.flags('one', 224, S_FHC, 225, 'fh1')
        h2_ld, h2_chk = self.flags('one', 229, 42, 225, 'fh2')
        SA = lambda L: [('S' if x.startswith('s_') else 'a', x) for x in L]
        def hpf_addr(d, t):
            return ['v_bfe_u32 v%d, v0, 3, 1' % d, 'v_mul_u32_u24 v%d, %d, v%d' % (d, 144 * 1024, d), 'v_and_b32 v%d, 7, v0' % t,
                    'v_lshl_add_u32 v%d, v%d, 7, v%d' % (d, t, d), 'v_bfe_u32 v%d, v0, 4, 1' % t, 'v_mul_u32_u24 v%d, %d, v%d' % (t, 18 * 1024, t),
                    'v_add_u32 v%d, v%d, v%d' % (d, d, t), 'v_lshrrev_b32 v%d, 5, v0' % t, 'v_lshl_add_u32 v%d, v%d, 10, v%d' % (d, t, d)]
        WDPF = opt.get('wdpf', [4, 5, 6])
        P1.SPLIT8[0] = opt.get('split8', [(0, 5), (5, 9), (9, 9)])
        D2AT = opt.get('d2at', {0: 8, 1: 9, 2: 9})
        def old_riders(st, dist):
            g = []
            lead = opt.get('wpf_lead', 2)
            if lead and st + dist + lead <= 8 and st >= opt.get('wpf_from', 1):
                for i, grp in enumerate(P1.w_prefetch(st + dist + lead)): g.append((opt.get('wpf_pos', 6) + opt.get('wpf_step', 40) * i, grp))
            for st_, tg, pos_ in opt.get('pf_extra', [(0, 4, 30), (1, 5, 2)] if lead == 2 else []):
                if st == st_:
                    for i, grp in enumerate(P1.w_prefetch(tg)): g.append((pos_ + 40 * i, grp))
            if st == 0:
                if not opt.get('dma1_pro', True) and 1 not in opt.get('in_a1', (1, 2)):
                    for j in range(9):
                        d = P1.dma_ops(1, j); g.append((1 + 4 * j, [('S', d[0]), ('S', d[1]), ('M', d[2])]))
                if dist == 3 and 2 not in opt.get('in_a1', (1, 2)):
                    for j in range(9):
                        d = P1.dma_ops(2, j); g.append((opt.get('d2pos', 20) + 7 * j, [('S', d[0]), ('S', d[1]), ('M', d[2])]))
            P8 = opt.get('pf8', [])
            if st in P8: g.append((100, P1.w_prefetch(8)[P8.index(st)]))
            return g
        def extra(st, nv):
            g = []
            dist = opt.get('dist', 3)
            if FLM:
                for st_, tg, pos_ in opt.get('fl_pf', [(0, 2, 10), (1, 3, 10)]):
                    if st == st_:
                        for i, grp in enumerate(P1.ds_prefetch(tg)): g.append((pos_ + 40 * i, grp))
                P8 = opt.get('pf8', [1, 2, 3])
                if st in P8: g.append((opt.get('pf8_pos', 60), P1.w_prefetch(8)[P8.index(st)]))
            else:
                g += old_riders(st, dist)
            if st in WDPF:
                e = WDPF.index(st)
                pre = ['s_lshr_b32 s44, s2, 3', 's_lshl_b32 s44, s44, 2', 's_add_u32 s44, s44, s20', 's_mul_i32 s44, s44, 3', 's_add_u32 s44, s44, %d' % e,
                       's_mul_i32 s45, s44, 911', 's_lshr_b32 s45, s45, 16', 's_mul_i32 s43, s45, 72', 's_sub_u32 s44, s44, s43',
                       's_lshl_b32 s44, s44, 7', 's_mul_i32 s45, s45, %d' % (32 * 9216), 's_add_u32 s44, s44, s45',
                       's_mul_i32 s45, s%d, %d' % (S_KS2S, 1152 * 1152), 's_add_u32 s44, s44, s45']
                g.append((opt.get('wdpf_pos', 60) if st < 7 else 4, SA(pre) + [('L', ('buffer_load_dword v8, v5, s[16:19], s44 offen', 'pf'))]))
            for s_, at in D2AT.items():
                if at == st:
                    lo_, hi_ = {6: (64, 134), 7: (90, 136), 8: (30, 90)}[st]
                    for j in range(8):
                        o = P2.dma2_ops(s_, j, slot_of(9 + s_))
                        g.append((lo_ + (j * (hi_ - lo_)) // 8, [('S', x) for x in o[:-1]] + [('M', o[-1])]))
            if st == 7:
                g.append((60, [('W', ('waitvm', 'pf'))] + SA(P1.rs_ops(4)) + SA(['v_lshlrev_b32 v4, 3, v0'])))
            if st == 8:
                g.append((0, SA(['s_mov_b32 s42, %d' % FU]) + [('L', fu_ld)]))
                g.append((10, SA(A2.u_base_ops(S_UO))))
                g.append((opt.get('fu_pos', 76), [('Z', fu_chk)]))
                for i_, grp in enumerate(A2.u_load_ops(S_UO)):
                    g.append((opt.get('fu_pos', 76) + 4 + 6 * i_, [('S', grp[0]), ('L', grp[1])]))
            return g
        def touches(pk, lo, hi):
            for n in pk.q:
                o = Op(n.item[0] if isinstance(n.item, tuple) else n.item)
                if (o.reads | o.writes) & {('v', i) for i in range(lo, hi)}: return True
            return False
        def stores_done(pk, p):
            def f(a_):
                if opt.get('hst') == 'none': return
                assert not any(isinstance(n.item, tuple) and n.item[1] == ('hst', p) for n in pk.q), 'stores of pair %d not yet issued' % p
                a_.wait_vm(('hst', p))
            return f
        SP = [84, 85, 86, 87, 94, 95, 97, 100]
        IM = opt.get('intra')
        def hook(st, nv, pk):
            if st == 0: pk.push(park_stream()); pk.chain = True
            if st == 2:
                pk.chain = False
                assert not any(n.cls == 'X' and 'ds_write' in str(n.item) for n in pk.q), 'parked constants not finished'
            if self.stamps and IM and st == IM[0]:
                for i_, pos in enumerate(IM[1]):
                    nv[pos].append(('Z', ['s_memtime s[98:99]', 's_waitcnt lgkmcnt(0)', 's_mov_b32 s%d, s98' % SP[i_]]))
            if st == 8:
                assert not touches(pk, 128, 132), 'GEGLU of pair 2 still pending in stage 8'
                def chk(a_):
                    assert not touches(pk, 128, 160), 'GEGLU of pair 2 overlaps the loads of the rotated rows'
                nv[opt.get('fu_pos', 76)].append(('W', chk))
                nv[124] += [('W', stores_done(pk, 2)), ('B', 's_barrier')]
                nv[125].append(('Z', self.publish(S_FHP + 0, 5, 0, base2=True)))
            if st == opt.get('fu_st', 1):
                nv[110].insert(0, ('W', ('waitvm', 'ust')))
                nv[111].append(('Z', ['s_lshl_b32 s43, s3, 2', 's_add_u32 s43, s43, %d' % FU] + self.publish(43, 85)))
            if st == 6:
                nv[110].insert(0, ('W', stores_done(pk, 1)))
                nv[111].append(('Z', self.publish(S_FHP, 4)))
        SPI = opt.get('p1marks', [1, 2, 3, 4, 5, 6, 7, 8]) if not opt.get('intra') else []
        def st1(a_, i):
            if i in SPI: a_('s_memtime s[98:99]\ns_waitcnt lgkmcnt(0)\ns_mov_b32 s%d, s98' % SP[SPI.index(i)])
        pk = P1.emit_phase1(a, stflags=opt.get('hst', 'sc1'), extra_dma=extra, prologue=False, hook=hook, tail=False, dist=opt.get('dist', 3), stamp=(st1 if self.stamps else None), skip=opt.get('skip1', ()))
        if self.stamps:
            a('s_waitcnt lgkmcnt(0)')
            names = ['s%d' % x for x in SPI] if not IM else ['i%d_%d' % (IM[0], x) for x in IM[1]]
            for i in range(len(names)):
                j = len(self.marks); self.marks.append(names[i])
                a('v_mov_b32 v255, s%d\ns_mov_b64 exec, 1\nbuffer_store_dword v255, v1, s[12:15], s96 offen offset:%d\ns_mov_b64 exec, -1' % (SP[i], 4 * j))
        self.stamp_tmp = 255
        self.mark('p1end')
        P2.setup2_vec(a)
        for o in P2.dm_calc(8, 16): a(o)
        for s_ in range(3):
            o = P2.dma2_ops(s_, 0, slot_of(9 + s_))[0:1] + P2.dma2_ops(s_, 8, slot_of(9 + s_))
            for x in o: put(a, x)
        a('v_and_b32 v225, 7, v0\nv_lshlrev_b32 v225, 2, v225')
        put(a, fh_ld)
        if not opt.get('h2_late', True):
            a('s_add_u32 s42, s%d, 4096' % S_FHC)
            put(a, h2_ld)
        for o in hpf_addr(226, 227): a(o)
        riders = []
        for s_, at in D2AT.items():
            if at == 9: riders += [P2.dma2_ops(s_, j, slot_of(9 + s_)) for j in range(8)]
        hr = [[x for c_, x in P2.h_ops(s_, i, rb, opt.get('hld', 'sc1'))] for s_ in range(opt.get('hdist', 2)) for i in range(4) for rb in range(2)]
        b2 = Asm()
        b2('v_lshlrev_b32 v%d, 4, v0\nv_add_u32 v%d, %d, v%d' % (A2.t, A2.t, RAW, A2.t))
        for r, n in ((A2.fre, 'fre'), (A2.fim, 'fim'), (A2.tc, 'tc'), (A2.ts, 'ts')):
            b2('ds_read_b128 v[%d:%d], v%d offset:%d' % (r, r + 3, A2.t, 1024 * PKG[n]))
        A2.scaled_twiddles(b2); A2.addresses(b2)
        b2('s_barrier')
        A2.stage_in(b2)
        nchk = len(b2.ops)
        A2.compute(b2, before_bar=lambda a_: (a_.wait_vm(('hst', 4)) if opt.get('hst') != 'none' else None), after_bar=lambda a_: put(a_, ['s_add_u32 s43, s%d, 8192' % S_FHP] + self.publish(43, 230)))
        nlast = max(i for i, o in enumerate(b2.ops) if o.text == 's_barrier')
        A2.stage_out(b2, vlane16=1)
        hq = list(hr); rq = list(riders); masked = False
        per_op = opt.get('drain_rate', 1.0); credit = 0.0
        for i, op in enumerate(b2.ops):
            if i == nchk:
                put(a, fh_chk)
                if opt.get('hpf_e1', False): put(a, ('buffer_load_dword v228, v226, s[12:15], s%d offen' % S_HPF, 'pf'))
            if i == nlast - 12:
                while pk.step(): pass
            a.add(op)
            if op.kind == 'salu' and ('x', 'exec') in op.writes: masked = not op.text.endswith('-1')
            if masked or op.kind == 'pseudo': continue
            credit += per_op
            while credit >= 1 and pk.q:
                pk.step(); credit -= 1
            if rq and i % 10 == 5: put(a, rq.pop(0))
            if i >= nchk + opt.get('h_at', 120) and hq and (i - nchk) % opt.get('h_every', 12) == 0: put(a, hq.pop(0))
        assert not pk.q
        for x in rq + hq: put(a, x)
        if opt.get('h2_late', True):
            a('s_add_u32 s42, s%d, 4096' % S_FHC)
            put(a, h2_ld)
        self.h2 = h2_chk + (['s_add_u32 s43, s%d, 2048' % S_HPF, 's_mov_b32 exec_hi, 0',
                             ('buffer_load_dword v228, v226, s[12:15], s43 offen', 'pf'), 's_mov_b64 exec, -1'] if opt.get('hpf_e2', False) else [])
        self.mark('a2')
        h3_ld, h3_chk = self.flags('one', 80, 42, 81, 'fh3')
        fv_ld, fv_chk = self.flags('four', 84, 42, 82, 'fv')
        epi = P2.epi_ops(88) if not SPL else P2.split_addr_ops(88)
        A3.split = SPL
        A3.tt, A3.xx = 212, 224
        ad = Asm(); A3.v_lds_addr(ad); A3.item_addr(ad); A3.addresses(ad)
        adq = [o.text for o in ad.ops]
        def pre2(st, nv, groups):
            ret = 0
            if st == 0:
                for i, o in enumerate(['v_and_b32 v81, 7, v0', 'v_lshlrev_b32 v81, 2, v81'] + hpf_addr(92, 93) +
                                      ['v_bfe_u32 v93, v0, 3, 1', 'v_lshlrev_b32 v93, 14, v93', 'v_and_b32 v94, 7, v0', 'v_lshl_add_u32 v93, v94, 7, v93']):
                    nv[i].append(('a', o))
            if st == opt.get('h2_st', 3 - opt.get('hdist', 2)): nv[opt.get('h2_pos', 60)].append(('Z', self.h2))
            if st == 1:
                nv[61].insert(0, ('W', ('waitvm', 'vst')))
                nv[62].append(('Z', ['s_lshl_b32 s43, s2, 2', 's_add_u32 s43, s43, %d' % FV] + self.publish(43, 83)))
            l_st = opt.get('l_st', 6 - opt.get('hdist', 2))
            if st == l_st - 1:
                groups.append((opt.get('l_ldpos', 4), [('S', 's_add_u32 s42, s%d, 8192' % S_FHC), ('L', h3_ld)]))
            if st == l_st:
                pf3 = ['s_add_u32 s43, s%d, 3072' % S_HPF, 's_mov_b32 exec_hi, 0',
                       ('buffer_load_dword v95, v92, s[12:15], s43 offen', 'pf'),
                       's_lshl_b32 s43, s%d, 10' % S_NT, 's_add_u32 s43, s43, s%d' % P2.S2_HS, 's_mov_b64 exec, 0xffff',
                       ('buffer_load_dword v95, v93, s[12:15], s43 offen', 'pf'), 's_mov_b64 exec, -1'] if opt.get('hpf_l', False) else []
                nv[0].append(('Z', h3_chk + pf3))
                if l_st == 6 - opt.get('hdist', 2): ret = 2
            if st == 0: pass
            if st == 6:
                for i, o in enumerate(epi): nv[2 + (i * 69) // len(epi)].append(('a', o))
            if st in (1, 2, 3, 4, 5):
                n_ = (len(adq) + (5 - st)) // (6 - st) if st < 5 else len(adq)
                for i in range(n_): nv[2 + (i * 68) // max(n_, 1)].append(('a', adq.pop(0)))
            if st == 6:
                nv[0].append(('a', 'v_min_u32 v82, 49, v0')); nv[1].append(('a', 'v_lshlrev_b32 v82, 4, v82'))
                groups.append((4, [('S', 's_mov_b32 s42, %d' % FV), ('L', fv_ld)]))
            if st == 8 and SPL:
                pos = opt.get('spl_pos', 34)
                q_ = P2.split_part(0, opt.get('pst', 'sc1'))
                while q_ and pos <= 70:
                    cls, it = q_[0]
                    busy = [c for c, _ in nv[pos]]
                    if cls != 'a' and pos < 56 and cls in 'X' and 'D' in busy and opt.get('spl_avoid', False): pos += 1; continue
                    nv[pos].append(('a' if cls == 'a' else 'Z', it)); q_.pop(0); pos += 1
                self.spl_rest = q_
            if st == 8:
                pre_ = ['v_lshlrev_b32 v12, 2, v0', 's_lshl_b32 s44, s20, 9', 's_add_u32 s44, s44, s3', 's_mul_i32 s44, s44, 1152', 's_add_u32 s45, s44, %d' % (256 * 1152),
                        'v_mov_b32 v84, 0', 'v_mov_b32 v89, 0']
                for i, o in enumerate(pre_): nv[i].append(('a', o))
                its = []
                for e in range(2):
                    for i in range(4): its.append(('L', ('buffer_load_dword v%d, v12, s[8:11], s%d offen offset:%d' % (80 + 5 * e + i, 44 + e, 256 * i), 'gx')))
                    its.append(('Z', ['s_mov_b32 exec_hi, 0', ('buffer_load_dword v%d, v12, s[8:11], s%d offen offset:1024' % (84 + 5 * e, 44 + e), 'gx'), 's_mov_b64 exec, -1']))
                for i in range(5): its.append(('L', ('buffer_load_dword v%d, v12, s[64:67], 0 offen offset:%d' % (90 + i, 256 * i), 'gx')))
                groups.append((8, its))
            if st == 7:
                va = A3.v_addr_ops(88)
                nv[0].append(('Z', fv_chk))
                for i, o in enumerate(va): nv[1 + i].append(('a', o))
                groups.append((len(va) + 3, [('L', x) for x in A3.v_load_ops(88)]))
            return ret
        def st2(a_, i): self.mark('t%d' % i)
        P2.emit_phase2(a, slot0=9, ldflags=opt.get('hld', 'sc1'), skip=opt.get('skip2', ()), pre_stage=pre2, hdist=opt.get('hdist', 2), stamp=(st2 if self.stamps and opt.get('stage_marks') else None))
        self.mark('p2end')
        if SPL:
            for cls, it in self.spl_rest: put(a, it)
            for part in (1, 2):
                for cls, it in P2.split_part(part, opt.get('pst', 'sc1')): put(a, it)
        else: P2.epilogue2(a, opt.get('pst', 'sc1'))
        self.mark('epi')
        a('s_mov_b32 s68, s80\ns_mov_b32 s69, s81\ns_mov_b32 s70, %d\ns_mov_b32 s71, 0x20000' % NB_X)
        A3.S_OUT = 68
        assert not adq
        for e in range(2):
            a('v_mov_b32 v%d, 0' % (10 + e))
            for i in range(5): a('v_dot2_f32_bf16 v%d, v%d, v%d, v%d' % (10 + e, 80 + 5 * e + i, 90 + i, 10 + e))
        a('v_lshlrev_b32 v6, 4, v0\nv_add_u32 v6, %d, v6' % RAW)
        for r, n in ((A3.r8, 'r8'), (A3.cs, 'cs0'), (A3.cs + 4, 'cs1'), (A3.ns, 'sn0'), (A3.sn + 4, 'sn1'), (A3.twc, 'twc0'), (A3.twc + 4, 'twc1'),
                     (A3.tws, 'tws0'), (A3.tws + 4, 'tws1'), (A3.ab, 'ab0'), (A3.ab + 4, 'ab1')):
            a('ds_read_b128 v[%d:%d], v6 offset:%d' % (r, r + 3, 1024 * PKG[n]))
        for k_ in range(4):
            a('v_xor_b32 v%d, 0x80008000, v%d' % (A3.sn + k_, A3.ns + k_))
            a('v_xor_b32 v%d, 0x80008000, v%d' % (A3.ns + 4 + k_, A3.sn + 4 + k_))
        a('s_barrier')
        self.mark('a3consts')
        AB.gate_finish(a, 10, 40)
        a('s_lshl_b32 s46, s20, 3\ns_add_u32 s46, s46, %d\nv_mov_b32 v12, s46\ns_mov_b64 exec, 1\nds_write_b64 v12, v[10:11]\ns_mov_b64 exec, -1' % A3.gl)
        def pub_after(a_):
            put(a_, self.publish(S_FPP, 252))
        if opt.get('pub_at', 'mid') == 'mid':
            A3.spectral(a, mid_before=lambda a_: a_.wait_vm('pst'), mid_after=pub_after)
        else:
            A3.spectral(a, end_before=lambda a_: a_.wait_vm('pst'), end_after=pub_after)
        self.mark('spectral')
        A3.mix_pre(a)
        fp_ld, fp_chk = self.flags('one', 4, S_FPC, 5, 'fp')
        if opt.get('poll_all'):
            a('v_and_b32 v5, 15, v0\nv_lshlrev_b32 v5, 7, v5')
            put(a, fp_ld); put(a, fp_chk)
        else:
            a('s_cmp_lg_u32 s20, 0\ns_cbranch_scc1 L_nopoll')
            a('v_and_b32 v5, 15, v0\nv_lshlrev_b32 v5, 7, v5')
            put(a, fp_ld); put(a, fp_chk)
            a('L_nopoll:')
            a('s_barrier')
        self.mark('pflags')
        A3.p_loads(a)
        A3.mix_post(a, opt.get('outst', ''))
        a('s_cmp_lg_u32 s2, 0\ns_cbranch_scc1 L_fin')
        a('s_mov_b32 s46, %d' % EPOCH)
        put(a, self.publish(46, 252))
        a('L_fin:')
        self.mark('end')
        a('s_waitcnt vmcnt(0)')
        if self.stamps:
            a('''s_memrealtime s[94:95]
s_memtime s[98:99]
s_waitcnt lgkmcnt(0)
v_mov_b32 v10, s90
v_mov_b32 v11, s92
v_mov_b32 v12, s94
v_mov_b32 v13, s98
s_lshl_b32 s40, s2, 2
s_add_u32 s40, s40, s20
s_lshl_b32 s40, s40, 4
s_add_u32 s40, s40, %d
s_mov_b64 exec, 1
buffer_store_dwordx4 v[10:13], v1, s[12:15], s40 offen
s_waitcnt vmcnt(0)''' % STAMP_BASE)
        if opt.get('dbgclk'):
            a('''s_load_dwordx2 s[40:41], s[0:1], %d
s_memrealtime s[94:95]
s_memtime s[98:99]
s_waitcnt lgkmcnt(0)
s_mov_b32 s42, 256
s_mov_b32 s43, 0x20000
s_sub_u32 s94, s94, s90
s_sub_u32 s98, s98, s92
s_and_b32 s44, s2, 31
s_cmp_eq_u32 s44, 0
s_cbranch_scc0 L_nodbg
s_lshr_b32 s44, s2, 5
s_lshl_b32 s44, s44, 3
v_mov_b32 v10, s98
v_mov_b32 v11, s94
s_mov_b64 exec, 1
buffer_store_dwordx2 v[10:11], v1, s[40:43], s44 offen
s_waitcnt vmcnt(0)
L_nodbg:''' % KA_DBG)
        a('s_endpgm')
        body = a.finalize(); cold = self.cold.finalize()
        Kn = KN + '_kernel'
        src = HEADER + '; @launch grid=(256,1,1) block=(256,1,1) lds=%d\n' % LDS_BYTES
        src += '.amdgcn_target "amdgcn-amd-amdhsa--gfx950"\n.text\n.globl %s\n.p2align 8\n.type %s,@function\n%s:\n s_cmp_ge_u32 s2, 256\n s_cbranch_scc1 L_done\n' % (Kn, Kn, Kn)
        src += body + '\n' + cold + '\nL_done:\n s_endpgm\n.section .rodata,"a"\n' + kernel_desc(Kn) + '\n'
        return src

def variant(name, **opt):
    import json
    opt.setdefault('stage_marks', True)
    f = Fused(stamps=True, opt=opt); src = f.build(); open('work/%s.s' % name, 'w').write(src)
    json.dump(f.marks, open('work/%s.json' % name, 'w'))

if __name__ == '__main__':
    out = sys.argv[1] if len(sys.argv) > 1 else 'fused.s'
    f = Fused(); src = f.build(); open(out, 'w').write(src); print(out, f.a.stats, len(src))
    f = Fused(stamps=True, opt={'stage_marks': True}); src = f.build(); open(out.replace('.s', '_st.s'), 'w').write(src)
    import json; json.dump(f.marks, open(out.replace('.s', '_st.json'), 'w')); print(len(f.marks), 'marks')
```
